```python
import torch

def _softmax(x, axis=-1):
    return torch.softmax(x, dim=axis)
def _gelu(x):
    return torch.nn.functional.gelu(x, approximate="tanh")
def _silu(x):
    return torch.nn.functional.silu(x)
def _sigmoid(x):
    return torch.sigmoid(x)
def _layernorm(x, axis=-1, eps=1e-5):
    m = x.mean(dim=axis, keepdim=True)
    v = x.var(dim=axis, keepdim=True, unbiased=False)
    return (x - m) / torch.sqrt(v + eps)
def _scatter_add(tgt, idx, src, axis=0):
    return tgt.clone().index_add_(axis, idx, src)
def _segment_sum(src, seg, n):
    out = torch.zeros((n,) + src.shape[1:], dtype=src.dtype)
    return out.index_add_(0, seg, src)
def _pad(x, pw):
    flat = tuple(v for pair in reversed(pw) for v in pair)
    return torch.nn.functional.pad(x, flat)

kernel_name = 'standalone__sequential_behavior_din__recsys'

def setup_inputs():

    _w = (lambda a: (lambda t: t.to(torch.bfloat16) if t.is_floating_point() else t)(torch.as_tensor(a)))
    B, L, D = 16384, 20, 64
    H = D
    return {
        "target": _w((lambda *s: torch.randn(*s, dtype=torch.bfloat16) * 1.6)(B, D)),
        "hist": _w((lambda *s: torch.randn(*s, dtype=torch.bfloat16) * 1.6)(B, L, D)),
        "mask": _w((lambda lo, hi, *s: torch.randint(lo, hi, s))(0, 2, B, L).to(float)),
        "w1": _w((lambda *s: torch.randn(*s, dtype=torch.bfloat16) * 1.6)(4 * D, H) * (4 * D) ** -0.5),
        "b1": _w((lambda *s: torch.randn(*s, dtype=torch.bfloat16) * 12.8)(H) * 0.1),
        "w2": _w((lambda *s: torch.randn(*s, dtype=torch.bfloat16) * 0.05)(H, 1) * H ** -0.5),
        "b2": _w((lambda *s: torch.randn(*s, dtype=torch.bfloat16) * 0.2)(1) * 0.1),
    }

def reference(target, hist, mask, w1, b1, w2, b2):
    L = hist.shape[1]
    tgt = (lambda x, n, axis: torch.repeat_interleave(x, n, dim=axis))(target[:, None, :], L, axis=1)
    feat = torch.concatenate([hist, tgt, hist - tgt, hist * tgt], axis=-1)
    h = _sigmoid(feat @ w1 + b1)
    scores = (h @ w2 + b2)[..., 0] * mask
    return torch.einsum('bl,bld->bd', scores, hist)
```

```python
import sys

NAME = "standalone__sequential_behavior_din__recsys"

HIST = 0
TU   = 98304
WST  = 132096
LIST = 156672
LDS_BYTES = 163840
NLOG2E = 0xBFB8AA3B

class Asm:
    def __init__(self): self.l = []
    def __call__(self, s): self.l.append("    " + s)
    def label(self, s): self.l.append(s + ":")
    def c(self, s): self.l.append("    ; " + s)
    def text(self): return "\n".join(self.l) + "\n"

def v(b, n=1): return f"v{b}" if n == 1 else f"v[{b}:{b+n-1}]"
def a(b, n=1): return f"a{b}" if n == 1 else f"a[{b}:{b+n-1}]"
def s(b, n=1): return f"s{b}" if n == 1 else f"s[{b}:{b+n-1}]"

def gen(nt=True, stamps=False):
    o = Asm()
    NT = " nt" if nt else ""
    D, T, HF, H, W2, ACC = 0, 32, 64, 96, 112, 144
    SOP = 160
    ID = 164
    AH, ATR = 166, 170
    AENT, ATU, ASW, MSK, ENT = 174, 175, 176, 177, 178
    CTU, CSW, ASR, B2, ZERO = 179, 180, 181, 182, 183
    S0, S1 = 184, 185
    CE, CO, ALD = 186, 187, 188
    AX, AOUT, TMP = 189, 190, 191
    NV = 192
    sW, sG, sP, sGG = 20, 21, 22, 23
    sM = 24
    sB = 34
    sCW, sI, sREM, sSLOT, sDELTA, sM0, sK, sNL = 40, 41, 42, 43, 44, 45, 46, 47
    sSRD = 48
    sT0, sT1 = 52, 53
    sST = 56
    def stamp(i):
        if stamps: o(f"s_memrealtime {s(sST+2*i,2)}")

    LANE, TID = 1, 0
    M, INFO, E, POS = 2, 7, 12, 17
    X0, X1, X2, X3 = 22, 23, 24, 25
    VO = 26
    RA, RB, RC, RD = 32, 36, 40, 44
    TM, TO = 48, 52
    RB1 = 56
    NID = 60
    AWW, AWR = 62, 63
    LE = 64
    AU0, AU1, ATW, AUW = 76, 77, 78, 79
    F0 = 80
    RW2 = 96

    stamp(0)
    o("s_cmp_ge_u32 s2, 0x100")
    o("s_cbranch_scc1 L_end")
    o("s_load_dwordx16 s[4:19], s[0:1], 0")
    o(f"v_lshrrev_b32 {v(X0)}, 6, v0")
    o(f"v_and_b32 {v(LANE)}, 63, v0")
    o(f"v_readfirstlane_b32 {s(sW)}, {v(X0)}")
    o(f"v_lshlrev_b32 {v(VO+1)}, 4, v0")
    o(f"s_and_b32 {s(sG)}, {s(sW)}, 3")
    o(f"s_lshr_b32 {s(sP)}, {s(sW)}, 2")
    o(f"s_lshl2_add_u32 {s(sGG)}, s2, {s(sG)}")
    o(f"s_mul_i32 {s(sT0)}, {s(sGG)}, 640")
    o(f"v_lshl_add_u32 {v(VO)}, {v(LANE)}, 1, {s(sT0)}")
    o(f"s_mul_i32 {s(sB)}, {s(sG)}, 1280")
    o(f"s_add_u32 {s(sB)}, {s(sB)}, {LIST}")
    o.c("pad entries for the row list")
    for i in range(4): o(f"v_mov_b32 {v(F0+i)}, 0xff80")
    o(f"v_lshl_add_u32 {v(X1)}, {v(LANE)}, 4, {s(sB)}")
    o(f"v_lshl_add_u32 {v(X2)}, {v(LANE)}, 2, {s(sB)}")
    o("s_waitcnt lgkmcnt(0)")
    stamp(1)
    for j in range(5): o(f"global_load_ushort {v(M+j)}, {v(VO)}, s[8:9] offset:{128*j}{NT}")
    o(f"ds_write_b128 {v(X1)}, {v(F0,4)}")
    o(f"ds_write_b32 {v(X2)}, {v(F0)} offset:1024")
    o.c("global offsets of the parameter loads")
    for f in range(1, 4): o(f"v_add_u32 {v(VO+1+f)}, {8192*f}, {v(VO+1)}")
    o(f"v_and_b32 {v(X0)}, 15, {v(LANE)}")
    o(f"v_lshrrev_b32 {v(X3)}, 4, {v(LANE)}")
    o(f"s_lshl_b32 {s(sT0)}, {s(sGG)}, 11")
    o(f"s_lshl_b32 {s(sT1)}, {s(sP)}, 6")
    o(f"s_add_u32 {s(sT0)}, {s(sT0)}, {s(sT1)}")
    o(f"v_lshl_add_u32 {v(AOUT)}, {v(X0)}, 7, {s(sT0)}")
    o(f"v_lshl_add_u32 {v(VO+5)}, {v(X3)}, 4, {v(AOUT)}")
    o(f"v_xor_b32 {v(TMP)}, 64, {v(VO+5)}")
    o("s_waitcnt lgkmcnt(0)")
    o("s_barrier")
    for f, r in enumerate((RA, RB, RC, RD)): o(f"global_load_dwordx4 {v(r,4)}, {v(VO+1+f)}, s[10:11]")
    o(f"global_load_dwordx4 {v(TM,4)}, {v(VO+5)}, s[4:5]")
    o(f"global_load_dwordx4 {v(TO,4)}, {v(TMP)}, s[4:5]")
    o.c("h0 = 32*(q&1) + 16p + 4*(q>>1)")
    o(f"v_and_b32 {v(X1)}, 1, {v(X3)}")
    o(f"v_lshrrev_b32 {v(X2)}, 1, {v(X3)}")
    o(f"v_lshlrev_b32 {v(F0)}, 5, {v(X1)}")
    o(f"v_lshl_add_u32 {v(AOUT)}, {v(X2)}, 4, {v(AOUT)}")
    o(f"v_add_u32 {v(AOUT)}, {v(F0)}, {v(AOUT)}")
    o(f"v_lshl_add_u32 {v(F0)}, {v(X2)}, 2, {v(F0)}")
    o(f"s_lshl_b32 {s(sT1)}, {s(sP)}, 4")
    o(f"v_add_u32 {v(F0)}, {s(sT1)}, {v(F0)}")
    o(f"v_lshlrev_b32 {v(F0+1)}, 1, {v(F0)}")
    o(f"v_lshrrev_b32 {v(F0+2)}, 5, {v(LANE)}")
    o(f"v_lshlrev_b32 {v(F0+3)}, 6, {v(F0+2)}")
    o(f"v_mov_b32 {v(ZERO)}, 0")
    o(f"global_load_dwordx2 {v(RB1,2)}, {v(F0+1)}, s[12:13]")
    o(f"global_load_dwordx2 {v(RB1+2,2)}, {v(F0+1)}, s[12:13] offset:16")
    for i in range(4): o(f"global_load_dwordx4 {v(RW2+4*i,4)}, {v(F0+3)}, s[14:15] offset:{16*i}")
    o(f"global_load_ushort {v(B2)}, {v(ZERO)}, s[16:17]")
    o.c("t / u record addresses for the prologue writers")
    o(f"s_mul_i32 {s(sT0)}, {s(sG)}, {16*528}")
    o(f"s_add_u32 {s(sT0)}, {s(sT0)}, {TU}")
    o(f"v_mul_u32_u24 {v(ATW)}, 528, {v(X0)}")
    o(f"v_add_u32 {v(ATW)}, {s(sT0)}, {v(ATW)}")
    o(f"v_lshl_add_u32 {v(AUW)}, {v(F0)}, 2, {v(ATW)}")
    o(f"s_lshl_b32 {s(sT1)}, {s(sP)}, 7")
    o(f"v_lshl_add_u32 {v(ATW)}, {v(X3)}, 5, {v(ATW)}")
    o(f"v_add_u32 {v(ATW)}, {s(sT1)}, {v(ATW)}")
    o(f"v_lshl_add_u32 {v(CTU)}, {v(F0+2)}, 7, {s(sT0)}")
    o.c("row info: row*128 | sample")
    o(f"s_movk_i32 {s(sK)}, 3277")
    for j in range(5):
        o(f"v_add_u32 {v(X1)}, {64*j}, {v(LANE)}")
        o(f"v_mul_u32_u24 {v(X2)}, {s(sK)}, {v(X1)}")
        o(f"v_lshrrev_b32 {v(X2)}, 16, {v(X2)}")
        o(f"v_lshl_or_b32 {v(INFO+j)}, {v(X1)}, 7, {v(X2)}")
    o.c("hist descriptor for this group")
    o(f"s_mul_i32 {s(sT0)}, {s(sGG)}, 40960")
    o(f"s_add_u32 {s(sSRD)}, s6, {s(sT0)}")
    o(f"s_addc_u32 {s(sSRD+1)}, s7, 0")
    o(f"s_mov_b32 {s(sSRD+2)}, 40960")
    o(f"s_mov_b32 {s(sSRD+3)}, 0x20000")
    o(f"s_mul_i32 {s(sM0)}, {s(sW)}, 12288")
    o(f"s_mov_b32 {s(sK)}, 0xff80")
    o(f"s_mov_b32 {s(sNL)}, {hex(NLOG2E)}")
    o.c("DMA lane constants")
    o(f"v_lshrrev_b32 {v(X1)}, 3, {v(LANE)}")
    o(f"v_and_b32 {v(X2)}, 6, {v(X1)}")
    o(f"v_and_b32 {v(CE)}, 7, {v(LANE)}")
    o(f"v_xor_b32 {v(CE)}, {v(CE)}, {v(X2)}")
    o(f"v_lshlrev_b32 {v(CE)}, 4, {v(CE)}")
    o(f"v_xor_b32 {v(CO)}, 16, {v(CE)}")
    o(f"s_add_u32 {s(sT1)}, {s(sT1)}, {s(sB)}")
    o(f"v_lshl_add_u32 {v(ALD)}, {v(X1)}, 4, {s(sT1)}")
    o.c("per-row entry address: ((n&7)*4 + (n>>3))*4")
    o(f"v_and_b32 {v(X1)}, 3, {v(X1)}")
    o(f"v_and_b32 {v(X2)}, 7, {v(LANE)}")
    o(f"v_lshl_add_u32 {v(X2)}, {v(X2)}, 2, {v(X1)}")
    o(f"v_lshl_add_u32 {v(AENT)}, {v(X2)}, 2, {s(sT1)}")
    o.c("row-major fragment addresses")
    o(f"v_and_b32 {v(X1)}, 1, {v(X1)}")
    o(f"v_and_or_b32 {v(X1)}, {v(LANE)}, 6, {v(X1)}")
    o(f"v_lshlrev_b32 {v(X2)}, 2, {v(F0+2)}")
    o(f"v_xor_b32 {v(X1)}, {v(X1)}, {v(X2)}")
    o(f"v_and_b32 {v(X2)}, 31, {v(LANE)}")
    o(f"v_lshl_add_u32 {v(X2)}, {v(X2)}, 7, {s(sM0)}")
    o(f"v_lshl_add_u32 {v(AH)}, {v(X1)}, 4, {v(X2)}")
    for k in range(1, 4): o(f"v_xor_b32 {v(AH+k)}, {16*k}, {v(AH)}")
    o.c("transposed fragment addresses: row' = lane>>2")
    o(f"v_lshrrev_b32 {v(X1)}, 2, {v(LANE)}")
    o(f"v_and_or_b32 {v(X2)}, {v(X1)}, 6, {v(F0+2)}")
    o(f"v_bfe_u32 {v(F0+4)}, {v(LANE)}, 1, 1")
    o(f"s_lshl_b32 {s(sT0)}, {s(sP)}, 2")
    o(f"v_or_b32 {v(F0+4)}, {s(sT0)}, {v(F0+4)}")
    o(f"v_xor_b32 {v(X2)}, {v(X2)}, {v(F0+4)}")
    o(f"v_lshl_add_u32 {v(X1)}, {v(X1)}, 7, {s(sM0)}")
    o(f"v_lshl_add_u32 {v(X1)}, {v(X2)}, 4, {v(X1)}")
    o(f"v_and_b32 {v(X2)}, 1, {v(LANE)}")
    o(f"v_lshl_add_u32 {v(ATR)}, {v(X2)}, 3, {v(X1)}")
    for k in range(1, 4): o(f"v_xor_b32 {v(ATR+k)}, {32*k}, {v(ATR)}")
    o.c("score matrix addresses")
    o(f"s_lshl_b32 {s(sT0)}, {s(sW)}, 10")
    o(f"s_add_u32 {s(sT0)}, {s(sT0)}, {WST}")
    o(f"v_lshl_add_u32 {v(ASR)}, {v(LANE)}, 4, {s(sT0)}")
    o(f"v_bfe_u32 {v(X1)}, {v(LANE)}, 2, 2")
    o(f"v_lshl_add_u32 {v(CSW)}, {v(X1)}, 8, {s(sT0)}")
    o(f"v_bfe_u32 {v(X2)}, {v(LANE)}, 4, 1")
    o(f"v_lshl_add_u32 {v(CSW)}, {v(X2)}, 3, {v(CSW)}")
    o(f"v_and_b32 {v(F0+4)}, 3, {v(LANE)}")
    o(f"v_lshl_add_u32 {v(CSW)}, {v(F0+4)}, 1, {v(CSW)}")
    o.c("exchange buffer address")
    o(f"s_lshl_b32 {s(sT0)}, {s(sW)}, 11")
    o(f"s_add_u32 {s(sT0)}, {s(sT0)}, {WST+8192}")
    o(f"v_lshl_add_u32 {v(AX)}, {v(LANE)}, 4, {s(sT0)}")
    o.c("staging read address (32*half + r)*64 + sub*32 + c*8")
    o(f"v_lshl_add_u32 {v(AWR)}, {v(F0+2)}, 5, {v(X1)}")
    o(f"v_lshlrev_b32 {v(AWR)}, 6, {v(AWR)}")
    o(f"v_lshl_add_u32 {v(AWR)}, {v(X2)}, 5, {v(AWR)}")
    o(f"v_lshl_add_u32 {v(AWR)}, {v(F0+4)}, 3, {v(AWR)}")
    o(f"v_add_u32 {v(AWR)}, {WST}, {v(AWR)}")
    o.c("bias-GEMM read addresses (8q + r)*64 + c*8 + 4096p + 2048ks")
    o(f"v_lshl_add_u32 {v(AU0)}, {v(X3)}, 3, {v(X1)}")
    o(f"v_lshlrev_b32 {v(AU0)}, 6, {v(AU0)}")
    o(f"v_lshl_add_u32 {v(AU0)}, {v(F0+4)}, 3, {v(AU0)}")
    o(f"s_mul_i32 {s(sT0)}, {s(sP)}, 6144")
    o(f"v_add_u32 {v(AU0)}, {s(sT0)}, {v(AU0)}")
    o(f"v_xor_b32 {v(AU1)}, 0x800, {v(AU0)}")
    o(f"v_add_u32 {v(AU0)}, {WST+16384}, {v(AU0)}")
    o(f"v_add_u32 {v(AU1)}, {WST+16384}, {v(AU1)}")
    o.c("staging write address")
    o(f"v_lshrrev_b32 {v(AWW)}, 3, v0")
    o(f"v_lshlrev_b32 {v(AWW)}, 6, {v(AWW)}")
    o(f"v_bfe_u32 {v(X1)}, {v(LANE)}, 1, 1")
    o(f"v_lshl_add_u32 {v(AWW)}, {v(X1)}, 12, {v(AWW)}")
    o(f"v_and_b32 {v(X1)}, 1, {v(LANE)}")
    o(f"v_lshl_add_u32 {v(AWW)}, {v(X1)}, 5, {v(AWW)}")
    o(f"v_bfe_u32 {v(X1)}, {v(LANE)}, 2, 1")
    o(f"v_lshl_add_u32 {v(AWW)}, {v(X1)}, 3, {v(AWW)}")
    o(f"v_add_u32 {v(AWW)}, {WST}, {v(AWW)}")
    o.c("4x4 identity operands")
    o(f"v_lshlrev_b32 {v(X1)}, 4, {v(F0+4)}")
    o(f"v_mov_b32 {v(ID)}, 0x3f80")
    o(f"v_mov_b32 {v(ID+1)}, 0")
    o(f"v_mov_b32 {v(NID)}, 0xbf80")
    o(f"v_mov_b32 {v(NID+1)}, 0")
    o(f"v_lshlrev_b64 {v(ID,2)}, {v(X1)}, {v(ID,2)}")
    o(f"v_lshlrev_b64 {v(NID,2)}, {v(X1)}, {v(NID,2)}")
    for i in range(16): o(f"v_mov_b32 {v(ACC+i)}, 0")

    o.c("---- compaction of the unmasked rows ----")
    o("s_waitcnt vmcnt(13)")
    stamp(2)
    for j in range(5): o(f"v_cmp_ne_u32_e64 {s(sM+2*j,2)}, 0, {v(M+j)}")
    for j in range(5): o(f"v_lshl_or_b32 {v(E+j)}, {v(M+j)}, 16, {v(INFO+j)}")
    for j in range(5):
        o(f"s_bcnt1_i32_b64 {s(sT0)}, {s(sM+2*j,2)}")
        o(f"v_mbcnt_lo_u32_b32 {v(POS+j)}, {s(sM+2*j)}, 0")
        o(f"s_lshl2_add_u32 {s(sB+j+1)}, {s(sT0)}, {s(sB+j)}")
        o(f"v_mbcnt_hi_u32_b32 {v(POS+j)}, {s(sM+2*j+1)}, {v(POS+j)}")
        o(f"v_lshl_add_u32 {v(POS+j)}, {v(POS+j)}, 2, {s(sB+j)}")
    for j in range(5):
        o(f"s_mov_b64 exec, {s(sM+2*j,2)}")
        o(f"ds_write_b32 {v(POS+j)}, {v(E+j)}")
    o("s_mov_b64 exec, -1")
    for i in range(3): o(f"ds_read_b128 {v(LE+4*i,4)}, {v(ALD)} offset:{256*i}")
    o(f"ds_read_b32 {v(ENT)}, {v(AENT)}")
    o(f"s_sub_u32 {s(sT0)}, {s(sB+5)}, {s(sB)}")
    o(f"s_add_u32 {s(sT0)}, {s(sT0)}, 124")
    o(f"s_lshr_b32 {s(sT0)}, {s(sT0)}, 7")
    o(f"s_sub_u32 {s(sT0)}, {s(sT0)}, {s(sP)}")
    o(f"s_add_u32 {s(sT0)}, {s(sT0)}, 1")
    o(f"s_lshr_b32 {s(sCW)}, {s(sT0)}, 1")
    o(f"s_mov_b32 m0, {s(sM0)}")
    for i in range(12):
        if i % 4 == 0: o(f"s_waitcnt lgkmcnt({3 - i//4})")
        o(f"v_and_or_b32 {v(LE+i)}, {v(LE+i)}, {s(sK)}, {v(CO if i & 1 else CE)}")
        o(f"buffer_load_dwordx4 {v(LE+i)}, {s(sSRD,4)}, 0 offen{NT} lds")
        if i < 11: o("s_add_u32 m0, m0, 0x400")
    stamp(3)

    o.c("---- weight preparation ----")
    def m4(d, aa, b, c): o(f"v_mfma_f32_4x4x4_16b_bf16 {v(d,4)}, {v(aa,2)}, {v(b,2)}, {c}")
    o("s_waitcnt vmcnt(12)")
    m4(F0, ID, RA, 0); m4(F0+4, ID, RA+2, 0); m4(F0+8, ID, RB, 0); m4(F0+12, ID, RB+2, 0)
    m4(F0, ID, RC, v(F0,4)); m4(F0+4, ID, RC+2, v(F0+4,4)); m4(F0+8, NID, RC, v(F0+8,4)); m4(F0+12, NID, RC+2, v(F0+12,4))
    m4(D+0, ID, TM, 0); m4(D+4, ID, TM+2, 0)
    m4(D+8, ID, RB1, 0); m4(D+12, ID, RB1+2, 0)
    o(f"ds_write_b64 {v(AWW)}, {v(RD,2)} offset:8192")
    o(f"ds_write_b64 {v(AWW)}, {v(RD+2,2)} offset:{8192+16}")
    for i in range(8): o(f"v_mul_f32 {v(F0+i)}, {s(sNL)}, {v(F0+i)}")
    for i in range(8): o(f"v_mul_f32 {v(D+i)}, {s(sNL)}, {v(D+i)}")
    for i in range(8): o(f"v_cvt_pk_bf16_f32 {v(F0+i)}, {v(F0+2*i)}, {v(F0+2*i+1)}")
    o(f"ds_write_b64 {v(AWW)}, {v(F0,2)}")
    o(f"ds_write_b64 {v(AWW)}, {v(F0+2,2)} offset:16")
    o(f"ds_write_b64 {v(AWW)}, {v(F0+4,2)} offset:16384")
    o(f"ds_write_b64 {v(AWW)}, {v(F0+6,2)} offset:{16384+16}")
    o(f"ds_write_b128 {v(ATW)}, {v(D,4)}")
    o(f"ds_write_b128 {v(ATW)}, {v(D+4,4)} offset:16")
    for i in range(8): m4(W2+4*i, ID, RW2+2*i, 0)
    o(f"v_lshlrev_b32 {v(B2)}, 16, {v(B2)}")
    o(f"v_mul_f32 {v(B2)}, 0.5, {v(B2)}")
    o("s_waitcnt lgkmcnt(0)")
    o("s_barrier")
    for sub in range(2):
        for x, au in enumerate((AU0, AU1)):
            for kk in range(2):
                o(f"ds_read_b64_tr_b16 {v(F0+8*sub+4*x+2*kk,2)}, {v(au)} offset:{32*sub+256*kk}")
    def wfrag(mat, ht, ks): return 32*ht + 16*mat + 4*ks
    wreads = [(mat, ht, ks, kk) for ht in range(2) for mat in range(2) for ks in range(4) for kk in range(2)]
    def wread(x):
        mat, ht, ks, kk = x
        o(f"ds_read_b64_tr_b16 {a(wfrag(mat,ht,ks)+2*kk,2)}, {v(AWR)} offset:{8192*mat+4096*ht+512*ks+256*kk}")
    for x in wreads[:6]: wread(x)
    o("s_waitcnt lgkmcnt(6)")
    for x, tb in enumerate((TM, TO)):
        for sub in range(2):
            o(f"v_mfma_f32_16x16x32_bf16 {v(D+8+4*sub,4)}, {v(F0+8*sub+4*x,4)}, {v(tb,4)}, {v(D+8+4*sub,4)}")
    for x in wreads[6:14]: wread(x)
    for i in range(8): o(f"v_mul_f32 {v(D+8+i)}, {s(sNL)}, {v(D+8+i)}")
    o(f"ds_write_b128 {v(AUW)}, {v(D+8,4)} offset:256")
    o(f"ds_write_b128 {v(AUW)}, {v(D+12,4)} offset:{256+32}")
    for x in wreads[14:]: wread(x)
    o(f"v_and_b32 {v(TMP)}, 15, {v(ENT)}")
    o(f"s_movk_i32 {s(sT1)}, 528")
    o(f"v_mad_u32_u24 {v(ATU)}, {v(TMP)}, {s(sT1)}, {v(CTU)}")
    o(f"s_max_u32 {s(sREM)}, {s(sCW)}, 3")
    o(f"s_mov_b32 {s(sI)}, 3")
    o(f"s_mov_b32 {s(sSLOT)}, 0")
    o("s_waitcnt lgkmcnt(0)")
    o("s_barrier")
    o(f"ds_write_b128 {v(ASR)}, {v(ACC,4)}")
    for i in range(8): o(f"ds_read_b128 {v(T+4*i,4)}, {v(ATU)} offset:{16*i}")
    for i in range(8): o(f"ds_read_b128 {v(D+4*i,4)}, {v(ATU)} offset:{256+16*i}")
    stamp(4)
    o(f"s_cmp_eq_u32 {s(sCW)}, 0")
    o("s_cbranch_scc1 L_epi")

    o.c("---- tile loop ----")
    o.label("L_loop")
    o(f"s_cmp_ge_u32 {s(sREM)}, 3")
    o("s_cbranch_scc1 L_w8")
    o(f"s_cmp_eq_u32 {s(sREM)}, 2")
    o("s_cbranch_scc1 L_w4")
    o("s_waitcnt vmcnt(0)")
    o.label("L_w4")
    o("s_waitcnt vmcnt(4)")
    o.label("L_w8")
    o("s_waitcnt vmcnt(8)")
    for k in range(4): o(f"ds_read_b128 {v(H+4*k,4)}, {v(AH+k)}")
    o(f"v_and_b32 {v(TMP)}, 15, {v(ENT)}")
    o(f"v_and_b32 {v(MSK)}, 0xffff0000, {v(ENT)}")
    o(f"v_lshl_add_u32 {v(ASW)}, {v(TMP)}, 4, {v(CSW)}")
    o(f"ds_read_b32 {v(ENT)}, {v(AENT)} offset:256")
    o(f"s_sub_u32 {s(sREM)}, {s(sREM)}, 1")
    o(f"s_cmp_eq_u32 {s(sSLOT)}, 2")
    o(f"s_cselect_b32 {s(sDELTA)}, -8192, 4096") if False else None
    o(f"s_mov_b32 {s(sDELTA)}, 0x1000")
    o(f"s_cmov_b32 {s(sDELTA)}, 0xffffe000")
    o(f"v_add_u32 {v(AENT)}, 0x100, {v(AENT)}")
    for k in range(4): o(f"v_add_u32 {v(AH+k)}, {s(sDELTA)}, {v(AH+k)}")
    for k in range(4):
        o(f"s_waitcnt lgkmcnt({4-k})")
        m4(HF+8*k, ID, H+4*k, 0); m4(HF+8*k+4, ID, H+4*k+2, 0)
    def MM(ht, ks):
        b = H+4*ks if ks < 4 else HF+4*(ks-4)
        o(f"v_mfma_f32_32x32x16_bf16 {v(D+16*ht,16)}, {a(wfrag(ks//4,ht,ks%4),4)}, {v(b,4)}, {v(D+16*ht,16)}")
    prod = []
    for k in range(4):
        prod += [f"v_mul_f32 {v(HF+8*k+i)}, {v(HF+8*k+i)}, {v(T+8*k+i)}" for i in range(8)]
        prod += [f"v_cvt_pk_bf16_f32 {v(HF+4*k+i)}, {v(HF+8*k+2*i)}, {v(HF+8*k+2*i+1)}" for i in range(4)]
    order = [(0,0),(0,1),(0,2),(0,3),(0,4),(0,5),(1,0),(0,6)]
    for n, (ht, ks) in enumerate(order):
        MM(ht, ks)
        for x in prod[6*n:6*n+6]: o(x)
    MM(1, 1)
    o("s_waitcnt lgkmcnt(0)")
    o(f"v_and_b32 {v(TMP)}, 15, {v(ENT)}")
    MM(0, 7)
    o(f"v_mad_u32_u24 {v(ATU)}, {v(TMP)}, {s(sT1)}, {v(CTU)}")
    for jj in range(4):
        for kk in range(2): o(f"ds_read_b64_tr_b16 {v(HF+16+4*jj+2*kk,2)}, {v(ATR+jj)} offset:{2048*kk}")
    MM(1, 2)
    for k in range(4): o(f"v_add_u32 {v(ATR+k)}, {s(sDELTA)}, {v(ATR+k)}")
    def sig(ht):
        r = D+16*ht
        out  = [f"v_exp_f32 {v(r+i)}, {v(r+i)}" for i in range(16)]
        out += [f"v_add_f32 {v(r+i)}, 1.0, {v(r+i)}" for i in range(16)]
        out += [f"v_rcp_f32 {v(r+i)}, {v(r+i)}" for i in range(16)]
        for i in range(16):
            acc = S0 + (i & 1)
            if ht == 0 and i == 0: out.append(f"v_fma_f32 {v(S0)}, {v(r)}, {v(W2)}, {v(B2)}")
            elif ht == 0 and i == 1: out.append(f"v_mul_f32 {v(S1)}, {v(r+1)}, {v(W2+1)}")
            else: out.append(f"v_fmac_f32 {v(acc)}, {v(r+i)}, {v(W2+16*ht+i)}")
        return out
    s0 = sig(0)
    for n in range(5):
        for x in s0[3*n:3*n+3]: o(x)
        MM(1, 3+n)
    for i in range(4): o(f"ds_read_b128 {v(T+4*i,4)}, {v(ATU)} offset:{16*i}")
    for x in s0[15:32]: o(x)
    for i in range(4, 8): o(f"ds_read_b128 {v(T+4*i,4)}, {v(ATU)} offset:{16*i}")
    for x in s0[32:]: o(x)
    for i in range(4): o(f"ds_read_b128 {v(D+4*i,4)}, {v(ATU)} offset:{256+16*i}")
    for x in sig(1): o(x)
    o(f"v_add_f32 {v(S0)}, {v(S0)}, {v(S1)}")
    o(f"v_mov_b32 {v(S1)}, {v(S0)}")
    o(f"s_add_u32 {s(sSLOT)}, {s(sSLOT)}, 1")
    o(f"s_cmp_eq_u32 {s(sSLOT)}, 3")
    o(f"v_permlane32_swap_b32 {v(S0)}, {v(S1)}")
    o(f"s_cmov_b32 {s(sSLOT)}, 0")
    o(f"v_add_f32 {v(S0)}, {v(S0)}, {v(S1)}")
    o(f"v_mul_f32 {v(S0)}, {v(S0)}, {v(MSK)}")
    o(f"v_cvt_pk_bf16_f32 {v(S0)}, {v(S0)}, {v(S0)}")
    o(f"ds_write_b16 {v(ASW)}, {v(S0)}")
    o(f"ds_read_b128 {v(SOP,4)}, {v(ASR)}")
    o(f"ds_write_b16 {v(ASW)}, {v(ZERO)}")
    for i in range(4, 8): o(f"ds_read_b128 {v(D+4*i,4)}, {v(ATU)} offset:{256+16*i}")
    o(f"s_cmp_lt_u32 {s(sI)}, {s(sCW)}")
    o("s_waitcnt lgkmcnt(5)")
    for jj in range(4):
        o(f"v_mfma_f32_16x16x32_bf16 {v(ACC+4*jj,4)}, {v(HF+16+4*jj,4)}, {v(SOP,4)}, {v(ACC+4*jj,4)}")
    o("s_cbranch_scc1 L_refill")
    o.label("L_next")
    o(f"s_add_u32 {s(sM0)}, {s(sM0)}, {s(sDELTA)}")
    o(f"s_add_u32 {s(sI)}, {s(sI)}, 1")
    o(f"s_sub_u32 {s(sT0)}, {s(sI)}, 3")
    o(f"s_cmp_lt_u32 {s(sT0)}, {s(sCW)}")
    o("s_cbranch_scc1 L_loop")

    o.c("---- pair reduction and store ----")
    o.label("L_epi")
    stamp(5)
    o("s_nop 4")
    o(f"ds_write_b128 {v(AX)}, {v(ACC+8,4)}")
    o(f"ds_write_b128 {v(AX)}, {v(ACC+12,4)} offset:1024")
    o(f"s_lshl_b32 {s(sT0)}, {s(sP)}, 14")
    o(f"s_sub_u32 {s(sT0)}, 0x2000, {s(sT0)}")
    o(f"v_add_u32 {v(AX)}, {s(sT0)}, {v(AX)}")
    o("s_waitcnt lgkmcnt(0)")
    o("s_barrier")
    o(f"ds_read_b128 {v(ACC+8,4)}, {v(AX)}")
    o(f"ds_read_b128 {v(ACC+12,4)}, {v(AX)} offset:1024")
    o("s_waitcnt lgkmcnt(0)")
    for i in range(8): o(f"v_add_f32 {v(ACC+i)}, {v(ACC+i)}, {v(ACC+8+i)}")
    for i in range(4): o(f"v_cvt_pk_bf16_f32 {v(ACC+i)}, {v(ACC+2*i)}, {v(ACC+2*i+1)}")
    o("s_nop 1")
    o(f"v_permlane16_swap_b32 {v(ACC)}, {v(ACC+2)}")
    o(f"v_permlane16_swap_b32 {v(ACC+1)}, {v(ACC+3)}")
    o(f"global_store_dwordx4 {v(AOUT)}, {v(ACC,4)}, s[18:19]")
    if stamps:
        stamp(6)
        o("s_load_dwordx2 s[54:55], s[0:1], 72")
        o("s_waitcnt lgkmcnt(0)")
        for i in range(7): o(f"v_mov_b32 {v(i)}, {s(sST+2*i)}")
        o(f"v_mov_b32 v7, {s(sCW)}")
        o(f"s_lshl3_add_u32 {s(sT0)}, s2, {s(sW)}")
        o(f"s_lshl_b32 {s(sT0)}, {s(sT0)}, 5")
        o(f"v_mov_b32 v8, {s(sT0)}")
        o("s_mov_b64 exec, 1")
        o("global_store_dwordx4 v8, v[0:3], s[54:55]")
        o("global_store_dwordx4 v8, v[4:7], s[54:55] offset:16")
    o.label("L_end")
    o("s_endpgm")

    o.c("---- refill of a freed slot (more than three tiles per wave) ----")
    o.label("L_refill")
    o(f"ds_read_b128 {v(SOP,4)}, {v(ALD)} offset:768")
    o(f"v_add_u32 {v(ALD)}, 0x100, {v(ALD)}")
    o(f"s_mov_b32 m0, {s(sM0)}")
    o("s_waitcnt lgkmcnt(0)")
    for i in range(4):
        o(f"v_and_or_b32 {v(SOP+i)}, {v(SOP+i)}, {s(sK)}, {v(CO if i & 1 else CE)}")
        o(f"buffer_load_dwordx4 {v(SOP+i)}, {s(sSRD,4)}, 0 offen{NT} lds")
        if i < 3: o("s_add_u32 m0, m0, 0x400")
    o("s_branch L_next")

    head = open(f"cdna_kernels/{NAME}.s.ref").read().split("; Override launch")[0]
    return (head + f"; @launch grid=(256,1,1) block=(512,1,1) lds={LDS_BYTES}\n"
        + '.amdgcn_target "amdgcn-amd-amdhsa--gfx950"\n.text\n'
        + f".globl {NAME}_kernel\n.p2align 8\n.type {NAME}_kernel,@function\n{NAME}_kernel:\n"
        + o.text()
        + f'.section .rodata,"a"\n.p2align 6\n.amdhsa_kernel {NAME}_kernel\n'
        + f"  .amdhsa_next_free_vgpr {NV+64}\n  .amdhsa_next_free_sgpr 80\n  .amdhsa_accum_offset {NV}\n"
        + "  .amdhsa_group_segment_fixed_size 0\n  .amdhsa_kernarg_size 80\n  .amdhsa_user_sgpr_count 2\n"
        + "  .amdhsa_user_sgpr_kernarg_segment_ptr 1\n  .amdhsa_system_sgpr_workgroup_id_x 1\n.end_amdhsa_kernel\n")

if __name__ == "__main__":
    kw = dict(x.split("=") for x in sys.argv[2:])
    kw = {k: int(val) for k, val in kw.items()}
    open(sys.argv[1], "w").write(gen(**kw))
```

```python
def diag_tail(o, sST, sW, ia, ib, K, wave, nwg=256):
    o("s_load_dwordx2 s[54:55], s[0:1], 64")
    o("s_waitcnt lgkmcnt(0)")
    o(f"s_cmp_lg_u32 s{sW}, {wave}")
    o("s_cbranch_scc1 L_end")
    o("s_mov_b64 exec, 1")
    o(f"s_and_b32 s72, s{sST+2*ia}, 0x7fffffff")
    o(f"s_and_b32 s73, s{sST+2*ib}, 0x7fffffff")
    o("s_not_b32 s72, s72")
    o("v_mov_b32 v0, 0")
    o("v_mov_b32 v1, s72")
    o("v_mov_b32 v2, s73")
    o("v_mov_b32 v3, 1")
    o("global_atomic_umax v0, v1, s[54:55] sc1")
    o("global_atomic_umax v0, v2, s[54:55] offset:64 sc1")
    o("s_waitcnt vmcnt(0)")
    o("global_atomic_add v4, v0, v3, s[54:55] offset:128 sc0 sc1")
    o("s_waitcnt vmcnt(0)")
    o("v_readfirstlane_b32 s74, v4")
    o("s_nop 3")
    o(f"s_cmp_lg_u32 s74, {nwg-1}")
    o("s_cbranch_scc1 L_end")
    o("global_atomic_umax v5, v0, v0, s[54:55] sc0 sc1")
    o("global_atomic_umax v6, v0, v0, s[54:55] offset:64 sc0 sc1")
    o("s_waitcnt vmcnt(0)")
    o("v_readfirstlane_b32 s72, v5")
    o("v_readfirstlane_b32 s73, v6")
    o("s_nop 3")
    o("s_not_b32 s72, s72")
    o("s_sub_u32 s72, s73, s72")
    o("s_min_u32 s72, s72, 5000")
    o("v_mov_b32 v7, s72")
    o("global_store_dword v0, v7, s[54:55] offset:4")
    o(f"s_mul_i32 s72, s72, {K}")
    o("s_memrealtime s[74:75]")
    o("s_waitcnt lgkmcnt(0)")
    o.label("L_spin")
    o("s_memrealtime s[76:77]")
    o("s_waitcnt lgkmcnt(0)")
    o("s_sub_u32 s73, s76, s74")
    o("s_cmp_lt_u32 s73, s72")
    o("s_cbranch_scc1 L_spin")
```

```python
import sys

NAME = "standalone__sequential_behavior_din__recsys"

HIST = 0
TU   = 98304
WST  = 132096
LIST = 156672
LDS_BYTES = 163840
NLOG2E = 0xBFB8AA3B

class Asm:
    def __init__(self): self.l = []
    def __call__(self, s): self.l.append("    " + s)
    def label(self, s): self.l.append(s + ":")
    def c(self, s): self.l.append("    ; " + s)
    def text(self): return "\n".join(self.l) + "\n"

def v(b, n=1): return f"v{b}" if n == 1 else f"v[{b}:{b+n-1}]"
def a(b, n=1): return f"a{b}" if n == 1 else f"a[{b}:{b+n-1}]"
def s(b, n=1): return f"s{b}" if n == 1 else f"s[{b}:{b+n-1}]"

def gen(nt=True, stamps=False, dg=-1, da=0, K=20, dw=0):
    stamps = stamps or dg >= 0
    o = Asm()
    NT = " nt" if nt else ""
    D, T, HF, H, W2, ACC = 0, 32, 64, 96, 112, 144
    SOP = 160
    ID = 164
    AH, ATR = 166, 170
    AENT, ATU, ASW, MSK, ENT = 174, 175, 176, 177, 178
    CTU, CSW, ASR, B2, ZERO = 179, 180, 181, 182, 183
    S0, S1 = 184, 185
    CE, CO, ALD = 186, 187, 188
    AX, AOUT, TMP = 189, 190, 191
    NV = 192
    sW, sG, sP, sGG = 20, 21, 22, 23
    sM = 24
    sB = 34
    sCW, sI, sREM, sSLOT, sDELTA, sM0, sK, sNL = 40, 41, 42, 43, 44, 45, 46, 47
    sSRD = 48
    sT0, sT1 = 52, 53
    sST = 56
    def stamp(i):
        if stamps: o(f"s_memrealtime {s(sST+2*i,2)}")

    LANE, TID = 1, 0
    M, INFO, E, POS = 2, 7, 12, 17
    X0, X1, X2, X3 = 22, 23, 24, 25
    VO = 26
    RA, RB, RC, RD = 32, 36, 40, 44
    TM, TO = 48, 52
    RB1 = 56
    NID = 60
    AWW, AWR = 62, 63
    LE = 64
    AU0, AU1, ATW, AUW = 76, 77, 78, 79
    F0 = 80
    RW2 = 96

    stamp(0)
    o("s_cmp_ge_u32 s2, 0x100")
    o("s_cbranch_scc1 L_end")
    o("s_load_dwordx16 s[4:19], s[0:1], 0")
    o(f"v_lshrrev_b32 {v(X0)}, 6, v0")
    o(f"v_and_b32 {v(LANE)}, 63, v0")
    o(f"v_readfirstlane_b32 {s(sW)}, {v(X0)}")
    o(f"v_lshlrev_b32 {v(VO+1)}, 4, v0")
    o(f"s_and_b32 {s(sG)}, {s(sW)}, 3")
    o(f"s_lshr_b32 {s(sP)}, {s(sW)}, 2")
    o(f"s_lshl2_add_u32 {s(sGG)}, s2, {s(sG)}")
    o(f"s_mul_i32 {s(sT0)}, {s(sGG)}, 640")
    o(f"v_lshl_add_u32 {v(VO)}, {v(LANE)}, 1, {s(sT0)}")
    o(f"s_mul_i32 {s(sB)}, {s(sG)}, 1280")
    o(f"s_add_u32 {s(sB)}, {s(sB)}, {LIST}")
    o.c("pad entries for the row list")
    for i in range(4): o(f"v_mov_b32 {v(F0+i)}, 0xff80")
    o(f"v_lshl_add_u32 {v(X1)}, {v(LANE)}, 4, {s(sB)}")
    o(f"v_lshl_add_u32 {v(X2)}, {v(LANE)}, 2, {s(sB)}")
    o("s_waitcnt lgkmcnt(0)")
    stamp(1)
    for j in range(5): o(f"global_load_ushort {v(M+j)}, {v(VO)}, s[8:9] offset:{128*j}{NT}")
    o(f"ds_write_b128 {v(X1)}, {v(F0,4)}")
    o(f"ds_write_b32 {v(X2)}, {v(F0)} offset:1024")
    o.c("global offsets of the parameter loads")
    for f in range(1, 4): o(f"v_add_u32 {v(VO+1+f)}, {8192*f}, {v(VO+1)}")
    o(f"v_and_b32 {v(X0)}, 15, {v(LANE)}")
    o(f"v_lshrrev_b32 {v(X3)}, 4, {v(LANE)}")
    o(f"s_lshl_b32 {s(sT0)}, {s(sGG)}, 11")
    o(f"s_lshl_b32 {s(sT1)}, {s(sP)}, 6")
    o(f"s_add_u32 {s(sT0)}, {s(sT0)}, {s(sT1)}")
    o(f"v_lshl_add_u32 {v(AOUT)}, {v(X0)}, 7, {s(sT0)}")
    o(f"v_lshl_add_u32 {v(VO+5)}, {v(X3)}, 4, {v(AOUT)}")
    o(f"v_xor_b32 {v(TMP)}, 64, {v(VO+5)}")
    o("s_waitcnt lgkmcnt(0)")
    o("s_barrier")
    for f, r in enumerate((RA, RB, RC, RD)): o(f"global_load_dwordx4 {v(r,4)}, {v(VO+1+f)}, s[10:11]")
    o(f"global_load_dwordx4 {v(TM,4)}, {v(VO+5)}, s[4:5]")
    o(f"global_load_dwordx4 {v(TO,4)}, {v(TMP)}, s[4:5]")
    o.c("h0 = 32*(q&1) + 16p + 4*(q>>1)")
    o(f"v_and_b32 {v(X1)}, 1, {v(X3)}")
    o(f"v_lshrrev_b32 {v(X2)}, 1, {v(X3)}")
    o(f"v_lshlrev_b32 {v(F0)}, 5, {v(X1)}")
    o(f"v_lshl_add_u32 {v(AOUT)}, {v(X2)}, 4, {v(AOUT)}")
    o(f"v_add_u32 {v(AOUT)}, {v(F0)}, {v(AOUT)}")
    o(f"v_lshl_add_u32 {v(F0)}, {v(X2)}, 2, {v(F0)}")
    o(f"s_lshl_b32 {s(sT1)}, {s(sP)}, 4")
    o(f"v_add_u32 {v(F0)}, {s(sT1)}, {v(F0)}")
    o(f"v_lshlrev_b32 {v(F0+1)}, 1, {v(F0)}")
    o(f"v_lshrrev_b32 {v(F0+2)}, 5, {v(LANE)}")
    o(f"v_lshlrev_b32 {v(F0+3)}, 6, {v(F0+2)}")
    o(f"v_mov_b32 {v(ZERO)}, 0")
    o(f"global_load_dwordx2 {v(RB1,2)}, {v(F0+1)}, s[12:13]")
    o(f"global_load_dwordx2 {v(RB1+2,2)}, {v(F0+1)}, s[12:13] offset:16")
    for i in range(4): o(f"global_load_dwordx4 {v(RW2+4*i,4)}, {v(F0+3)}, s[14:15] offset:{16*i}")
    o(f"global_load_ushort {v(B2)}, {v(ZERO)}, s[16:17]")
    o.c("t / u record addresses for the prologue writers")
    o(f"s_mul_i32 {s(sT0)}, {s(sG)}, {16*528}")
    o(f"s_add_u32 {s(sT0)}, {s(sT0)}, {TU}")
    o(f"v_mul_u32_u24 {v(ATW)}, 528, {v(X0)}")
    o(f"v_add_u32 {v(ATW)}, {s(sT0)}, {v(ATW)}")
    o(f"v_lshl_add_u32 {v(AUW)}, {v(F0)}, 2, {v(ATW)}")
    o(f"s_lshl_b32 {s(sT1)}, {s(sP)}, 7")
    o(f"v_lshl_add_u32 {v(ATW)}, {v(X3)}, 5, {v(ATW)}")
    o(f"v_add_u32 {v(ATW)}, {s(sT1)}, {v(ATW)}")
    o(f"v_lshl_add_u32 {v(CTU)}, {v(F0+2)}, 7, {s(sT0)}")
    o.c("row info: row*128 | sample")
    o(f"s_movk_i32 {s(sK)}, 3277")
    for j in range(5):
        o(f"v_add_u32 {v(X1)}, {64*j}, {v(LANE)}")
        o(f"v_mul_u32_u24 {v(X2)}, {s(sK)}, {v(X1)}")
        o(f"v_lshrrev_b32 {v(X2)}, 16, {v(X2)}")
        o(f"v_lshl_or_b32 {v(INFO+j)}, {v(X1)}, 7, {v(X2)}")
    o.c("hist descriptor for this group")
    o(f"s_mul_i32 {s(sT0)}, {s(sGG)}, 40960")
    o(f"s_add_u32 {s(sSRD)}, s6, {s(sT0)}")
    o(f"s_addc_u32 {s(sSRD+1)}, s7, 0")
    o(f"s_mov_b32 {s(sSRD+2)}, 40960")
    o(f"s_mov_b32 {s(sSRD+3)}, 0x20000")
    o(f"s_mul_i32 {s(sM0)}, {s(sW)}, 12288")
    o(f"s_mov_b32 {s(sK)}, 0xff80")
    o(f"s_mov_b32 {s(sNL)}, {hex(NLOG2E)}")
    o.c("DMA lane constants")
    o(f"v_lshrrev_b32 {v(X1)}, 3, {v(LANE)}")
    o(f"v_and_b32 {v(X2)}, 6, {v(X1)}")
    o(f"v_and_b32 {v(CE)}, 7, {v(LANE)}")
    o(f"v_xor_b32 {v(CE)}, {v(CE)}, {v(X2)}")
    o(f"v_lshlrev_b32 {v(CE)}, 4, {v(CE)}")
    o(f"v_xor_b32 {v(CO)}, 16, {v(CE)}")
    o(f"s_add_u32 {s(sT1)}, {s(sT1)}, {s(sB)}")
    o(f"v_lshl_add_u32 {v(ALD)}, {v(X1)}, 4, {s(sT1)}")
    o.c("per-row entry address: ((n&7)*4 + (n>>3))*4")
    o(f"v_and_b32 {v(X1)}, 3, {v(X1)}")
    o(f"v_and_b32 {v(X2)}, 7, {v(LANE)}")
    o(f"v_lshl_add_u32 {v(X2)}, {v(X2)}, 2, {v(X1)}")
    o(f"v_lshl_add_u32 {v(AENT)}, {v(X2)}, 2, {s(sT1)}")
    o.c("row-major fragment addresses")
    o(f"v_and_b32 {v(X1)}, 1, {v(X1)}")
    o(f"v_and_or_b32 {v(X1)}, {v(LANE)}, 6, {v(X1)}")
    o(f"v_lshlrev_b32 {v(X2)}, 2, {v(F0+2)}")
    o(f"v_xor_b32 {v(X1)}, {v(X1)}, {v(X2)}")
    o(f"v_and_b32 {v(X2)}, 31, {v(LANE)}")
    o(f"v_lshl_add_u32 {v(X2)}, {v(X2)}, 7, {s(sM0)}")
    o(f"v_lshl_add_u32 {v(AH)}, {v(X1)}, 4, {v(X2)}")
    for k in range(1, 4): o(f"v_xor_b32 {v(AH+k)}, {16*k}, {v(AH)}")
    o.c("transposed fragment addresses: row' = lane>>2")
    o(f"v_lshrrev_b32 {v(X1)}, 2, {v(LANE)}")
    o(f"v_and_or_b32 {v(X2)}, {v(X1)}, 6, {v(F0+2)}")
    o(f"v_bfe_u32 {v(F0+4)}, {v(LANE)}, 1, 1")
    o(f"s_lshl_b32 {s(sT0)}, {s(sP)}, 2")
    o(f"v_or_b32 {v(F0+4)}, {s(sT0)}, {v(F0+4)}")
    o(f"v_xor_b32 {v(X2)}, {v(X2)}, {v(F0+4)}")
    o(f"v_lshl_add_u32 {v(X1)}, {v(X1)}, 7, {s(sM0)}")
    o(f"v_lshl_add_u32 {v(X1)}, {v(X2)}, 4, {v(X1)}")
    o(f"v_and_b32 {v(X2)}, 1, {v(LANE)}")
    o(f"v_lshl_add_u32 {v(ATR)}, {v(X2)}, 3, {v(X1)}")
    for k in range(1, 4): o(f"v_xor_b32 {v(ATR+k)}, {32*k}, {v(ATR)}")
    o.c("score matrix addresses")
    o(f"s_lshl_b32 {s(sT0)}, {s(sW)}, 10")
    o(f"s_add_u32 {s(sT0)}, {s(sT0)}, {WST}")
    o(f"v_lshl_add_u32 {v(ASR)}, {v(LANE)}, 4, {s(sT0)}")
    o(f"v_bfe_u32 {v(X1)}, {v(LANE)}, 2, 2")
    o(f"v_lshl_add_u32 {v(CSW)}, {v(X1)}, 8, {s(sT0)}")
    o(f"v_bfe_u32 {v(X2)}, {v(LANE)}, 4, 1")
    o(f"v_lshl_add_u32 {v(CSW)}, {v(X2)}, 3, {v(CSW)}")
    o(f"v_and_b32 {v(F0+4)}, 3, {v(LANE)}")
    o(f"v_lshl_add_u32 {v(CSW)}, {v(F0+4)}, 1, {v(CSW)}")
    o.c("exchange buffer address")
    o(f"s_lshl_b32 {s(sT0)}, {s(sW)}, 11")
    o(f"s_add_u32 {s(sT0)}, {s(sT0)}, {WST+8192}")
    o(f"v_lshl_add_u32 {v(AX)}, {v(LANE)}, 4, {s(sT0)}")
    o.c("staging read address (32*half + r)*64 + sub*32 + c*8")
    o(f"v_lshl_add_u32 {v(AWR)}, {v(F0+2)}, 5, {v(X1)}")
    o(f"v_lshlrev_b32 {v(AWR)}, 6, {v(AWR)}")
    o(f"v_lshl_add_u32 {v(AWR)}, {v(X2)}, 5, {v(AWR)}")
    o(f"v_lshl_add_u32 {v(AWR)}, {v(F0+4)}, 3, {v(AWR)}")
    o(f"v_add_u32 {v(AWR)}, {WST}, {v(AWR)}")
    o.c("bias-GEMM read addresses (8q + r)*64 + c*8 + 4096p + 2048ks")
    o(f"v_lshl_add_u32 {v(AU0)}, {v(X3)}, 3, {v(X1)}")
    o(f"v_lshlrev_b32 {v(AU0)}, 6, {v(AU0)}")
    o(f"v_lshl_add_u32 {v(AU0)}, {v(F0+4)}, 3, {v(AU0)}")
    o(f"s_mul_i32 {s(sT0)}, {s(sP)}, 6144")
    o(f"v_add_u32 {v(AU0)}, {s(sT0)}, {v(AU0)}")
    o(f"v_xor_b32 {v(AU1)}, 0x800, {v(AU0)}")
    o(f"v_add_u32 {v(AU0)}, {WST+16384}, {v(AU0)}")
    o(f"v_add_u32 {v(AU1)}, {WST+16384}, {v(AU1)}")
    o.c("staging write address")
    o(f"v_lshrrev_b32 {v(AWW)}, 3, v0")
    o(f"v_lshlrev_b32 {v(AWW)}, 6, {v(AWW)}")
    o(f"v_bfe_u32 {v(X1)}, {v(LANE)}, 1, 1")
    o(f"v_lshl_add_u32 {v(AWW)}, {v(X1)}, 12, {v(AWW)}")
    o(f"v_and_b32 {v(X1)}, 1, {v(LANE)}")
    o(f"v_lshl_add_u32 {v(AWW)}, {v(X1)}, 5, {v(AWW)}")
    o(f"v_bfe_u32 {v(X1)}, {v(LANE)}, 2, 1")
    o(f"v_lshl_add_u32 {v(AWW)}, {v(X1)}, 3, {v(AWW)}")
    o(f"v_add_u32 {v(AWW)}, {WST}, {v(AWW)}")
    o.c("4x4 identity operands")
    o(f"v_lshlrev_b32 {v(X1)}, 4, {v(F0+4)}")
    o(f"v_mov_b32 {v(ID)}, 0x3f80")
    o(f"v_mov_b32 {v(ID+1)}, 0")
    o(f"v_mov_b32 {v(NID)}, 0xbf80")
    o(f"v_mov_b32 {v(NID+1)}, 0")
    o(f"v_lshlrev_b64 {v(ID,2)}, {v(X1)}, {v(ID,2)}")
    o(f"v_lshlrev_b64 {v(NID,2)}, {v(X1)}, {v(NID,2)}")
    for i in range(16): o(f"v_mov_b32 {v(ACC+i)}, 0")

    o.c("---- compaction of the unmasked rows ----")
    o("s_waitcnt vmcnt(13)")
    stamp(2)
    for j in range(5): o(f"v_cmp_ne_u32_e64 {s(sM+2*j,2)}, 0, {v(M+j)}")
    for j in range(5): o(f"v_lshl_or_b32 {v(E+j)}, {v(M+j)}, 16, {v(INFO+j)}")
    for j in range(5):
        o(f"s_bcnt1_i32_b64 {s(sT0)}, {s(sM+2*j,2)}")
        o(f"v_mbcnt_lo_u32_b32 {v(POS+j)}, {s(sM+2*j)}, 0")
        o(f"s_lshl2_add_u32 {s(sB+j+1)}, {s(sT0)}, {s(sB+j)}")
        o(f"v_mbcnt_hi_u32_b32 {v(POS+j)}, {s(sM+2*j+1)}, {v(POS+j)}")
        o(f"v_lshl_add_u32 {v(POS+j)}, {v(POS+j)}, 2, {s(sB+j)}")
    for j in range(5):
        o(f"s_mov_b64 exec, {s(sM+2*j,2)}")
        o(f"ds_write_b32 {v(POS+j)}, {v(E+j)}")
    o("s_mov_b64 exec, -1")
    for i in range(3): o(f"ds_read_b128 {v(LE+4*i,4)}, {v(ALD)} offset:{256*i}")
    o(f"ds_read_b32 {v(ENT)}, {v(AENT)}")
    o(f"s_sub_u32 {s(sT0)}, {s(sB+5)}, {s(sB)}")
    o(f"s_add_u32 {s(sT0)}, {s(sT0)}, 124")
    o(f"s_lshr_b32 {s(sT0)}, {s(sT0)}, 7")
    o(f"s_sub_u32 {s(sT0)}, {s(sT0)}, {s(sP)}")
    o(f"s_add_u32 {s(sT0)}, {s(sT0)}, 1")
    o(f"s_lshr_b32 {s(sCW)}, {s(sT0)}, 1")
    o(f"s_mov_b32 m0, {s(sM0)}")
    for i in range(12):
        if i % 4 == 0: o(f"s_waitcnt lgkmcnt({3 - i//4})")
        o(f"v_and_or_b32 {v(LE+i)}, {v(LE+i)}, {s(sK)}, {v(CO if i & 1 else CE)}")
        o(f"buffer_load_dwordx4 {v(LE+i)}, {s(sSRD,4)}, 0 offen{NT} lds")
        if i < 11: o("s_add_u32 m0, m0, 0x400")
    stamp(3)

    o.c("---- weight preparation ----")
    def m4(d, aa, b, c): o(f"v_mfma_f32_4x4x4_16b_bf16 {v(d,4)}, {v(aa,2)}, {v(b,2)}, {c}")
    o("s_waitcnt vmcnt(12)")
    m4(F0, ID, RA, 0); m4(F0+4, ID, RA+2, 0); m4(F0+8, ID, RB, 0); m4(F0+12, ID, RB+2, 0)
    m4(F0, ID, RC, v(F0,4)); m4(F0+4, ID, RC+2, v(F0+4,4)); m4(F0+8, NID, RC, v(F0+8,4)); m4(F0+12, NID, RC+2, v(F0+12,4))
    m4(D+0, ID, TM, 0); m4(D+4, ID, TM+2, 0)
    m4(D+8, ID, RB1, 0); m4(D+12, ID, RB1+2, 0)
    o(f"ds_write_b64 {v(AWW)}, {v(RD,2)} offset:8192")
    o(f"ds_write_b64 {v(AWW)}, {v(RD+2,2)} offset:{8192+16}")
    for i in range(8): o(f"v_mul_f32 {v(F0+i)}, {s(sNL)}, {v(F0+i)}")
    for i in range(8): o(f"v_mul_f32 {v(D+i)}, {s(sNL)}, {v(D+i)}")
    for i in range(8): o(f"v_cvt_pk_bf16_f32 {v(F0+i)}, {v(F0+2*i)}, {v(F0+2*i+1)}")
    o(f"ds_write_b64 {v(AWW)}, {v(F0,2)}")
    o(f"ds_write_b64 {v(AWW)}, {v(F0+2,2)} offset:16")
    o(f"ds_write_b64 {v(AWW)}, {v(F0+4,2)} offset:16384")
    o(f"ds_write_b64 {v(AWW)}, {v(F0+6,2)} offset:{16384+16}")
    o(f"ds_write_b128 {v(ATW)}, {v(D,4)}")
    o(f"ds_write_b128 {v(ATW)}, {v(D+4,4)} offset:16")
    for i in range(8): m4(W2+4*i, ID, RW2+2*i, 0)
    o(f"v_lshlrev_b32 {v(B2)}, 16, {v(B2)}")
    o(f"v_mul_f32 {v(B2)}, 0.5, {v(B2)}")
    o("s_waitcnt lgkmcnt(0)")
    o("s_barrier")
    for sub in range(2):
        for x, au in enumerate((AU0, AU1)):
            for kk in range(2):
                o(f"ds_read_b64_tr_b16 {v(F0+8*sub+4*x+2*kk,2)}, {v(au)} offset:{32*sub+256*kk}")
    def wfrag(mat, ht, ks): return 32*ht + 16*mat + 4*ks
    wreads = [(mat, ht, ks, kk) for ht in range(2) for mat in range(2) for ks in range(4) for kk in range(2)]
    def wread(x):
        mat, ht, ks, kk = x
        o(f"ds_read_b64_tr_b16 {a(wfrag(mat,ht,ks)+2*kk,2)}, {v(AWR)} offset:{8192*mat+4096*ht+512*ks+256*kk}")
    for x in wreads[:6]: wread(x)
    o("s_waitcnt lgkmcnt(6)")
    for x, tb in enumerate((TM, TO)):
        for sub in range(2):
            o(f"v_mfma_f32_16x16x32_bf16 {v(D+8+4*sub,4)}, {v(F0+8*sub+4*x,4)}, {v(tb,4)}, {v(D+8+4*sub,4)}")
    for x in wreads[6:14]: wread(x)
    for i in range(8): o(f"v_mul_f32 {v(D+8+i)}, {s(sNL)}, {v(D+8+i)}")
    o(f"ds_write_b128 {v(AUW)}, {v(D+8,4)} offset:256")
    o(f"ds_write_b128 {v(AUW)}, {v(D+12,4)} offset:{256+32}")
    for x in wreads[14:]: wread(x)
    o(f"v_and_b32 {v(TMP)}, 15, {v(ENT)}")
    o(f"s_movk_i32 {s(sT1)}, 528")
    o(f"v_mad_u32_u24 {v(ATU)}, {v(TMP)}, {s(sT1)}, {v(CTU)}")
    o(f"s_max_u32 {s(sREM)}, {s(sCW)}, 3")
    o(f"s_mov_b32 {s(sI)}, 3")
    o(f"s_mov_b32 {s(sSLOT)}, 0")
    o("s_waitcnt lgkmcnt(0)")
    o("s_barrier")
    o(f"ds_write_b128 {v(ASR)}, {v(ACC,4)}")
    for i in range(8): o(f"ds_read_b128 {v(T+4*i,4)}, {v(ATU)} offset:{16*i}")
    for i in range(8): o(f"ds_read_b128 {v(D+4*i,4)}, {v(ATU)} offset:{256+16*i}")
    stamp(4)
    o(f"s_cmp_eq_u32 {s(sCW)}, 0")
    o("s_cbranch_scc1 L_epi")

    o.c("---- tile loop ----")
    o.label("L_loop")
    o(f"s_cmp_ge_u32 {s(sREM)}, 3")
    o("s_cbranch_scc1 L_w8")
    o(f"s_cmp_eq_u32 {s(sREM)}, 2")
    o("s_cbranch_scc1 L_w4")
    o("s_waitcnt vmcnt(0)")
    o.label("L_w4")
    o("s_waitcnt vmcnt(4)")
    o.label("L_w8")
    o("s_waitcnt vmcnt(8)")
    for k in range(4): o(f"ds_read_b128 {v(H+4*k,4)}, {v(AH+k)}")
    o(f"v_and_b32 {v(TMP)}, 15, {v(ENT)}")
    o(f"v_and_b32 {v(MSK)}, 0xffff0000, {v(ENT)}")
    o(f"v_lshl_add_u32 {v(ASW)}, {v(TMP)}, 4, {v(CSW)}")
    o(f"ds_read_b32 {v(ENT)}, {v(AENT)} offset:256")
    o(f"s_sub_u32 {s(sREM)}, {s(sREM)}, 1")
    o(f"s_cmp_eq_u32 {s(sSLOT)}, 2")
    o(f"s_cselect_b32 {s(sDELTA)}, -8192, 4096") if False else None
    o(f"s_mov_b32 {s(sDELTA)}, 0x1000")
    o(f"s_cmov_b32 {s(sDELTA)}, 0xffffe000")
    o(f"v_add_u32 {v(AENT)}, 0x100, {v(AENT)}")
    for k in range(4): o(f"v_add_u32 {v(AH+k)}, {s(sDELTA)}, {v(AH+k)}")
    for k in range(4):
        o(f"s_waitcnt lgkmcnt({4-k})")
        m4(HF+8*k, ID, H+4*k, 0); m4(HF+8*k+4, ID, H+4*k+2, 0)
    def MM(ht, ks):
        b = H+4*ks if ks < 4 else HF+4*(ks-4)
        o(f"v_mfma_f32_32x32x16_bf16 {v(D+16*ht,16)}, {a(wfrag(ks//4,ht,ks%4),4)}, {v(b,4)}, {v(D+16*ht,16)}")
    prod = []
    for k in range(4):
        prod += [f"v_mul_f32 {v(HF+8*k+i)}, {v(HF+8*k+i)}, {v(T+8*k+i)}" for i in range(8)]
        prod += [f"v_cvt_pk_bf16_f32 {v(HF+4*k+i)}, {v(HF+8*k+2*i)}, {v(HF+8*k+2*i+1)}" for i in range(4)]
    order = [(0,0),(0,1),(0,2),(0,3),(0,4),(0,5),(1,0),(0,6)]
    for n, (ht, ks) in enumerate(order):
        MM(ht, ks)
        for x in prod[6*n:6*n+6]: o(x)
    MM(1, 1)
    o("s_waitcnt lgkmcnt(0)")
    o(f"v_and_b32 {v(TMP)}, 15, {v(ENT)}")
    MM(0, 7)
    o(f"v_mad_u32_u24 {v(ATU)}, {v(TMP)}, {s(sT1)}, {v(CTU)}")
    for jj in range(4):
        for kk in range(2): o(f"ds_read_b64_tr_b16 {v(HF+16+4*jj+2*kk,2)}, {v(ATR+jj)} offset:{2048*kk}")
    MM(1, 2)
    for k in range(4): o(f"v_add_u32 {v(ATR+k)}, {s(sDELTA)}, {v(ATR+k)}")
    def sig(ht):
        r = D+16*ht
        out  = [f"v_exp_f32 {v(r+i)}, {v(r+i)}" for i in range(16)]
        out += [f"v_add_f32 {v(r+i)}, 1.0, {v(r+i)}" for i in range(16)]
        out += [f"v_rcp_f32 {v(r+i)}, {v(r+i)}" for i in range(16)]
        for i in range(16):
            acc = S0 + (i & 1)
            if ht == 0 and i == 0: out.append(f"v_fma_f32 {v(S0)}, {v(r)}, {v(W2)}, {v(B2)}")
            elif ht == 0 and i == 1: out.append(f"v_mul_f32 {v(S1)}, {v(r+1)}, {v(W2+1)}")
            else: out.append(f"v_fmac_f32 {v(acc)}, {v(r+i)}, {v(W2+16*ht+i)}")
        return out
    s0 = sig(0)
    for n in range(5):
        for x in s0[3*n:3*n+3]: o(x)
        MM(1, 3+n)
    for i in range(4): o(f"ds_read_b128 {v(T+4*i,4)}, {v(ATU)} offset:{16*i}")
    for x in s0[15:32]: o(x)
    for i in range(4, 8): o(f"ds_read_b128 {v(T+4*i,4)}, {v(ATU)} offset:{16*i}")
    for x in s0[32:]: o(x)
    for i in range(4): o(f"ds_read_b128 {v(D+4*i,4)}, {v(ATU)} offset:{256+16*i}")
    for x in sig(1): o(x)
    o(f"v_add_f32 {v(S0)}, {v(S0)}, {v(S1)}")
    o(f"v_mov_b32 {v(S1)}, {v(S0)}")
    o(f"s_add_u32 {s(sSLOT)}, {s(sSLOT)}, 1")
    o(f"s_cmp_eq_u32 {s(sSLOT)}, 3")
    o(f"v_permlane32_swap_b32 {v(S0)}, {v(S1)}")
    o(f"s_cmov_b32 {s(sSLOT)}, 0")
    o(f"v_add_f32 {v(S0)}, {v(S0)}, {v(S1)}")
    o(f"v_mul_f32 {v(S0)}, {v(S0)}, {v(MSK)}")
    o(f"v_cvt_pk_bf16_f32 {v(S0)}, {v(S0)}, {v(S0)}")
    o(f"ds_write_b16 {v(ASW)}, {v(S0)}")
    o(f"ds_read_b128 {v(SOP,4)}, {v(ASR)}")
    o(f"ds_write_b16 {v(ASW)}, {v(ZERO)}")
    for i in range(4, 8): o(f"ds_read_b128 {v(D+4*i,4)}, {v(ATU)} offset:{256+16*i}")
    o(f"s_cmp_lt_u32 {s(sI)}, {s(sCW)}")
    o("s_waitcnt lgkmcnt(5)")
    for jj in range(4):
        o(f"v_mfma_f32_16x16x32_bf16 {v(ACC+4*jj,4)}, {v(HF+16+4*jj,4)}, {v(SOP,4)}, {v(ACC+4*jj,4)}")
    o("s_cbranch_scc1 L_refill")
    o.label("L_next")
    o(f"s_add_u32 {s(sM0)}, {s(sM0)}, {s(sDELTA)}")
    o(f"s_add_u32 {s(sI)}, {s(sI)}, 1")
    o(f"s_sub_u32 {s(sT0)}, {s(sI)}, 3")
    o(f"s_cmp_lt_u32 {s(sT0)}, {s(sCW)}")
    o("s_cbranch_scc1 L_loop")

    o.c("---- pair reduction and store ----")
    o.label("L_epi")
    stamp(5)
    o("s_nop 4")
    o(f"ds_write_b128 {v(AX)}, {v(ACC+8,4)}")
    o(f"ds_write_b128 {v(AX)}, {v(ACC+12,4)} offset:1024")
    o(f"s_lshl_b32 {s(sT0)}, {s(sP)}, 14")
    o(f"s_sub_u32 {s(sT0)}, 0x2000, {s(sT0)}")
    o(f"v_add_u32 {v(AX)}, {s(sT0)}, {v(AX)}")
    o("s_waitcnt lgkmcnt(0)")
    o("s_barrier")
    o(f"ds_read_b128 {v(ACC+8,4)}, {v(AX)}")
    o(f"ds_read_b128 {v(ACC+12,4)}, {v(AX)} offset:1024")
    o("s_waitcnt lgkmcnt(0)")
    for i in range(8): o(f"v_add_f32 {v(ACC+i)}, {v(ACC+i)}, {v(ACC+8+i)}")
    for i in range(4): o(f"v_cvt_pk_bf16_f32 {v(ACC+i)}, {v(ACC+2*i)}, {v(ACC+2*i+1)}")
    o("s_nop 1")
    o(f"v_permlane16_swap_b32 {v(ACC)}, {v(ACC+2)}")
    o(f"v_permlane16_swap_b32 {v(ACC+1)}, {v(ACC+3)}")
    o(f"global_store_dwordx4 {v(AOUT)}, {v(ACC,4)}, s[18:19]")
    if dg >= 0:
        stamp(6)
        from diag import diag_tail
        diag_tail(o, sST, sW, da, dg, K, dw)
    elif stamps:
        stamp(6)
        o("s_load_dwordx2 s[54:55], s[0:1], 72")
        o("s_waitcnt lgkmcnt(0)")
        for i in range(7): o(f"v_mov_b32 {v(i)}, {s(sST+2*i)}")
        o(f"v_mov_b32 v7, {s(sCW)}")
        o(f"s_lshl3_add_u32 {s(sT0)}, s2, {s(sW)}")
        o(f"s_lshl_b32 {s(sT0)}, {s(sT0)}, 5")
        o(f"v_mov_b32 v8, {s(sT0)}")
        o("s_mov_b64 exec, 1")
        o("global_store_dwordx4 v8, v[0:3], s[54:55]")
        o("global_store_dwordx4 v8, v[4:7], s[54:55] offset:16")
    o.label("L_end")
    o("s_endpgm")

    o.c("---- refill of a freed slot (more than three tiles per wave) ----")
    o.label("L_refill")
    o(f"ds_read_b128 {v(SOP,4)}, {v(ALD)} offset:768")
    o(f"v_add_u32 {v(ALD)}, 0x100, {v(ALD)}")
    o(f"s_mov_b32 m0, {s(sM0)}")
    o("s_waitcnt lgkmcnt(0)")
    for i in range(4):
        o(f"v_and_or_b32 {v(SOP+i)}, {v(SOP+i)}, {s(sK)}, {v(CO if i & 1 else CE)}")
        o(f"buffer_load_dwordx4 {v(SOP+i)}, {s(sSRD,4)}, 0 offen{NT} lds")
        if i < 3: o("s_add_u32 m0, m0, 0x400")
    o("s_branch L_next")

    head = open(f"cdna_kernels/{NAME}.s.ref").read().split("; Override launch")[0]
    return (head + f"; @launch grid=(256,1,1) block=(512,1,1) lds={LDS_BYTES}\n"
        + '.amdgcn_target "amdgcn-amd-amdhsa--gfx950"\n.text\n'
        + f".globl {NAME}_kernel\n.p2align 8\n.type {NAME}_kernel,@function\n{NAME}_kernel:\n"
        + o.text()
        + f'.section .rodata,"a"\n.p2align 6\n.amdhsa_kernel {NAME}_kernel\n'
        + f"  .amdhsa_next_free_vgpr {NV+64}\n  .amdhsa_next_free_sgpr 80\n  .amdhsa_accum_offset {NV}\n"
        + "  .amdhsa_group_segment_fixed_size 0\n  .amdhsa_kernarg_size 80\n  .amdhsa_user_sgpr_count 2\n"
        + "  .amdhsa_user_sgpr_kernarg_segment_ptr 1\n  .amdhsa_system_sgpr_workgroup_id_x 1\n.end_amdhsa_kernel\n")

if __name__ == "__main__":
    kw = dict(x.split("=") for x in sys.argv[2:])
    kw = {k: int(val) for k, val in kw.items()}
    open(sys.argv[1], "w").write(gen(**kw))
```

```python
def diag_tail(o, sST, sW, ia, ib, K, wave, nwg=256, rel=0, ic=0):
    o("s_load_dwordx2 s[54:55], s[0:1], 64")
    o("s_waitcnt lgkmcnt(0)")
    o(f"s_cmp_lg_u32 s{sW}, {wave}")
    o("s_cbranch_scc1 L_end")
    if ic:
        o("s_mov_b32 s78, 0")
        o.label("L_icl")
        o(f"s_memrealtime s[{sST+2*ia}:{sST+2*ia+1}]")
        o("s_waitcnt lgkmcnt(0)")
        o(".p2align 3")
        for i in range(512): o(f"v_fma_f32 v{8+i%8}, v20, v21, v22")
        o(f"s_memrealtime s[{sST+2*ib}:{sST+2*ib+1}]")
        o("s_waitcnt lgkmcnt(0)")
        o("s_add_u32 s78, s78, 1")
        o(f"s_cmp_lt_u32 s78, {ic}")
        o("s_cbranch_scc1 L_icl")
    o("s_mov_b64 exec, 1")
    if rel:
        o("s_mov_b32 s72, 0")
        o(f"s_sub_u32 s73, s{sST+2*ib}, s{sST+2*ia}")
    else:
        o(f"s_and_b32 s72, s{sST+2*ia}, 0x7fffffff")
        o(f"s_and_b32 s73, s{sST+2*ib}, 0x7fffffff")
    o("s_not_b32 s72, s72")
    o("v_mov_b32 v0, 0")
    o("v_mov_b32 v1, s72")
    o("v_mov_b32 v2, s73")
    o("v_mov_b32 v3, 1")
    o("global_atomic_umax v0, v1, s[54:55] sc1")
    o("global_atomic_umax v0, v2, s[54:55] offset:64 sc1")
    o("s_waitcnt vmcnt(0)")
    o("global_atomic_add v4, v0, v3, s[54:55] offset:128 sc0 sc1")
    o("s_waitcnt vmcnt(0)")
    o("v_readfirstlane_b32 s74, v4")
    o("s_nop 3")
    o(f"s_cmp_lg_u32 s74, {nwg-1}")
    o("s_cbranch_scc1 L_end")
    o("global_atomic_umax v5, v0, v0, s[54:55] sc0 sc1")
    o("global_atomic_umax v6, v0, v0, s[54:55] offset:64 sc0 sc1")
    o("s_waitcnt vmcnt(0)")
    o("v_readfirstlane_b32 s72, v5")
    o("v_readfirstlane_b32 s73, v6")
    o("s_nop 3")
    o("s_not_b32 s72, s72")
    o("s_sub_u32 s72, s73, s72")
    o("s_min_u32 s72, s72, 5000")
    o("v_mov_b32 v7, s72")
    o("global_store_dword v0, v7, s[54:55] offset:4")
    o(f"s_mul_i32 s72, s72, {K}")
    o("s_memrealtime s[74:75]")
    o("s_waitcnt lgkmcnt(0)")
    o.label("L_spin")
    o("s_memrealtime s[76:77]")
    o("s_waitcnt lgkmcnt(0)")
    o("s_sub_u32 s73, s76, s74")
    o("s_cmp_lt_u32 s73, s72")
    o("s_cbranch_scc1 L_spin")
```

```python
import sys

NAME = "standalone__sequential_behavior_din__recsys"

HIST = 0
TU   = 98304
WST  = 132096
LIST = 156672
LDS_BYTES = 163840
NLOG2E = 0xBFB8AA3B

class Asm:
    def __init__(self): self.l = []
    def __call__(self, s): self.l.append("    " + s)
    def label(self, s): self.l.append(s + ":")
    def c(self, s): self.l.append("    ; " + s)
    def text(self): return "\n".join(self.l) + "\n"

def v(b, n=1): return f"v{b}" if n == 1 else f"v[{b}:{b+n-1}]"
def a(b, n=1): return f"a{b}" if n == 1 else f"a[{b}:{b+n-1}]"
def s(b, n=1): return f"s{b}" if n == 1 else f"s[{b}:{b+n-1}]"

def gen(nt=True, stamps=False, dg=-1, da=0, K=20, dw=0, bench=0, solo=0, rel=0, ic=0):
    stamps = stamps or dg >= 0
    o = Asm()
    NT = " nt" if nt else ""
    D, T, HF, H, W2, ACC = 0, 32, 64, 96, 112, 144
    SOP = 160
    ID = 164
    AH, ATR = 166, 170
    AENT, ATU, ASW, MSK, ENT = 174, 175, 176, 177, 178
    CTU, CSW, ASR, B2, ZERO = 179, 180, 181, 182, 183
    S0, S1 = 184, 185
    CE, CO, ALD = 186, 187, 188
    AX, AOUT, TMP = 189, 190, 191
    NV = 192
    sW, sG, sP, sGG = 20, 21, 22, 23
    sM = 24
    sB = 34
    sCW, sI, sREM, sSLOT, sDELTA, sM0, sK, sNL = 40, 41, 42, 43, 44, 45, 46, 47
    sSRD = 48
    sT0, sT1 = 52, 53
    sST = 56
    def stamp(i):
        if bench: o(f"s_memtime {s(sST+2*i,2)}")
        elif stamps: o(f"s_memrealtime {s(sST+2*i,2)}")

    LANE, TID = 1, 0
    M, INFO, E, POS = 2, 7, 12, 17
    X0, X1, X2, X3 = 22, 23, 24, 25
    VO = 26
    RA, RB, RC, RD = 32, 36, 40, 44
    TM, TO = 48, 52
    RB1 = 56
    NID = 60
    AWW, AWR = 62, 63
    LE = 64
    AU0, AU1, ATW, AUW = 76, 77, 78, 79
    F0 = 80
    RW2 = 96

    stamp(0)
    o("s_cmp_ge_u32 s2, 0x100")
    o("s_cbranch_scc1 L_end")
    o("s_load_dwordx16 s[4:19], s[0:1], 0")
    o(f"v_lshrrev_b32 {v(X0)}, 6, v0")
    o(f"v_and_b32 {v(LANE)}, 63, v0")
    o(f"v_readfirstlane_b32 {s(sW)}, {v(X0)}")
    o(f"v_lshlrev_b32 {v(VO+1)}, 4, v0")
    o(f"s_and_b32 {s(sG)}, {s(sW)}, 3")
    o(f"s_lshr_b32 {s(sP)}, {s(sW)}, 2")
    o(f"s_lshl2_add_u32 {s(sGG)}, s2, {s(sG)}")
    o(f"s_mul_i32 {s(sT0)}, {s(sGG)}, 640")
    o(f"v_lshl_add_u32 {v(VO)}, {v(LANE)}, 1, {s(sT0)}")
    o(f"s_mul_i32 {s(sB)}, {s(sG)}, 1280")
    o(f"s_add_u32 {s(sB)}, {s(sB)}, {LIST}")
    o.c("pad entries for the row list")
    for i in range(4): o(f"v_mov_b32 {v(F0+i)}, 0xff80")
    o(f"v_lshl_add_u32 {v(X1)}, {v(LANE)}, 4, {s(sB)}")
    o(f"v_lshl_add_u32 {v(X2)}, {v(LANE)}, 2, {s(sB)}")
    o("s_waitcnt lgkmcnt(0)")
    stamp(1)
    for j in range(5): o(f"global_load_ushort {v(M+j)}, {v(VO)}, s[8:9] offset:{128*j}{NT}")
    o(f"ds_write_b128 {v(X1)}, {v(F0,4)}")
    o(f"ds_write_b32 {v(X2)}, {v(F0)} offset:1024")
    o.c("global offsets of the parameter loads")
    for f in range(1, 4): o(f"v_add_u32 {v(VO+1+f)}, {8192*f}, {v(VO+1)}")
    o(f"v_and_b32 {v(X0)}, 15, {v(LANE)}")
    o(f"v_lshrrev_b32 {v(X3)}, 4, {v(LANE)}")
    o(f"s_lshl_b32 {s(sT0)}, {s(sGG)}, 11")
    o(f"s_lshl_b32 {s(sT1)}, {s(sP)}, 6")
    o(f"s_add_u32 {s(sT0)}, {s(sT0)}, {s(sT1)}")
    o(f"v_lshl_add_u32 {v(AOUT)}, {v(X0)}, 7, {s(sT0)}")
    o(f"v_lshl_add_u32 {v(VO+5)}, {v(X3)}, 4, {v(AOUT)}")
    o(f"v_xor_b32 {v(TMP)}, 64, {v(VO+5)}")
    o("s_waitcnt lgkmcnt(0)")
    o("s_barrier")
    for f, r in enumerate((RA, RB, RC, RD)): o(f"global_load_dwordx4 {v(r,4)}, {v(VO+1+f)}, s[10:11]")
    o(f"global_load_dwordx4 {v(TM,4)}, {v(VO+5)}, s[4:5]")
    o(f"global_load_dwordx4 {v(TO,4)}, {v(TMP)}, s[4:5]")
    o.c("h0 = 32*(q&1) + 16p + 4*(q>>1)")
    o(f"v_and_b32 {v(X1)}, 1, {v(X3)}")
    o(f"v_lshrrev_b32 {v(X2)}, 1, {v(X3)}")
    o(f"v_lshlrev_b32 {v(F0)}, 5, {v(X1)}")
    o(f"v_lshl_add_u32 {v(AOUT)}, {v(X2)}, 4, {v(AOUT)}")
    o(f"v_add_u32 {v(AOUT)}, {v(F0)}, {v(AOUT)}")
    o(f"v_lshl_add_u32 {v(F0)}, {v(X2)}, 2, {v(F0)}")
    o(f"s_lshl_b32 {s(sT1)}, {s(sP)}, 4")
    o(f"v_add_u32 {v(F0)}, {s(sT1)}, {v(F0)}")
    o(f"v_lshlrev_b32 {v(F0+1)}, 1, {v(F0)}")
    o(f"v_lshrrev_b32 {v(F0+2)}, 5, {v(LANE)}")
    o(f"v_lshlrev_b32 {v(F0+3)}, 6, {v(F0+2)}")
    o(f"v_mov_b32 {v(ZERO)}, 0")
    o(f"global_load_dwordx2 {v(RB1,2)}, {v(F0+1)}, s[12:13]")
    o(f"global_load_dwordx2 {v(RB1+2,2)}, {v(F0+1)}, s[12:13] offset:16")
    for i in range(4): o(f"global_load_dwordx4 {v(RW2+4*i,4)}, {v(F0+3)}, s[14:15] offset:{16*i}")
    o(f"global_load_ushort {v(B2)}, {v(ZERO)}, s[16:17]")
    o.c("t / u record addresses for the prologue writers")
    o(f"s_mul_i32 {s(sT0)}, {s(sG)}, {16*528}")
    o(f"s_add_u32 {s(sT0)}, {s(sT0)}, {TU}")
    o(f"v_mul_u32_u24 {v(ATW)}, 528, {v(X0)}")
    o(f"v_add_u32 {v(ATW)}, {s(sT0)}, {v(ATW)}")
    o(f"v_lshl_add_u32 {v(AUW)}, {v(F0)}, 2, {v(ATW)}")
    o(f"s_lshl_b32 {s(sT1)}, {s(sP)}, 7")
    o(f"v_lshl_add_u32 {v(ATW)}, {v(X3)}, 5, {v(ATW)}")
    o(f"v_add_u32 {v(ATW)}, {s(sT1)}, {v(ATW)}")
    o(f"v_lshl_add_u32 {v(CTU)}, {v(F0+2)}, 7, {s(sT0)}")
    o.c("row info: row*128 | sample")
    o(f"s_movk_i32 {s(sK)}, 3277")
    for j in range(5):
        o(f"v_add_u32 {v(X1)}, {64*j}, {v(LANE)}")
        o(f"v_mul_u32_u24 {v(X2)}, {s(sK)}, {v(X1)}")
        o(f"v_lshrrev_b32 {v(X2)}, 16, {v(X2)}")
        o(f"v_lshl_or_b32 {v(INFO+j)}, {v(X1)}, 7, {v(X2)}")
    o.c("hist descriptor for this group")
    o(f"s_mul_i32 {s(sT0)}, {s(sGG)}, 40960")
    o(f"s_add_u32 {s(sSRD)}, s6, {s(sT0)}")
    o(f"s_addc_u32 {s(sSRD+1)}, s7, 0")
    o(f"s_mov_b32 {s(sSRD+2)}, 40960")
    o(f"s_mov_b32 {s(sSRD+3)}, 0x20000")
    o(f"s_mul_i32 {s(sM0)}, {s(sW)}, 12288")
    o(f"s_mov_b32 {s(sK)}, 0xff80")
    o(f"s_mov_b32 {s(sNL)}, {hex(NLOG2E)}")
    o.c("DMA lane constants")
    o(f"v_lshrrev_b32 {v(X1)}, 3, {v(LANE)}")
    o(f"v_and_b32 {v(X2)}, 6, {v(X1)}")
    o(f"v_and_b32 {v(CE)}, 7, {v(LANE)}")
    o(f"v_xor_b32 {v(CE)}, {v(CE)}, {v(X2)}")
    o(f"v_lshlrev_b32 {v(CE)}, 4, {v(CE)}")
    o(f"v_xor_b32 {v(CO)}, 16, {v(CE)}")
    o(f"s_add_u32 {s(sT1)}, {s(sT1)}, {s(sB)}")
    o(f"v_lshl_add_u32 {v(ALD)}, {v(X1)}, 4, {s(sT1)}")
    o.c("per-row entry address: ((n&7)*4 + (n>>3))*4")
    o(f"v_and_b32 {v(X1)}, 3, {v(X1)}")
    o(f"v_and_b32 {v(X2)}, 7, {v(LANE)}")
    o(f"v_lshl_add_u32 {v(X2)}, {v(X2)}, 2, {v(X1)}")
    o(f"v_lshl_add_u32 {v(AENT)}, {v(X2)}, 2, {s(sT1)}")
    o.c("row-major fragment addresses")
    o(f"v_and_b32 {v(X1)}, 1, {v(X1)}")
    o(f"v_and_or_b32 {v(X1)}, {v(LANE)}, 6, {v(X1)}")
    o(f"v_lshlrev_b32 {v(X2)}, 2, {v(F0+2)}")
    o(f"v_xor_b32 {v(X1)}, {v(X1)}, {v(X2)}")
    o(f"v_and_b32 {v(X2)}, 31, {v(LANE)}")
    o(f"v_lshl_add_u32 {v(X2)}, {v(X2)}, 7, {s(sM0)}")
    o(f"v_lshl_add_u32 {v(AH)}, {v(X1)}, 4, {v(X2)}")
    for k in range(1, 4): o(f"v_xor_b32 {v(AH+k)}, {16*k}, {v(AH)}")
    o.c("transposed fragment addresses: row' = lane>>2")
    o(f"v_lshrrev_b32 {v(X1)}, 2, {v(LANE)}")
    o(f"v_and_or_b32 {v(X2)}, {v(X1)}, 6, {v(F0+2)}")
    o(f"v_bfe_u32 {v(F0+4)}, {v(LANE)}, 1, 1")
    o(f"s_lshl_b32 {s(sT0)}, {s(sP)}, 2")
    o(f"v_or_b32 {v(F0+4)}, {s(sT0)}, {v(F0+4)}")
    o(f"v_xor_b32 {v(X2)}, {v(X2)}, {v(F0+4)}")
    o(f"v_lshl_add_u32 {v(X1)}, {v(X1)}, 7, {s(sM0)}")
    o(f"v_lshl_add_u32 {v(X1)}, {v(X2)}, 4, {v(X1)}")
    o(f"v_and_b32 {v(X2)}, 1, {v(LANE)}")
    o(f"v_lshl_add_u32 {v(ATR)}, {v(X2)}, 3, {v(X1)}")
    for k in range(1, 4): o(f"v_xor_b32 {v(ATR+k)}, {32*k}, {v(ATR)}")
    o.c("score matrix addresses")
    o(f"s_lshl_b32 {s(sT0)}, {s(sW)}, 10")
    o(f"s_add_u32 {s(sT0)}, {s(sT0)}, {WST}")
    o(f"v_lshl_add_u32 {v(ASR)}, {v(LANE)}, 4, {s(sT0)}")
    o(f"v_bfe_u32 {v(X1)}, {v(LANE)}, 2, 2")
    o(f"v_lshl_add_u32 {v(CSW)}, {v(X1)}, 8, {s(sT0)}")
    o(f"v_bfe_u32 {v(X2)}, {v(LANE)}, 4, 1")
    o(f"v_lshl_add_u32 {v(CSW)}, {v(X2)}, 3, {v(CSW)}")
    o(f"v_and_b32 {v(F0+4)}, 3, {v(LANE)}")
    o(f"v_lshl_add_u32 {v(CSW)}, {v(F0+4)}, 1, {v(CSW)}")
    o.c("exchange buffer address")
    o(f"s_lshl_b32 {s(sT0)}, {s(sW)}, 11")
    o(f"s_add_u32 {s(sT0)}, {s(sT0)}, {WST+8192}")
    o(f"v_lshl_add_u32 {v(AX)}, {v(LANE)}, 4, {s(sT0)}")
    o.c("staging read address (32*half + r)*64 + sub*32 + c*8")
    o(f"v_lshl_add_u32 {v(AWR)}, {v(F0+2)}, 5, {v(X1)}")
    o(f"v_lshlrev_b32 {v(AWR)}, 6, {v(AWR)}")
    o(f"v_lshl_add_u32 {v(AWR)}, {v(X2)}, 5, {v(AWR)}")
    o(f"v_lshl_add_u32 {v(AWR)}, {v(F0+4)}, 3, {v(AWR)}")
    o(f"v_add_u32 {v(AWR)}, {WST}, {v(AWR)}")
    o.c("bias-GEMM read addresses (8q + r)*64 + c*8 + 4096p + 2048ks")
    o(f"v_lshl_add_u32 {v(AU0)}, {v(X3)}, 3, {v(X1)}")
    o(f"v_lshlrev_b32 {v(AU0)}, 6, {v(AU0)}")
    o(f"v_lshl_add_u32 {v(AU0)}, {v(F0+4)}, 3, {v(AU0)}")
    o(f"s_mul_i32 {s(sT0)}, {s(sP)}, 6144")
    o(f"v_add_u32 {v(AU0)}, {s(sT0)}, {v(AU0)}")
    o(f"v_xor_b32 {v(AU1)}, 0x800, {v(AU0)}")
    o(f"v_add_u32 {v(AU0)}, {WST+16384}, {v(AU0)}")
    o(f"v_add_u32 {v(AU1)}, {WST+16384}, {v(AU1)}")
    o.c("staging write address")
    o(f"v_lshrrev_b32 {v(AWW)}, 3, v0")
    o(f"v_lshlrev_b32 {v(AWW)}, 6, {v(AWW)}")
    o(f"v_bfe_u32 {v(X1)}, {v(LANE)}, 1, 1")
    o(f"v_lshl_add_u32 {v(AWW)}, {v(X1)}, 12, {v(AWW)}")
    o(f"v_and_b32 {v(X1)}, 1, {v(LANE)}")
    o(f"v_lshl_add_u32 {v(AWW)}, {v(X1)}, 5, {v(AWW)}")
    o(f"v_bfe_u32 {v(X1)}, {v(LANE)}, 2, 1")
    o(f"v_lshl_add_u32 {v(AWW)}, {v(X1)}, 3, {v(AWW)}")
    o(f"v_add_u32 {v(AWW)}, {WST}, {v(AWW)}")
    o.c("4x4 identity operands")
    o(f"v_lshlrev_b32 {v(X1)}, 4, {v(F0+4)}")
    o(f"v_mov_b32 {v(ID)}, 0x3f80")
    o(f"v_mov_b32 {v(ID+1)}, 0")
    o(f"v_mov_b32 {v(NID)}, 0xbf80")
    o(f"v_mov_b32 {v(NID+1)}, 0")
    o(f"v_lshlrev_b64 {v(ID,2)}, {v(X1)}, {v(ID,2)}")
    o(f"v_lshlrev_b64 {v(NID,2)}, {v(X1)}, {v(NID,2)}")
    for i in range(16): o(f"v_mov_b32 {v(ACC+i)}, 0")

    o.c("---- compaction of the unmasked rows ----")
    o("s_waitcnt vmcnt(13)")
    stamp(2)
    for j in range(5): o(f"v_cmp_ne_u32_e64 {s(sM+2*j,2)}, 0, {v(M+j)}")
    for j in range(5): o(f"v_lshl_or_b32 {v(E+j)}, {v(M+j)}, 16, {v(INFO+j)}")
    for j in range(5):
        o(f"s_bcnt1_i32_b64 {s(sT0)}, {s(sM+2*j,2)}")
        o(f"v_mbcnt_lo_u32_b32 {v(POS+j)}, {s(sM+2*j)}, 0")
        o(f"s_lshl2_add_u32 {s(sB+j+1)}, {s(sT0)}, {s(sB+j)}")
        o(f"v_mbcnt_hi_u32_b32 {v(POS+j)}, {s(sM+2*j+1)}, {v(POS+j)}")
        o(f"v_lshl_add_u32 {v(POS+j)}, {v(POS+j)}, 2, {s(sB+j)}")
    for j in range(5):
        o(f"s_mov_b64 exec, {s(sM+2*j,2)}")
        o(f"ds_write_b32 {v(POS+j)}, {v(E+j)}")
    o("s_mov_b64 exec, -1")
    for i in range(3): o(f"ds_read_b128 {v(LE+4*i,4)}, {v(ALD)} offset:{256*i}")
    o(f"ds_read_b32 {v(ENT)}, {v(AENT)}")
    o(f"s_sub_u32 {s(sT0)}, {s(sB+5)}, {s(sB)}")
    o(f"s_add_u32 {s(sT0)}, {s(sT0)}, 124")
    o(f"s_lshr_b32 {s(sT0)}, {s(sT0)}, 7")
    o(f"s_sub_u32 {s(sT0)}, {s(sT0)}, {s(sP)}")
    o(f"s_add_u32 {s(sT0)}, {s(sT0)}, 1")
    o(f"s_lshr_b32 {s(sCW)}, {s(sT0)}, 1")
    o(f"s_mov_b32 m0, {s(sM0)}")
    for i in range(12):
        if i % 4 == 0: o(f"s_waitcnt lgkmcnt({3 - i//4})")
        o(f"v_and_or_b32 {v(LE+i)}, {v(LE+i)}, {s(sK)}, {v(CO if i & 1 else CE)}")
        o(f"buffer_load_dwordx4 {v(LE+i)}, {s(sSRD,4)}, 0 offen{NT} lds")
        if i < 11: o("s_add_u32 m0, m0, 0x400")
    stamp(3)

    o.c("---- weight preparation ----")
    def m4(d, aa, b, c): o(f"v_mfma_f32_4x4x4_16b_bf16 {v(d,4)}, {v(aa,2)}, {v(b,2)}, {c}")
    o("s_waitcnt vmcnt(12)")
    m4(F0, ID, RA, 0); m4(F0+4, ID, RA+2, 0); m4(F0+8, ID, RB, 0); m4(F0+12, ID, RB+2, 0)
    m4(F0, ID, RC, v(F0,4)); m4(F0+4, ID, RC+2, v(F0+4,4)); m4(F0+8, NID, RC, v(F0+8,4)); m4(F0+12, NID, RC+2, v(F0+12,4))
    m4(D+0, ID, TM, 0); m4(D+4, ID, TM+2, 0)
    m4(D+8, ID, RB1, 0); m4(D+12, ID, RB1+2, 0)
    o(f"ds_write_b64 {v(AWW)}, {v(RD,2)} offset:8192")
    o(f"ds_write_b64 {v(AWW)}, {v(RD+2,2)} offset:{8192+16}")
    for i in range(8): o(f"v_mul_f32 {v(F0+i)}, {s(sNL)}, {v(F0+i)}")
    for i in range(8): o(f"v_mul_f32 {v(D+i)}, {s(sNL)}, {v(D+i)}")
    for i in range(8): o(f"v_cvt_pk_bf16_f32 {v(F0+i)}, {v(F0+2*i)}, {v(F0+2*i+1)}")
    o(f"ds_write_b64 {v(AWW)}, {v(F0,2)}")
    o(f"ds_write_b64 {v(AWW)}, {v(F0+2,2)} offset:16")
    o(f"ds_write_b64 {v(AWW)}, {v(F0+4,2)} offset:16384")
    o(f"ds_write_b64 {v(AWW)}, {v(F0+6,2)} offset:{16384+16}")
    o(f"ds_write_b128 {v(ATW)}, {v(D,4)}")
    o(f"ds_write_b128 {v(ATW)}, {v(D+4,4)} offset:16")
    for i in range(8): m4(W2+4*i, ID, RW2+2*i, 0)
    o(f"v_lshlrev_b32 {v(B2)}, 16, {v(B2)}")
    o(f"v_mul_f32 {v(B2)}, 0.5, {v(B2)}")
    o("s_waitcnt lgkmcnt(0)")
    o("s_barrier")
    for sub in range(2):
        for x, au in enumerate((AU0, AU1)):
            for kk in range(2):
                o(f"ds_read_b64_tr_b16 {v(F0+8*sub+4*x+2*kk,2)}, {v(au)} offset:{32*sub+256*kk}")
    def wfrag(mat, ht, ks): return 32*ht + 16*mat + 4*ks
    wreads = [(mat, ht, ks, kk) for ht in range(2) for mat in range(2) for ks in range(4) for kk in range(2)]
    def wread(x):
        mat, ht, ks, kk = x
        o(f"ds_read_b64_tr_b16 {a(wfrag(mat,ht,ks)+2*kk,2)}, {v(AWR)} offset:{8192*mat+4096*ht+512*ks+256*kk}")
    for x in wreads[:6]: wread(x)
    o("s_waitcnt lgkmcnt(6)")
    for x, tb in enumerate((TM, TO)):
        for sub in range(2):
            o(f"v_mfma_f32_16x16x32_bf16 {v(D+8+4*sub,4)}, {v(F0+8*sub+4*x,4)}, {v(tb,4)}, {v(D+8+4*sub,4)}")
    for x in wreads[6:14]: wread(x)
    for i in range(8): o(f"v_mul_f32 {v(D+8+i)}, {s(sNL)}, {v(D+8+i)}")
    o(f"ds_write_b128 {v(AUW)}, {v(D+8,4)} offset:256")
    o(f"ds_write_b128 {v(AUW)}, {v(D+12,4)} offset:{256+32}")
    for x in wreads[14:]: wread(x)
    o(f"v_and_b32 {v(TMP)}, 15, {v(ENT)}")
    o(f"s_movk_i32 {s(sT1)}, 528")
    o(f"v_mad_u32_u24 {v(ATU)}, {v(TMP)}, {s(sT1)}, {v(CTU)}")
    o(f"s_max_u32 {s(sREM)}, {s(sCW)}, 3")
    o(f"s_mov_b32 {s(sI)}, 3")
    o(f"s_mov_b32 {s(sSLOT)}, 0")
    o("s_waitcnt lgkmcnt(0)")
    o("s_barrier")
    o(f"ds_write_b128 {v(ASR)}, {v(ACC,4)}")
    for i in range(8): o(f"ds_read_b128 {v(T+4*i,4)}, {v(ATU)} offset:{16*i}")
    for i in range(8): o(f"ds_read_b128 {v(D+4*i,4)}, {v(ATU)} offset:{256+16*i}")
    if bench:
        o(f"s_mov_b32 {s(sCW)}, {bench}")
        if solo:
            o(f"s_cmp_eq_u32 {s(sP)}, 1")
            o(f"s_cmov_b32 {s(sCW)}, 0")
        o(f"s_mov_b32 {s(sREM)}, 1000")
        o("s_waitcnt vmcnt(0)")
        o("s_barrier")
    stamp(4)
    o(f"s_cmp_eq_u32 {s(sCW)}, 0")
    o("s_cbranch_scc1 L_epi")

    o.c("---- tile loop ----")
    o.label("L_loop")
    o(f"s_cmp_ge_u32 {s(sREM)}, 3")
    o("s_cbranch_scc1 L_w8")
    o(f"s_cmp_eq_u32 {s(sREM)}, 2")
    o("s_cbranch_scc1 L_w4")
    o("s_waitcnt vmcnt(0)")
    o.label("L_w4")
    o("s_waitcnt vmcnt(4)")
    o.label("L_w8")
    o("s_waitcnt vmcnt(8)")
    for k in range(4): o(f"ds_read_b128 {v(H+4*k,4)}, {v(AH+k)}")
    o(f"v_and_b32 {v(TMP)}, 15, {v(ENT)}")
    o(f"v_and_b32 {v(MSK)}, 0xffff0000, {v(ENT)}")
    o(f"v_lshl_add_u32 {v(ASW)}, {v(TMP)}, 4, {v(CSW)}")
    o(f"ds_read_b32 {v(ENT)}, {v(AENT)} offset:256")
    o(f"s_sub_u32 {s(sREM)}, {s(sREM)}, 1")
    o(f"s_cmp_eq_u32 {s(sSLOT)}, 2")
    o(f"s_cselect_b32 {s(sDELTA)}, -8192, 4096") if False else None
    o(f"s_mov_b32 {s(sDELTA)}, 0x1000")
    o(f"s_cmov_b32 {s(sDELTA)}, 0xffffe000")
    o(f"v_add_u32 {v(TMP if bench else AENT)}, 0x100, {v(AENT)}")
    for k in range(4): o(f"v_add_u32 {v(AH+k)}, {s(sDELTA)}, {v(AH+k)}")
    for k in range(4):
        o(f"s_waitcnt lgkmcnt({4-k})")
        m4(HF+8*k, ID, H+4*k, 0); m4(HF+8*k+4, ID, H+4*k+2, 0)
    def MM(ht, ks):
        b = H+4*ks if ks < 4 else HF+4*(ks-4)
        o(f"v_mfma_f32_32x32x16_bf16 {v(D+16*ht,16)}, {a(wfrag(ks//4,ht,ks%4),4)}, {v(b,4)}, {v(D+16*ht,16)}")
    prod = []
    for k in range(4):
        prod += [f"v_mul_f32 {v(HF+8*k+i)}, {v(HF+8*k+i)}, {v(T+8*k+i)}" for i in range(8)]
        prod += [f"v_cvt_pk_bf16_f32 {v(HF+4*k+i)}, {v(HF+8*k+2*i)}, {v(HF+8*k+2*i+1)}" for i in range(4)]
    order = [(0,0),(0,1),(0,2),(0,3),(0,4),(0,5),(1,0),(0,6)]
    for n, (ht, ks) in enumerate(order):
        MM(ht, ks)
        for x in prod[6*n:6*n+6]: o(x)
    MM(1, 1)
    o("s_waitcnt lgkmcnt(0)")
    o(f"v_and_b32 {v(TMP)}, 15, {v(ENT)}")
    MM(0, 7)
    o(f"v_mad_u32_u24 {v(ATU)}, {v(TMP)}, {s(sT1)}, {v(CTU)}")
    for jj in range(4):
        for kk in range(2): o(f"ds_read_b64_tr_b16 {v(HF+16+4*jj+2*kk,2)}, {v(ATR+jj)} offset:{2048*kk}")
    MM(1, 2)
    for k in range(4): o(f"v_add_u32 {v(ATR+k)}, {s(sDELTA)}, {v(ATR+k)}")
    def sig(ht):
        r = D+16*ht
        out  = [f"v_exp_f32 {v(r+i)}, {v(r+i)}" for i in range(16)]
        out += [f"v_add_f32 {v(r+i)}, 1.0, {v(r+i)}" for i in range(16)]
        out += [f"v_rcp_f32 {v(r+i)}, {v(r+i)}" for i in range(16)]
        for i in range(16):
            acc = S0 + (i & 1)
            if ht == 0 and i == 0: out.append(f"v_fma_f32 {v(S0)}, {v(r)}, {v(W2)}, {v(B2)}")
            elif ht == 0 and i == 1: out.append(f"v_mul_f32 {v(S1)}, {v(r+1)}, {v(W2+1)}")
            else: out.append(f"v_fmac_f32 {v(acc)}, {v(r+i)}, {v(W2+16*ht+i)}")
        return out
    s0 = sig(0)
    for n in range(5):
        for x in s0[3*n:3*n+3]: o(x)
        MM(1, 3+n)
    for i in range(4): o(f"ds_read_b128 {v(T+4*i,4)}, {v(ATU)} offset:{16*i}")
    for x in s0[15:32]: o(x)
    for i in range(4, 8): o(f"ds_read_b128 {v(T+4*i,4)}, {v(ATU)} offset:{16*i}")
    for x in s0[32:]: o(x)
    for i in range(4): o(f"ds_read_b128 {v(D+4*i,4)}, {v(ATU)} offset:{256+16*i}")
    for x in sig(1): o(x)
    o(f"v_add_f32 {v(S0)}, {v(S0)}, {v(S1)}")
    o(f"v_mov_b32 {v(S1)}, {v(S0)}")
    o(f"s_add_u32 {s(sSLOT)}, {s(sSLOT)}, 1")
    o(f"s_cmp_eq_u32 {s(sSLOT)}, 3")
    o(f"v_permlane32_swap_b32 {v(S0)}, {v(S1)}")
    o(f"s_cmov_b32 {s(sSLOT)}, 0")
    o(f"v_add_f32 {v(S0)}, {v(S0)}, {v(S1)}")
    o(f"v_mul_f32 {v(S0)}, {v(S0)}, {v(MSK)}")
    o(f"v_cvt_pk_bf16_f32 {v(S0)}, {v(S0)}, {v(S0)}")
    o(f"ds_write_b16 {v(ASW)}, {v(S0)}")
    o(f"ds_read_b128 {v(SOP,4)}, {v(ASR)}")
    o(f"ds_write_b16 {v(ASW)}, {v(ZERO)}")
    for i in range(4, 8): o(f"ds_read_b128 {v(D+4*i,4)}, {v(ATU)} offset:{256+16*i}")
    o(f"s_cmp_lt_u32 {s(sI)}, {s(sCW)}")
    o("s_waitcnt lgkmcnt(5)")
    for jj in range(4):
        o(f"v_mfma_f32_16x16x32_bf16 {v(ACC+4*jj,4)}, {v(HF+16+4*jj,4)}, {v(SOP,4)}, {v(ACC+4*jj,4)}")
    o("s_nop 0" if bench else "s_cbranch_scc1 L_refill")
    o.label("L_next")
    o(f"s_add_u32 {s(sM0)}, {s(sM0)}, {s(sDELTA)}")
    o(f"s_add_u32 {s(sI)}, {s(sI)}, 1")
    o(f"s_sub_u32 {s(sT0)}, {s(sI)}, 3")
    o(f"s_cmp_lt_u32 {s(sT0)}, {s(sCW)}")
    o("s_cbranch_scc1 L_loop")

    o.c("---- pair reduction and store ----")
    o.label("L_epi")
    stamp(5)
    o("s_nop 4")
    o(f"ds_write_b128 {v(AX)}, {v(ACC+8,4)}")
    o(f"ds_write_b128 {v(AX)}, {v(ACC+12,4)} offset:1024")
    o(f"s_lshl_b32 {s(sT0)}, {s(sP)}, 14")
    o(f"s_sub_u32 {s(sT0)}, 0x2000, {s(sT0)}")
    o(f"v_add_u32 {v(AX)}, {s(sT0)}, {v(AX)}")
    o("s_waitcnt lgkmcnt(0)")
    o("s_barrier")
    o(f"ds_read_b128 {v(ACC+8,4)}, {v(AX)}")
    o(f"ds_read_b128 {v(ACC+12,4)}, {v(AX)} offset:1024")
    o("s_waitcnt lgkmcnt(0)")
    for i in range(8): o(f"v_add_f32 {v(ACC+i)}, {v(ACC+i)}, {v(ACC+8+i)}")
    for i in range(4): o(f"v_cvt_pk_bf16_f32 {v(ACC+i)}, {v(ACC+2*i)}, {v(ACC+2*i+1)}")
    o("s_nop 1")
    o(f"v_permlane16_swap_b32 {v(ACC)}, {v(ACC+2)}")
    o(f"v_permlane16_swap_b32 {v(ACC+1)}, {v(ACC+3)}")
    o(f"global_store_dwordx4 {v(AOUT)}, {v(ACC,4)}, s[18:19]")
    if dg >= 0:
        stamp(6)
        from diag import diag_tail
        diag_tail(o, sST, sW, da, dg, K, dw, rel=rel, ic=ic)
    elif stamps:
        stamp(6)
        o("s_load_dwordx2 s[54:55], s[0:1], 72")
        o("s_waitcnt lgkmcnt(0)")
        for i in range(7): o(f"v_mov_b32 {v(i)}, {s(sST+2*i)}")
        o(f"v_mov_b32 v7, {s(sCW)}")
        o(f"s_lshl3_add_u32 {s(sT0)}, s2, {s(sW)}")
        o(f"s_lshl_b32 {s(sT0)}, {s(sT0)}, 5")
        o(f"v_mov_b32 v8, {s(sT0)}")
        o("s_mov_b64 exec, 1")
        o("global_store_dwordx4 v8, v[0:3], s[54:55]")
        o("global_store_dwordx4 v8, v[4:7], s[54:55] offset:16")
    o.label("L_end")
    o("s_endpgm")

    o.c("---- refill of a freed slot (more than three tiles per wave) ----")
    o.label("L_refill")
    o(f"ds_read_b128 {v(SOP,4)}, {v(ALD)} offset:768")
    o(f"v_add_u32 {v(ALD)}, 0x100, {v(ALD)}")
    o(f"s_mov_b32 m0, {s(sM0)}")
    o("s_waitcnt lgkmcnt(0)")
    for i in range(4):
        o(f"v_and_or_b32 {v(SOP+i)}, {v(SOP+i)}, {s(sK)}, {v(CO if i & 1 else CE)}")
        o(f"buffer_load_dwordx4 {v(SOP+i)}, {s(sSRD,4)}, 0 offen{NT} lds")
        if i < 3: o("s_add_u32 m0, m0, 0x400")
    o("s_branch L_next")

    head = open(f"cdna_kernels/{NAME}.s.ref").read().split("; Override launch")[0]
    return (head + f"; @launch grid=(256,1,1) block=(512,1,1) lds={LDS_BYTES}\n"
        + '.amdgcn_target "amdgcn-amd-amdhsa--gfx950"\n.text\n'
        + f".globl {NAME}_kernel\n.p2align 8\n.type {NAME}_kernel,@function\n{NAME}_kernel:\n"
        + o.text()
        + f'.section .rodata,"a"\n.p2align 6\n.amdhsa_kernel {NAME}_kernel\n'
        + f"  .amdhsa_next_free_vgpr {NV+64}\n  .amdhsa_next_free_sgpr 80\n  .amdhsa_accum_offset {NV}\n"
        + "  .amdhsa_group_segment_fixed_size 0\n  .amdhsa_kernarg_size 80\n  .amdhsa_user_sgpr_count 2\n"
        + "  .amdhsa_user_sgpr_kernarg_segment_ptr 1\n  .amdhsa_system_sgpr_workgroup_id_x 1\n.end_amdhsa_kernel\n")

if __name__ == "__main__":
    kw = dict(x.split("=") for x in sys.argv[2:])
    kw = {k: int(val) for k, val in kw.items()}
    open(sys.argv[1], "w").write(gen(**kw))
```

```python
import sys, struct

NAME = "standalone__sequential_behavior_din__recsys"

HIST = 0
SBUF = 65536
XCH  = 73728
WST  = 90112
TU   = 114688
LIST = 148480
MISC = 154624
LDS_BYTES = 155136
NLOG2E = 0xBFB8AA3B
def f2u(x): return struct.unpack("<I", struct.pack("<f", x))[0]

class Asm:
    def __init__(self): self.l = []
    def __call__(self, s): self.l.append("    " + s)
    def label(self, s): self.l.append(s + ":")
    def c(self, s): self.l.append("    ; " + s)
    def text(self): return "\n".join(self.l) + "\n"

def v(b, n=1): return f"v{b}" if n == 1 else f"v[{b}:{b+n-1}]"
def a(b, n=1): return f"a{b}" if n == 1 else f"a[{b}:{b+n-1}]"
def s(b, n=1): return f"s{b}" if n == 1 else f"s[{b}:{b+n-1}]"

def gen(nt=0, stamps=0, dg=-1, da=0, K=20, dw=0, rel=0, bench=0, solo=0,
        merge=4, prio=1, pf=1, rnd=0):
    stamps = stamps or dg >= 0
    o = Asm()
    NT = " nt" if nt else ""
    SH = {0: 0, 1: 0, 2: 60, 4: 30}[merge]
    D, T, HF, H, W2, ACC = 0, 32, 64, 96, 112, 144
    SOP, ID, AH, ATR = 160, 164, 166, 170
    SA = 174
    AENT, ATU, ASW, MSK, ENT, CTU, CSW, ASR, B2 = range(178, 187)
    CE, CO, ALD, AOUT, TMP = range(187, 192)
    NV = 192
    sW, sG, sP, sGG = 20, 21, 22, 23
    sM = 24
    sB = 34
    sCW, sI, sM0, sK = 40, 41, 42, 43
    sNL = 44
    sC0 = 46
    sSRD = 48
    sT0, sT1 = 52, 53
    s528, sSC = 54, 55
    sST = 56
    def stamp(i):
        if bench: o(f"s_memtime {s(sST+2*i,2)}")
        elif stamps: o(f"s_memrealtime {s(sST+2*i,2)}")
    def m4(d, aa, b, c): o(f"v_mfma_f32_4x4x4_16b_bf16 {v(d,4)}, {v(aa,2)}, {v(b,2)}, {c}")

    LANE = 1
    M, INFO, E, POS = 2, 7, 12, 17
    X0, X1, X2, X3, X4, X5 = 22, 23, 24, 25, 26, 27
    VO = 28
    RW = 32
    TB = 32
    RB1 = 40
    RW2 = 48
    NID, AWW, AWR, AU, ATW, AUW, AW2 = 56, 58, 59, 60, 61, 62, 63
    F0 = 64
    LE = 96

    stamp(0)
    o("s_load_dwordx16 s[4:19], s[0:1], 0")
    o(f"v_lshrrev_b32 {v(X0)}, 6, v0")
    o("s_cmp_ge_u32 s2, 0x100")
    o(f"v_readfirstlane_b32 {s(sW)}, {v(X0)}")
    o("s_cbranch_scc1 L_end")
    o(f"v_and_b32 {v(LANE)}, 63, v0")
    o(f"s_and_b32 {s(sG)}, {s(sW)}, 3")
    o(f"s_lshl2_add_u32 {s(sGG)}, s2, {s(sG)}")
    o(f"s_lshr_b32 {s(sP)}, {s(sW)}, 2")
    o(f"v_lshrrev_b32 {v(X3)}, 4, {v(LANE)}")
    o(f"v_and_b32 {v(X0)}, 15, {v(LANE)}")
    o(f"v_mov_b32 {v(TMP)}, 0")
    o("s_cbranch_scc1 L_y0")
    o.c("---- waves 0-3: mask, target, b1, w2 loads ----")
    o(f"s_mul_i32 {s(sT0)}, {s(sGG)}, 640")
    o(f"s_lshl_b32 {s(sT1)}, {s(sGG)}, 11")
    o(f"v_lshl_add_u32 {v(VO)}, {v(LANE)}, 1, {s(sT0)}")
    o(f"v_lshl_add_u32 {v(VO+1)}, {v(X0)}, 7, {s(sT1)}")
    o(f"v_lshl_add_u32 {v(VO+1)}, {v(X3)}, 4, {v(VO+1)}")
    o(f"v_lshlrev_b32 {v(VO+2)}, 3, {v(X3)}")
    o(f"v_and_b32 {v(AW2)}, 31, {v(LANE)}")
    o(f"v_lshlrev_b32 {v(AW2)}, 2, {v(AW2)}")
    o("s_setprio 3")
    o("s_waitcnt lgkmcnt(0)")
    stamp(1)
    for j in range(5): o(f"global_load_ushort {v(M+j)}, {v(VO)}, s[8:9] offset:{128*j}")
    o(f"global_load_dwordx4 {v(TB,4)}, {v(VO+1)}, s[4:5]")
    o(f"global_load_dwordx4 {v(TB+4,4)}, {v(VO+1)}, s[4:5] offset:64")
    for t in range(4): o(f"global_load_dwordx2 {v(RB1+2*t,2)}, {v(VO+2)}, s[12:13] offset:{32*t}")
    o(f"global_load_dword {v(RW2)}, {v(AW2)}, s[14:15]")
    o("s_branch L_common")
    o.c("---- waves 4-7: code prefetch, w1 loads ----")
    o.label("L_y0")
    o(f"v_and_b32 {v(X1)}, 0xff, v0")
    if pf:
        o(f"s_getpc_b64 {s(sM,2)}")
        o.label("L_pc")
        o(f"v_lshlrev_b32 {v(X2)}, 5, {v(X1)}")
        o(f"v_min_u32 {v(X2)}, L_last-L_pc, {v(X2)}")
        o(f"global_load_dword {v(X5)}, {v(X2)}, {s(sM,2)}")
    o(f"v_lshrrev_b32 {v(X2)}, 1, {v(X1)}")
    o(f"v_and_b32 {v(X4)}, 1, {v(X1)}")
    o(f"v_lshlrev_b32 {v(X2)}, 6, {v(X2)}")
    o(f"v_lshl_add_u32 {v(VO)}, {v(X4)}, 4, {v(X2)}")
    for f in range(1, 4): o(f"v_add_u32 {v(VO+f)}, {8192*f}, {v(VO)}")
    o(f"s_lshl_b32 {s(sT0)}, {s(sG)}, 10")
    o(f"s_add_u32 m0, {s(sT0)}, {WST+8192}")
    o(f"v_lshlrev_b32 {v(AWW)}, 4, {v(X1)}")
    o("s_waitcnt lgkmcnt(0)")
    stamp(1)
    for ht in range(2):
        for n, f in enumerate((2, 0, 1)):
            o(f"global_load_dwordx4 {v(RW+12*ht+4*n,4)}, {v(VO+f)}, s[10:11] offset:{32*ht}")
    o(f"global_load_lds_dwordx4 {v(VO+3)}, s[10:11]")
    o(f"s_add_u32 m0, m0, {4096-32}")
    o(f"v_add_u32 {v(AWW)}, {WST}, {v(AWW)}")
    o(f"global_load_lds_dwordx4 {v(VO+3)}, s[10:11] offset:32")

    o.c("---- lane constants ----")
    o.label("L_common")
    o(f"global_load_ushort {v(B2)}, {v(TMP)}, s[16:17]")
    o(f"s_mul_i32 {s(sB)}, {s(sG)}, 1280")
    o(f"s_add_u32 {s(sB)}, {s(sB)}, {LIST}")
    o(f"s_mul_i32 {s(sT0)}, {s(sGG)}, 40960")
    o(f"s_add_u32 {s(sSRD)}, s6, {s(sT0)}")
    o(f"s_addc_u32 {s(sSRD+1)}, s7, 0")
    o(f"s_mov_b32 {s(sSRD+2)}, 40960")
    o(f"s_mov_b32 {s(sSRD+3)}, 0x20000")
    o(f"s_lshl_b32 {s(sM0)}, {s(sW)}, 13")
    o(f"s_mov_b32 {s(sK)}, 0xff80")
    o(f"s_mov_b32 {s(sNL)}, {hex(NLOG2E)}")
    o(f"s_mov_b32 {s(sNL+1)}, {hex(NLOG2E)}")
    o(f"s_mov_b32 {s(sC0)}, {hex(f2u(2.0**-SH))}")
    o(f"s_mov_b32 {s(sC0+1)}, {hex(f2u(2.0**-SH))}")
    o(f"s_movk_i32 {s(s528)}, 528")
    o(f"s_lshl_b32 {s(sT1)}, {s(sP)}, 7")
    o(f"s_add_u32 {s(sT1)}, {s(sT1)}, {s(sB)}")
    o(f"v_lshrrev_b32 {v(X1)}, 3, {v(LANE)}")
    o(f"v_and_b32 {v(X2)}, 7, {v(LANE)}")
    o(f"v_lshl_add_u32 {v(ALD)}, {v(X1)}, 4, {s(sT1)}")
    o(f"v_and_b32 {v(CE)}, 6, {v(X1)}")
    o(f"v_xor_b32 {v(CE)}, {v(CE)}, {v(X2)}")
    o(f"v_lshlrev_b32 {v(CE)}, 4, {v(CE)}")
    o(f"v_xor_b32 {v(CO)}, 16, {v(CE)}")
    o(f"v_and_b32 {v(X4)}, 3, {v(X1)}")
    o(f"v_lshl_add_u32 {v(X2)}, {v(X2)}, 2, {v(X4)}")
    o(f"v_lshl_add_u32 {v(AENT)}, {v(X2)}, 2, {s(sT1)}")
    o.c("row-major fragments: chunk (4*half + ks) ^ f(n)")
    o(f"v_and_b32 {v(X1)}, 5, {v(X1)}")
    o(f"v_and_b32 {v(X2)}, 6, {v(LANE)}")
    o(f"v_xor_b32 {v(X1)}, {v(X1)}, {v(X2)}")
    o(f"v_and_b32 {v(X2)}, 31, {v(LANE)}")
    o(f"v_lshl_add_u32 {v(X2)}, {v(X2)}, 7, {s(sM0)}")
    o(f"v_lshl_add_u32 {v(AH)}, {v(X1)}, 4, {v(X2)}")
    for k in range(1, 4): o(f"v_xor_b32 {v(AH+k)}, {16*k}, {v(AH)}")
    o.c("transposed fragments: row' = lane>>2")
    o(f"v_lshrrev_b32 {v(X4)}, 5, {v(LANE)}")
    o(f"v_lshrrev_b32 {v(X1)}, 2, {v(LANE)}")
    o(f"v_and_or_b32 {v(X2)}, {v(X1)}, 6, {v(X4)}")
    o(f"v_lshlrev_b32 {v(X2)}, 4, {v(X2)}")
    o(f"v_and_b32 {v(VO)}, 3, {v(LANE)}")
    o(f"v_lshlrev_b32 {v(VO+1)}, 3, {v(VO)}")
    o(f"v_xor_b32 {v(X2)}, {v(X2)}, {v(VO+1)}")
    o(f"s_lshl_b32 {s(sT0)}, {s(sP)}, 6")
    o(f"v_xor_b32 {v(X2)}, {s(sT0)}, {v(X2)}")
    o(f"v_lshl_add_u32 {v(ATR)}, {v(X1)}, 7, {v(X2)}")
    o(f"v_add_u32 {v(ATR)}, {s(sM0)}, {v(ATR)}")
    for k in range(1, 4): o(f"v_xor_b32 {v(ATR+k)}, {32*k}, {v(ATR)}")
    o.c("output offset: sample*128 + 64p + 32*(q&1) + 16*(q>>1)")
    o(f"s_lshl_b32 {s(sT1)}, {s(sGG)}, 11")
    o(f"s_add_u32 {s(sT1)}, {s(sT1)}, {s(sT0)}")
    o(f"v_lshl_add_u32 {v(AOUT)}, {v(X0)}, 7, {s(sT1)}")
    o(f"v_lshl_add_u32 {v(AOUT)}, {v(X4)}, 4, {v(AOUT)}")
    o(f"v_and_b32 {v(X2)}, 1, {v(X3)}")
    o(f"v_lshl_add_u32 {v(AOUT)}, {v(X2)}, 5, {v(AOUT)}")
    o.c("score matrix addresses")
    o(f"s_lshl_b32 {s(sT0)}, {s(sW)}, 10")
    o(f"s_add_u32 {s(sT0)}, {s(sT0)}, {SBUF}")
    o(f"v_lshl_add_u32 {v(ASR)}, {v(LANE)}, 4, {s(sT0)}")
    o(f"v_and_b32 {v(X1)}, 3, {v(X1)}")
    o(f"v_lshl_add_u32 {v(CSW)}, {v(X1)}, 8, {s(sT0)}")
    o(f"v_lshl_add_u32 {v(CSW)}, {v(X2)}, 3, {v(CSW)}")
    o(f"v_lshl_add_u32 {v(CSW)}, {v(VO)}, 1, {v(CSW)}")
    o.c("staging read address (32*half + r)*64 + (c&1)*32 + sub*16 + (c>>1)*8")
    o(f"v_lshl_add_u32 {v(AWR)}, {v(X4)}, 5, {v(X1)}")
    o(f"v_and_b32 {v(VO+2)}, 1, {v(LANE)}")
    o(f"v_lshl_add_u32 {v(AWR)}, {v(AWR)}, 1, {v(VO+2)}")
    o(f"v_lshl_add_u32 {v(AWR)}, {v(AWR)}, 1, {v(X2)}")
    o(f"v_lshrrev_b32 {v(VO+2)}, 1, {v(VO)}")
    o(f"v_lshl_add_u32 {v(AWR)}, {v(AWR)}, 1, {v(VO+2)}")
    o(f"v_lshlrev_b32 {v(AWR)}, 3, {v(AWR)}")
    o(f"v_add_u32 {v(AWR)}, {WST}, {v(AWR)}")
    o(f"s_mul_i32 {s(sT0)}, {s(sG)}, {16*528}")
    o(f"s_add_u32 {s(sT0)}, {s(sT0)}, {TU}")
    o(f"v_lshl_add_u32 {v(CTU)}, {v(X4)}, 7, {s(sT0)}")
    o.c("4x4 identity operand")
    o(f"v_lshlrev_b32 {v(VO+2)}, 4, {v(VO)}")
    o(f"v_mov_b32 {v(ID)}, 0x3f80")
    o(f"v_mov_b32 {v(ID+1)}, 0")
    o(f"v_lshlrev_b64 {v(ID,2)}, {v(VO+2)}, {v(ID,2)}")
    for i in range(0, 16, 2): o(f"v_mov_b64 {v(ACC+i,2)}, 0")
    o(f"ds_write_b128 {v(ASR)}, {v(ACC,4)}")
    o(f"s_cmp_eq_u32 {s(sP)}, 1")
    o("s_cbranch_scc1 L_y1")

    def dma_tile(le):
        for i in range(4):
            o(f"v_and_or_b32 {v(le+i)}, {v(le+i)}, {s(sK)}, {v(CO if i & 1 else CE)}")
            o(f"buffer_load_dwordx4 {v(le+i)}, {s(sSRD,4)}, 0 offen{NT} lds")
            o("s_add_u32 m0, m0, 0x400")
    def calc_cw():
        o(f"s_add_u32 {s(sT0)}, {s(sT0)}, 124")
        o(f"s_lshr_b32 {s(sT0)}, {s(sT0)}, 7")
        o(f"s_sub_u32 {s(sT0)}, {s(sT0)}, {s(sP)}")
        o(f"s_add_u32 {s(sT0)}, {s(sT0)}, 1")
        o(f"s_lshr_b32 {s(sCW)}, {s(sT0)}, 1")
    def wfrag(mat, ht, ks): return 32*ht + 16*mat + 4*ks
    def wreads():
        for ht in range(2):
            for mat in range(2):
                for ks in range(4):
                    for kk in range(2):
                        o(f"ds_read_b64_tr_b16 {a(wfrag(mat,ht,ks)+2*kk,2)}, {v(AWR)} offset:{8192*mat+4096*ht+512*ks+256*kk}")

    o.c("---- waves 0-3: compaction of the unmasked rows ----")
    for i in range(4): o(f"v_mov_b32 {v(F0+i)}, 0xff80")
    o(f"v_lshl_add_u32 {v(F0+4)}, {v(LANE)}, 4, {s(sB)}")
    o(f"v_lshl_add_u32 {v(F0+5)}, {v(LANE)}, 2, {s(sB)}")
    o(f"ds_write_b128 {v(F0+4)}, {v(F0,4)}")
    o(f"ds_write_b32 {v(F0+5)}, {v(F0)} offset:1024")
    o(f"s_movk_i32 {s(sT1)}, 3277")
    for j in range(5):
        o(f"v_add_u32 {v(F0+6)}, {64*j}, {v(LANE)}")
        o(f"v_mul_u32_u24 {v(F0+7)}, {s(sT1)}, {v(F0+6)}")
        o(f"v_lshrrev_b32 {v(F0+7)}, 16, {v(F0+7)}")
        o(f"v_lshl_or_b32 {v(INFO+j)}, {v(F0+6)}, 7, {v(F0+7)}")
    o(f"v_mul_u32_u24 {v(ATW)}, 528, {v(X0)}")
    o(f"v_add_u32 {v(ATW)}, {s(sT0)}, {v(ATW)}")
    o(f"v_lshl_add_u32 {v(AUW)}, {v(X3)}, 4, {v(ATW)}")
    o(f"v_lshl_add_u32 {v(ATW)}, {v(X3)}, 5, {v(ATW)}")
    o(f"v_lshl_add_u32 {v(AU)}, {v(X3)}, 3, {v(X1)}")
    o(f"v_lshl_add_u32 {v(AU)}, {v(AU)}, 6, {v(VO+1)}")
    o(f"v_add_u32 {v(AU)}, {WST+16384}, {v(AU)}")
    o(f"v_add_u32 {v(AW2)}, {MISC}, {v(AW2)}")
    o(f"s_lshl2_add_u32 {s(sT1)}, {s(sG)}, {MISC+128}")
    o(f"v_mov_b32 {v(X5)}, {s(sT1)}")
    o(f"s_mov_b32 m0, {s(sM0)}")
    o("s_waitcnt vmcnt(8)")
    stamp(2)
    for j in range(5): o(f"v_cmp_ne_u32_e64 {s(sM+2*j,2)}, 0, {v(M+j)}")
    for j in range(5):
        o(f"s_bcnt1_i32_b64 {s(sT0)}, {s(sM+2*j,2)}")
        o(f"v_mbcnt_lo_u32_b32 {v(POS+j)}, {s(sM+2*j)}, 0")
        o(f"s_lshl2_add_u32 {s(sB+j+1)}, {s(sT0)}, {s(sB+j)}")
        o(f"v_mbcnt_hi_u32_b32 {v(POS+j)}, {s(sM+2*j+1)}, {v(POS+j)}")
        o(f"v_lshl_or_b32 {v(E+j)}, {v(M+j)}, 16, {v(INFO+j)}")
        o(f"v_lshl_add_u32 {v(POS+j)}, {v(POS+j)}, 2, {s(sB+j)}")
    for j in range(5):
        o(f"s_mov_b64 exec, {s(sM+2*j,2)}")
        o(f"ds_write_b32 {v(POS+j)}, {v(E+j)}")
    o("s_mov_b64 exec, -1")
    o(f"ds_read_b128 {v(LE,4)}, {v(ALD)}")
    o(f"s_sub_u32 {s(sT0)}, {s(sB+5)}, {s(sB)}")
    o(f"v_mov_b32 {v(X2)}, {s(sT0)}")
    o(f"ds_write_b32 {v(X5)}, {v(X2)}")
    o(f"ds_read_b128 {v(LE+4,4)}, {v(ALD)} offset:256")
    o(f"ds_read_b32 {v(ENT)}, {v(AENT)}")
    o("s_waitcnt lgkmcnt(3)")
    dma_tile(LE)
    o("s_waitcnt lgkmcnt(0)")
    o("s_barrier")
    stamp(3)
    calc_cw()
    o("s_waitcnt vmcnt(4)")
    for i in range(4): m4(F0+4*i, ID, TB+2*i, 0)
    for i in range(4): m4(D+4*i, ID, RB1+2*i, 0)
    o(f"ds_write_b32 {v(AW2)}, {v(RW2)}")
    o("s_nop 0")
    for i in range(8): o(f"v_pk_mul_f32 {v(F0+2*i,2)}, {v(F0+2*i,2)}, {s(sNL,2)}")
    for i in range(4): o(f"ds_write_b128 {v(ATW)}, {v(F0+4*i,4)} offset:{128*(i//2)+16*(i%2)}")
    dma_tile(LE+4)
    o("s_waitcnt lgkmcnt(0)")
    o("s_barrier")
    o.c("per-sample bias u = s*(t @ (Wb - Wc) + b1) - shift")
    for ks in range(2):
        for t in range(4):
            for kk in range(2):
                o(f"ds_read_b64_tr_b16 {v(F0+16*ks+4*t+2*kk,2)}, {v(AU)} offset:{4096*(t&1)+32*(t>>1)+2048*ks+256*kk}")
    o(f"v_mov_b32 {v(D+16)}, {hex(f2u(-float(SH)))}")
    o(f"v_mov_b32 {v(D+17)}, {hex(f2u(-float(SH)))}")
    for ks in range(2):
        o(f"s_waitcnt lgkmcnt({8-8*ks})")
        for t in range(4):
            o(f"v_mfma_f32_16x16x32_bf16 {v(D+4*t,4)}, {v(F0+16*ks+4*t,4)}, {v(TB+4*ks,4)}, {v(D+4*t,4)}")
    wreads()
    for i in range(8): o(f"v_pk_fma_f32 {v(D+2*i,2)}, {v(D+2*i,2)}, {s(sNL,2)}, {v(D+16,2)}")
    for t in range(4): o(f"ds_write_b128 {v(AUW)}, {v(D+4*t,4)} offset:{256+64*t}")
    o("s_branch L_join")

    o.c("---- waves 4-7: weight staging ----")
    o.label("L_y1")
    o(f"v_mov_b32 {v(NID)}, 0xbf80")
    o(f"v_mov_b32 {v(NID+1)}, 0")
    o(f"v_lshlrev_b64 {v(NID,2)}, {v(VO+2)}, {v(NID,2)}")
    o(f"s_lshl2_add_u32 {s(sT1)}, {s(sG)}, {MISC+128}")
    o(f"v_mov_b32 {v(X1)}, {s(sT1)}")
    o(f"s_mov_b32 m0, {s(sM0)}")
    def prep_m(ht):
        c_, a_, b_ = RW+12*ht, RW+12*ht+4, RW+12*ht+8
        f = F0+16*ht
        m4(f, ID, c_, 0); m4(f+4, ID, c_+2, 0); m4(f+8, NID, c_, 0); m4(f+12, NID, c_+2, 0)
        m4(f, ID, a_, v(f,4)); m4(f+4, ID, a_+2, v(f+4,4)); m4(f+8, ID, b_, v(f+8,4)); m4(f+12, ID, b_+2, v(f+12,4))
    def prep_v(ht):
        f = F0+16*ht
        for i in range(4): o(f"v_pk_mul_f32 {v(f+2*i,2)}, {v(f+2*i,2)}, {s(sNL,2)}")
        for i in range(8): o(f"v_cvt_pk_bf16_f32 {v(f+i)}, {v(f+2*i)}, {v(f+2*i+1)}")
        o(f"ds_write_b128 {v(AWW)}, {v(f,4)} offset:{4096*ht}")
        o(f"ds_write_b128 {v(AWW)}, {v(f+4,4)} offset:{16384+4096*ht}")
    o("s_waitcnt vmcnt(6)")
    stamp(2)
    prep_m(0)
    o("s_nop 1")
    prep_v(0)
    o("s_barrier")
    o(f"ds_read_b128 {v(LE,4)}, {v(ALD)}")
    o(f"ds_read_b128 {v(LE+4,4)}, {v(ALD)} offset:256")
    o(f"ds_read_b32 {v(ENT)}, {v(AENT)}")
    o(f"ds_read_b32 {v(X2)}, {v(X1)}")
    o("s_waitcnt lgkmcnt(3)")
    dma_tile(LE)
    stamp(3)
    o("s_waitcnt vmcnt(7)")
    prep_m(1)
    o("s_waitcnt lgkmcnt(0)")
    o(f"v_readfirstlane_b32 {s(sT0)}, {v(X2)}")
    prep_v(1)
    calc_cw()
    o("s_waitcnt vmcnt(4) lgkmcnt(0)")
    o("s_barrier")
    dma_tile(LE+4)
    wreads()

    o.label("L_join")
    o(f"v_lshlrev_b32 {v(X4)}, 6, {v(X4)}")
    o(f"v_add_u32 {v(X4)}, {MISC}, {v(X4)}")
    for i in range(4): o(f"ds_read_b128 {v(H+4*i,4)}, {v(X4)} offset:{16*i}")
    o(f"v_and_b32 {v(TMP)}, 15, {v(ENT)}")
    o(f"v_mad_u32_u24 {v(ATU)}, {v(TMP)}, {s(s528)}, {v(CTU)}")
    o(f"v_lshl_add_u32 {v(ASW)}, {v(TMP)}, 4, {v(CSW)}")
    o(f"v_and_b32 {v(MSK)}, 0xffff0000, {v(ENT)}")
    o(f"v_lshlrev_b32 {v(B2)}, 16, {v(B2)}")
    o(f"s_mov_b32 {s(sSC)}, {hex(f2u(2.0**-SH))}")
    o(f"s_mov_b32 {s(sI)}, 2")
    o("s_waitcnt lgkmcnt(0)")
    o("s_barrier")
    for i in range(8): o(f"ds_read_b128 {v(T+4*i,4)}, {v(ATU)} offset:{16*i}")
    for i in range(8): m4(W2+4*i, ID, H+2*i, 0)
    for i in range(8): o(f"ds_read_b128 {v(D+4*i,4)}, {v(ATU)} offset:{256+16*i}")
    if bench:
        o(f"s_mov_b32 {s(sCW)}, {bench}")
        if solo:
            o(f"s_cmp_eq_u32 {s(sP)}, 1")
            o(f"s_cmov_b32 {s(sCW)}, 0")
        o("s_waitcnt vmcnt(0) lgkmcnt(0)")
        o("s_barrier")
    o(f"s_cmp_eq_u32 {s(sCW)}, 0")
    o("s_cbranch_scc1 L_epi")
    o("s_setprio 3" if prio else "s_setprio 0")
    o("s_waitcnt vmcnt(4)")
    stamp(4)
    for k in range(4): o(f"ds_read_b128 {v(H+4*k,4)}, {v(AH+k)}")
    o("s_waitcnt lgkmcnt(0)")

    o.c("---- tile loop ----")
    o(".p2align 3")
    o.label("L_loop")
    for k in range(8): m4(HF+4*k, ID, H+2*k, 0)
    o(f"ds_read_b32 {v(ENT)}, {v(AENT)} offset:256")
    o(f"ds_read_b128 {v(SOP,4)}, {v(ALD)} offset:512")
    def MM(ht, ks):
        b = H+4*ks if ks < 4 else HF+4*(ks-4)
        o(f"v_mfma_f32_32x32x16_bf16 {v(D+16*ht,16)}, {a(wfrag(ks//4,ht,ks%4),4)}, {v(b,4)}, {v(D+16*ht,16)}")
    prod = []
    for k in range(4):
        prod += [f"v_mul_f32 {v(HF+8*k+i)}, {v(HF+8*k+i)}, {v(T+8*k+i)}" for i in range(8)]
        prod += [f"v_cvt_pk_bf16_f32 {v(HF+4*k+i)}, {v(HF+8*k+2*i)}, {v(HF+8*k+2*i+1)}" for i in range(4)]
    order = [(0,0),(0,1),(0,2),(0,3),(0,4),(0,5),(1,0),(0,6)]
    for n, (ht, ks) in enumerate(order):
        if (ht, ks) == (1, 0):
            o("s_waitcnt lgkmcnt(0)")
            o(f"v_and_b32 {v(TMP)}, 15, {v(ENT)}")
        MM(ht, ks)
        for x in prod[6*n:6*n+6]: o(x)
    MM(1, 1)
    o(f"v_mad_u32_u24 {v(ATU)}, {v(TMP)}, {s(s528)}, {v(CTU)}")
    o(f"v_add_u32 {v(SA if bench else AENT)}, 0x100, {v(AENT)}")
    MM(0, 7)
    for jj in range(4):
        for kk in range(2): o(f"ds_read_b64_tr_b16 {v(HF+16+4*jj+2*kk,2)}, {v(ATR+jj)} offset:{2048*kk}")
    MM(1, 2)
    for k in range(4): o(f"v_xor_b32 {v(AH+k)}, 0x1000, {v(AH+k)}")
    def exps(ht):
        r = D+16*ht
        if merge > 1: return [f"v_exp_f32_e64 {v(r+i)}, {v(r+i)} clamp" for i in range(16)]
        return [f"v_exp_f32 {v(r+i)}, {v(r+i)}" for i in range(16)]
    def rest(ht):
        r, w = D+16*ht, W2+16*ht
        p = lambda b: v(b, 2)
        out = []
        def accum(x, y, k):
            acc = SA+2*(k & 1)
            if ht == 0 and k < 2: out.append(f"v_pk_mul_f32 {p(acc)}, {p(x)}, {p(y)}")
            else: out.append(f"v_pk_fma_f32 {p(acc)}, {p(x)}, {p(y)}, {p(acc)}")
        if merge == 0:
            out += [f"v_add_f32 {v(r+i)}, 1.0, {v(r+i)}" for i in range(16)]
            out += [f"v_rcp_f32 {v(r+i)}, {v(r+i)}" for i in range(16)]
            for i in range(16):
                if ht == 0 and i < 4: out.append(f"v_mul_f32 {v(SA+i)}, {v(r+i)}, {v(w+i)}")
                else: out.append(f"v_fmac_f32 {v(SA+(i&3))}, {v(r+i)}, {v(w+i)}")
            return out
        out += [f"v_pk_add_f32 {p(r+2*i)}, {p(r+2*i)}, {s(sC0,2)}" for i in range(8)]
        if merge == 1:
            out += [f"v_rcp_f32 {v(r+i)}, {v(r+i)}" for i in range(16)]
            for i in range(8): accum(r+2*i, w+2*i, i)
            return out
        N = HF
        for g in range(4):
            x, y = r+4*g, r+4*g+2
            out.append(f"v_pk_mul_f32 {p(N+2*g)}, {p(w+4*g)}, {p(y)}")
            out.append(f"v_pk_fma_f32 {p(N+2*g)}, {p(w+4*g+2)}, {p(x)}, {p(N+2*g)}")
            out.append(f"v_pk_mul_f32 {p(x)}, {p(x)}, {p(y)}")
        if merge == 2:
            for g in range(4): out += [f"v_rcp_f32 {v(r+4*g+i)}, {v(r+4*g+i)}" for i in range(2)]
            for g in range(4): accum(N+2*g, r+4*g, g)
            return out
        for g in range(2):
            x, y = r+8*g, r+8*g+4
            out.append(f"v_pk_mul_f32 {p(x+2)}, {p(x)}, {p(y)}")
        for g in range(2): out += [f"v_rcp_f32 {v(r+8*g+2+i)}, {v(r+8*g+2+i)}" for i in range(2)]
        for g in range(2):
            x, y = r+8*g, r+8*g+4
            out.append(f"v_pk_mul_f32 {p(N+4*g)}, {p(N+4*g)}, {p(y)}")
            out.append(f"v_pk_fma_f32 {p(N+4*g)}, {p(N+4*g+2)}, {p(x)}, {p(N+4*g)}")
        for g in range(2): accum(N+4*g, r+8*g+2, g)
        return out
    e0 = exps(0)
    for n in range(5):
        for x in e0[3*n:3*n+3]: o(x)
        MM(1, 3+n)
    o(e0[15])
    for k in range(4): o(f"v_xor_b32 {v(ATR+k)}, 0x1000, {v(ATR+k)}")
    o(f"s_cmp_lt_u32 {s(sI)}, {s(sCW)}")
    o("s_nop 0" if bench else "s_cbranch_scc1 L_refill")
    o.label("L_back")
    for i in range(8): o(f"ds_read_b128 {v(T+4*i,4)}, {v(ATU)} offset:{16*i}")
    for x in rest(0): o(x)
    for i in range(4): o(f"ds_read_b128 {v(D+4*i,4)}, {v(ATU)} offset:{256+16*i}")
    for x in exps(1): o(x)
    o(f"s_cmp_lt_u32 {s(sI)}, {s(sCW)}")
    o("s_cbranch_scc1 L_w4")
    o("s_waitcnt vmcnt(0)")
    if prio:
        o(f"s_cmp_eq_u32 {s(sI)}, {s(sCW)}")
        o("s_setprio 1")
        o("s_cbranch_scc1 L_w0")
        o("s_setprio 0")
        o("s_branch L_w0")
    o.label("L_w4")
    o("s_waitcnt vmcnt(4)")
    if prio: o("s_setprio 2")
    o(".p2align 3")
    o.label("L_w0")
    for k in range(4): o(f"ds_read_b128 {v(H+4*k,4)}, {v(AH+k)}")
    for x in rest(1): o(x)
    o(f"v_pk_add_f32 {v(SA,2)}, {v(SA,2)}, {v(SA+2,2)}")
    o(f"v_add_f32 {v(SA+2)}, {v(SA)}, {v(SA+1)}")
    o(f"v_add_f32 {v(SA+3)}, {v(SA)}, {v(SA+1)}")
    o(f"s_xor_b32 {s(sM0)}, {s(sM0)}, 0x1000")
    o(f"s_add_u32 {s(sI)}, {s(sI)}, 1")
    o(f"v_permlane32_swap_b32 {v(SA+2)}, {v(SA+3)}")
    o(f"v_add_f32 {v(SA)}, {v(SA+2)}, {v(SA+3)}")
    if rnd:
        o(f"v_cvt_pk_bf16_f32 {v(SA)}, 0, {v(SA)}")
        o(f"v_fma_f32 {v(SA)}, {v(SA)}, {s(sSC)}, {v(B2)}")
        o(f"v_cvt_pk_bf16_f32 {v(SA)}, 0, {v(SA)}")
    else:
        o(f"v_fma_f32 {v(SA)}, {v(SA)}, {s(sSC)}, {v(B2)}")
    o(f"v_mul_f32 {v(SA)}, {v(SA)}, {v(MSK)}")
    o(f"v_cvt_pk_bf16_f32 {v(SA)}, {v(SA)}, {v(SA)}")
    o(f"ds_write_b16 {v(ASW)}, {v(SA)}")
    o(f"ds_read_b128 {v(SOP,4)}, {v(ASR)}")
    o(f"ds_write_b16 {v(ASW)}, {v(MSK)}")
    for i in range(4, 8): o(f"ds_read_b128 {v(D+4*i,4)}, {v(ATU)} offset:{256+16*i}")
    o(f"v_lshl_add_u32 {v(ASW)}, {v(TMP)}, 4, {v(CSW)}")
    o(f"v_and_b32 {v(MSK)}, 0xffff0000, {v(ENT)}")
    o(f"s_sub_u32 {s(sT0)}, {s(sI)}, 2")
    o(f"s_cmp_lt_u32 {s(sT0)}, {s(sCW)}")
    o("s_waitcnt lgkmcnt(5)")
    for jj in range(4):
        o(f"v_mfma_f32_16x16x32_bf16 {v(ACC+4*jj,4)}, {v(HF+16+4*jj,4)}, {v(SOP,4)}, {v(ACC+4*jj,4)}")
    o("s_cbranch_scc1 L_loop")

    o.c("---- pair reduction and store ----")
    o.label("L_epi")
    stamp(5)
    o(f"v_xor_b32 {v(TMP)}, 0x1000, {v(ASR)}")
    o("s_nop 5")
    o(f"ds_write_b128 {v(ASR)}, {v(ACC+8,4)} offset:{XCH-SBUF}")
    o(f"ds_write_b128 {v(ASR)}, {v(ACC+12,4)} offset:{XCH-SBUF+8192}")
    o("s_waitcnt lgkmcnt(0)")
    o("s_barrier")
    o(f"ds_read_b128 {v(ACC+8,4)}, {v(TMP)} offset:{XCH-SBUF}")
    o(f"ds_read_b128 {v(ACC+12,4)}, {v(TMP)} offset:{XCH-SBUF+8192}")
    o("s_waitcnt lgkmcnt(0)")
    for i in range(4): o(f"v_pk_add_f32 {v(ACC+2*i,2)}, {v(ACC+2*i,2)}, {v(ACC+8+2*i,2)}")
    for i in range(4): o(f"v_cvt_pk_bf16_f32 {v(ACC+i)}, {v(ACC+2*i)}, {v(ACC+2*i+1)}")
    o("s_nop 1")
    o(f"v_permlane16_swap_b32 {v(ACC)}, {v(ACC+2)}")
    o(f"v_permlane16_swap_b32 {v(ACC+1)}, {v(ACC+3)}")
    o(f"global_store_dwordx4 {v(AOUT)}, {v(ACC,4)}, s[18:19]")
    if dg >= 0:
        stamp(6)
        from diag import diag_tail
        diag_tail(o, sST, sW, da, dg, K, dw, rel=rel)
    elif stamps:
        stamp(6)
        o("s_load_dwordx2 s[54:55], s[0:1], 72")
        o("s_waitcnt lgkmcnt(0)")
        for i in range(7): o(f"v_mov_b32 {v(i)}, {s(sST+2*i)}")
        o(f"v_mov_b32 v7, {s(sCW)}")
        o(f"s_lshl3_add_u32 {s(sT0)}, s2, {s(sW)}")
        o(f"s_lshl_b32 {s(sT0)}, {s(sT0)}, 5")
        o(f"v_mov_b32 v8, {s(sT0)}")
        o("s_mov_b64 exec, 1")
        o("global_store_dwordx4 v8, v[0:3], s[54:55]")
        o("global_store_dwordx4 v8, v[4:7], s[54:55] offset:16")
    o.label("L_end")
    o("s_endpgm")

    o.c("---- gather of the tile two ahead into the slot just consumed ----")
    o.label("L_refill")
    o(f"s_mov_b32 m0, {s(sM0)}")
    o(f"v_add_u32 {v(ALD)}, 0x100, {v(ALD)}")
    o("s_waitcnt lgkmcnt(0)")
    dma_tile(SOP)
    o.label("L_last")
    o("s_branch L_back")

    head = open(f"cdna_kernels/{NAME}.s.ref").read().split("; Override launch")[0]
    return (head + f"; @launch grid=(256,1,1) block=(512,1,1) lds={LDS_BYTES}\n"
        + '.amdgcn_target "amdgcn-amd-amdhsa--gfx950"\n.text\n'
        + f".globl {NAME}_kernel\n.p2align 8\n.type {NAME}_kernel,@function\n{NAME}_kernel:\n"
        + o.text()
        + f'.section .rodata,"a"\n.p2align 6\n.amdhsa_kernel {NAME}_kernel\n'
        + f"  .amdhsa_next_free_vgpr {NV+64}\n  .amdhsa_next_free_sgpr 80\n  .amdhsa_accum_offset {NV}\n"
        + "  .amdhsa_group_segment_fixed_size 0\n  .amdhsa_kernarg_size 80\n  .amdhsa_user_sgpr_count 2\n"
        + "  .amdhsa_user_sgpr_kernarg_segment_ptr 1\n  .amdhsa_system_sgpr_workgroup_id_x 1\n.end_amdhsa_kernel\n")

if __name__ == "__main__":
    kw = dict(x.split("=") for x in sys.argv[2:])
    kw = {k: int(val) for k, val in kw.items()}
    open(sys.argv[1], "w").write(gen(**kw))
```

```python
def diag_tail(o, sST, sW, ia, ib, K, wave, nwg=256, rel=0, ic=0):
    o("s_load_dwordx2 s[54:55], s[0:1], 64")
    o("s_waitcnt lgkmcnt(0)")
    o(f"s_cmp_lg_u32 s{sW}, {wave}")
    o("s_cbranch_scc1 L_end")
    if ic:
        o("s_mov_b32 s96, 0")
        o.label("L_icl")
        o(f"s_memrealtime s[{sST+2*ia}:{sST+2*ia+1}]")
        o("s_waitcnt lgkmcnt(0)")
        o(".p2align 3")
        for i in range(512): o(f"v_fma_f32 v{8+i%8}, v20, v21, v22")
        o(f"s_memrealtime s[{sST+2*ib}:{sST+2*ib+1}]")
        o("s_waitcnt lgkmcnt(0)")
        o("s_add_u32 s96, s96, 1")
        o(f"s_cmp_lt_u32 s96, {ic}")
        o("s_cbranch_scc1 L_icl")
    o("s_mov_b64 exec, 1")
    if rel:
        o("s_mov_b32 s90, 0")
        o(f"s_sub_u32 s91, s{sST+2*ib}, s{sST+2*ia}")
    else:
        o(f"s_and_b32 s90, s{sST+2*ia}, 0x7fffffff")
        o(f"s_and_b32 s91, s{sST+2*ib}, 0x7fffffff")
    o("s_not_b32 s90, s90")
    o("v_mov_b32 v0, 0")
    o("v_mov_b32 v1, s90")
    o("v_mov_b32 v2, s91")
    o("v_mov_b32 v3, 1")
    o("global_atomic_umax v0, v1, s[54:55] sc1")
    o(f"global_atomic_{'add' if rel == 2 else 'umax'} v0, v2, s[54:55] offset:64 sc1")
    o("s_waitcnt vmcnt(0)")
    o("global_atomic_add v4, v0, v3, s[54:55] offset:128 sc0 sc1")
    o("s_waitcnt vmcnt(0)")
    o("v_readfirstlane_b32 s92, v4")
    o("s_nop 3")
    o(f"s_cmp_lg_u32 s92, {nwg-1}")
    o("s_cbranch_scc1 L_end")
    o("global_atomic_umax v5, v0, v0, s[54:55] sc0 sc1")
    o("global_atomic_umax v6, v0, v0, s[54:55] offset:64 sc0 sc1")
    o("s_waitcnt vmcnt(0)")
    o("v_readfirstlane_b32 s90, v5")
    o("v_readfirstlane_b32 s91, v6")
    o("s_nop 3")
    o("s_not_b32 s90, s90")
    o("s_sub_u32 s90, s91, s90")
    o(f"s_min_u32 s90, s90, {5000*256 if rel == 2 else 5000}")
    o("v_mov_b32 v7, s90")
    o("global_store_dword v0, v7, s[54:55] offset:4")
    o(f"s_mul_i32 s90, s90, {K}")
    if rel == 2: o("s_lshr_b32 s90, s90, 8")
    o("s_memrealtime s[92:93]")
    o("s_waitcnt lgkmcnt(0)")
    o.label("L_spin")
    o("s_memrealtime s[94:95]")
    o("s_waitcnt lgkmcnt(0)")
    o("s_sub_u32 s91, s94, s92")
    o("s_cmp_lt_u32 s91, s90")
    o("s_cbranch_scc1 L_spin")
```

```python
import sys, struct

NAME = "standalone__sequential_behavior_din__recsys"

HIST = 0
SBUF = 65536
WST  = 69632
TU   = 94208
LIST = 128000
SUMS = 134272
MISC = 144512
LDS_BYTES = MISC + 512
DS = SUMS - LIST
NLOG2E = 0xBFB8AA3B
SH = 30
def f2u(x): return struct.unpack("<I", struct.pack("<f", x))[0]

class Asm:
    def __init__(self): self.l = []
    def __call__(self, *ss):
        for x in ss: self.l.append("    " + x)
    def label(self, s): self.l.append(s + ":")
    def c(self, s): self.l.append("    ; " + s)
    def text(self): return "\n".join(self.l) + "\n"

def v(b, n=1): return f"v{b}" if n == 1 else f"v[{b}:{b+n-1}]"
def a(b, n=1): return f"a{b}" if n == 1 else f"a[{b}:{b+n-1}]"
def s(b, n=1): return f"s{b}" if n == 1 else f"s[{b}:{b+n-1}]"
def m4(d, aa, b, c=0): return f"v_mfma_f32_4x4x4_16b_bf16 {v(d,4)}, {v(aa,2)}, {v(b,2)}, {c}"

def gen(nt=0, stamps=0, dg=-1, da=0, K=20, dw=0, rel=0, bench=0, pf=2, p1=0, p2=1, p3=2, hp=1,
        abl=0, st=0, boost=5, tpos=1, bars=0, rot=0):
    stamps = stamps or dg >= 0
    o = Asm()
    NT = " nt" if nt else ""
    ST = ["", " nt", " sc1", " sc0 sc1"][st]
    sW, sG, sGG, sN = 20, 21, 22, 23
    sM = 24
    sB = 34
    sB2, s78, sM0, sK, s66 = 39, 40, 41, 42, 43
    sNL, sC0 = 44, 46
    sSRD = 48
    sT0, sT1 = 52, 53
    sINC = 54
    sST = 56
    sPC, sPF = 88, 3
    def stamp(i):
        if bench:
            if i in (4, 5):
                o(f"s_memtime {s(sST+2*i,2)}", f"s_memrealtime {s(sST+2*i-4,2)}")
        elif stamps and not (bars and 7 <= i <= 13): o(f"s_memrealtime {s(sST+2*i,2)}")
    LANE = 1
    NV = 192
    X0, X1, X2, X3, X4, X5 = 22, 23, 24, 25, 26, 27
    VO = 28
    M, INFO, E, POS = 2, 7, 12, 17
    LF = 2
    TB, RB1, RW2, AW2, AB1 = 32, 40, 48, 49, 50
    ATW, AUW, CE, CO, ALD, AENT = 52, 53, 54, 55, 56, 57
    LID, ATR, F0, UD = 58, 60, 64, 96
    ACC, TR, LE, SOP, SUM = 116, 132, 148, 164, 168
    ASR, CSW, ASW, MSK, ENT, B2, AOUT, ACNT, HPD = range(170, 179)
    AU = 180
    D, T, HF, H, W2, US, N = 0, 32, 64, 96, 112, 144, 160
    SA, ID, AH = 168, 170, 172
    CENT, CSUM, ATU, CEN, CTU, TMP = range(176, 182)
    RW, NID, AWW, AWB, AWR, AC2 = 32, 182, 184, 185, 186, 188
    def code_prefetch():
        if pf == 2:
            for i in range(8): o(f"s_load_dword {s(sPF)}, {s(sPC,2)}, {128*i}")

    stamp(0)
    o("s_load_dwordx16 s[4:19], s[0:1], 0",
      "v_lshrrev_b32 v2, 6, v0",
      "s_cmp_ge_u32 s2, 0x100",
      f"v_readfirstlane_b32 {s(sW)}, v2",
      "s_cbranch_scc1 L_end",
      f"v_and_b32 {v(LANE)}, 63, v0")
    if pf:
        o(f"s_getpc_b64 {s(sPC,2)}")
        o.label("L_pc")
    if pf == 2:
        o(f"s_lshl_b32 {s(sT0)}, {s(sW)}, 10",
          f"s_min_u32 {s(sT0)}, {s(sT0)}, L_last-L_pc-896",
          f"s_add_u32 {s(sPC)}, {s(sPC)}, {s(sT0)}",
          f"s_addc_u32 {s(sPC+1)}, {s(sPC+1)}, 0")
    o(f"s_and_b32 {s(sG)}, {s(sW)}, 3",
      f"s_cmp_lt_u32 {s(sW)}, 4",
      "s_cbranch_scc1 L_c0")
    o.c("==== waves 4-7, first loads: mask ====")
    o("s_setprio 3",
      f"s_lshl2_add_u32 {s(sGG)}, s2, {s(sG)}",
      f"s_mul_i32 {s(sT0)}, {s(sGG)}, 640",
      f"s_lshl_b32 {s(sT1)}, {s(sGG)}, 11",
      f"v_lshl_add_u32 {v(VO)}, {v(LANE)}, 1, {s(sT0)}",
      f"v_lshrrev_b32 {v(X3)}, 4, {v(LANE)}",
      f"v_and_b32 {v(X0)}, 15, {v(LANE)}",
      f"v_lshl_add_u32 {v(AOUT)}, {v(X0)}, 7, {s(sT1)}",
      f"v_lshl_add_u32 {v(VO+1)}, {v(X3)}, 4, {v(AOUT)}",
      f"s_mul_i32 {s(sT0)}, {s(sGG)}, 40960",
      f"s_mul_i32 {s(sB)}, {s(sG)}, 1280",
      f"s_add_u32 {s(sB)}, {s(sB)}, {LIST}",
      f"s_mov_b32 {s(sK)}, 0xff80",
      "s_waitcnt lgkmcnt(0)")
    stamp(1)
    for j in range(5): o(f"global_load_ushort {v(M+j)}, {v(VO)}, s[8:9] offset:{128*j}")
    def tloads():
        o(f"global_load_dwordx4 {v(TB,4)}, {v(VO+1)}, s[4:5]",
          f"global_load_dwordx4 {v(TB+4,4)}, {v(VO+1)}, s[4:5] offset:64")
    if tpos == 0: tloads()
    o("s_branch L_l1")

    o.c("==== waves 0-3, first loads: w1 ====")
    o.label("L_c0")
    o.c("wave g owns rows 16g..16g+15; slot (lane&7) of row d holds chunk 4*half + 2*(ht ^ d1) + sub")
    if rot:
        o(f"s_lshr_b32 {s(sT1)}, s2, 3", f"s_add_u32 {s(sT1)}, {s(sT1)}, {s(sG)}", f"s_and_b32 {s(sT1)}, {s(sT1)}, 3",
          f"s_lshl_b32 {s(sT0)}, {s(sT1)}, 11")
    else:
        o(f"s_lshl_b32 {s(sT0)}, {s(sG)}, 11")
    o(f"v_lshrrev_b32 {v(X2)}, 2, {v(LANE)}",
      f"v_xor_b32 {v(X2)}, {v(X2)}, {v(LANE)}",
      f"v_and_b32 {v(X2)}, 4, {v(X2)}",
      f"v_and_b32 {v(X3)}, 2, {v(LANE)}",
      f"v_and_b32 {v(X0)}, 0x39, {v(LANE)}",
      f"v_lshl_add_u32 {v(X0)}, {v(X0)}, 4, {s(sT0)}",
      f"v_lshl_add_u32 {v(X0)}, {v(X2)}, 3, {v(X0)}",
      f"v_lshl_add_u32 {v(VO)}, {v(X3)}, 5, {v(X0)}")
    for f in range(1, 4): o(f"v_add_u32 {v(VO+f)}, {8192*f}, {v(VO)}")
    o(f"s_add_u32 {s(sT0)}, {s(sT0)}, {WST}",
      f"s_add_u32 m0, {s(sT0)}, 8192",
      f"v_lshl_add_u32 {v(AWW)}, {v(LANE)}, 4, {s(sT0)}",
      "s_waitcnt lgkmcnt(0)")
    stamp(1)
    code_prefetch()
    o(f"v_and_b32 {v(X0)}, 3, {v(LANE)}",
      f"v_lshlrev_b32 {v(X1)}, 4, {v(X0)}",
      f"v_mov_b32 {v(ID)}, 0x3f80",
      f"v_mov_b32 {v(ID+1)}, 0",
      f"v_mov_b32 {v(NID)}, 0xbf80",
      f"v_mov_b32 {v(NID+1)}, 0",
      f"v_lshlrev_b64 {v(ID,2)}, {v(X1)}, {v(ID,2)}",
      f"v_lshlrev_b64 {v(NID,2)}, {v(X1)}, {v(NID,2)}")
    for n, f in ((0, 2), (2, 1), (1, 0)):
        for e in range(2):
            o(f"global_load_dwordx4 {v(RW+12*e+4*n,4)}, {v(VO+f)}, s[10:11] offset:{1024*e}")
    o(f"global_load_lds_dwordx4 {v(VO+3)}, s[10:11]",
      f"global_load_lds_dwordx4 {v(VO+3)}, s[10:11] offset:1024")
    ncx = 0
    if pf == 1:
        o(f"v_lshlrev_b32 {v(X2)}, 5, v0",
          f"v_min_u32 {v(X2)}, L_last-L_pc, {v(X2)}",
          f"global_load_dword {v(X5)}, {v(X2)}, {s(sPC,2)}"); ncx = 1
    o("s_branch L_c1")

    o.c("==== waves 4-7: row compaction, gathers, scores, weighted sum ====")
    o.label("L_l1")
    code_prefetch()
    o(f"s_load_dword {s(sB2)}, s[16:17], 0",
      f"s_add_u32 {s(sSRD)}, s6, {s(sT0)}",
      f"s_addc_u32 {s(sSRD+1)}, s7, 0",
      f"s_mov_b32 {s(sSRD+2)}, 40960",
      f"s_mov_b32 {s(sSRD+3)}, 0x20000",
      f"s_lshl_b32 {s(sM0)}, {s(sG)}, 12",
      f"s_mov_b32 m0, {s(sM0)}")
    o.c("pad entries, then (row*128 | sample*8) in the high half")
    for i in range(4): o(f"v_mov_b32 {v(F0+i)}, {s(sK)}")
    o(f"v_lshl_add_u32 {v(F0+4)}, {v(LANE)}, 4, {s(sB)}",
      f"v_lshl_add_u32 {v(F0+5)}, {v(LANE)}, 2, {s(sB)}",
      f"ds_write_b128 {v(F0+4)}, {v(F0,4)}",
      f"ds_write_b32 {v(F0+5)}, {v(F0)} offset:1024",
      f"v_mul_u32_u24 {v(INFO)}, 8414824, {v(LANE)}")
    for j in range(1, 5): o(f"v_add_u32 {v(INFO+j)}, {hex(8414824*64*j)}, {v(INFO)}")
    o(f"v_lshrrev_b32 {v(X1)}, 3, {v(LANE)}",
      f"v_and_b32 {v(X2)}, 7, {v(LANE)}",
      f"v_lshl_add_u32 {v(ALD)}, {v(X1)}, 4, {s(sB)}",
      f"v_and_b32 {v(CE)}, 6, {v(X1)}",
      f"v_xor_b32 {v(CE)}, {v(CE)}, {v(X2)}",
      f"v_lshlrev_b32 {v(CE)}, 4, {v(CE)}",
      f"v_xor_b32 {v(CO)}, 16, {v(CE)}",
      f"v_and_b32 {v(X1)}, 3, {v(X1)}",
      f"v_lshl_add_u32 {v(X2)}, {v(X2)}, 2, {v(X1)}",
      f"v_lshl_add_u32 {v(AENT)}, {v(X2)}, 2, {s(sB)}",
      f"s_lshl2_add_u32 {s(sT1)}, {s(sG)}, {MISC+256}",
      f"v_mov_b32 {v(ACNT)}, {s(sT1)}")
    for i in range(0, 16, 2): o(f"v_mov_b64 {v(ACC+i,2)}, 0")
    o.c("transposed fragments: row' = lane>>2")
    o(f"v_lshrrev_b32 {v(X4)}, 5, {v(LANE)}",
      f"v_lshrrev_b32 {v(X1)}, 2, {v(LANE)}",
      f"v_and_or_b32 {v(X2)}, {v(X1)}, 6, {v(X4)}",
      f"v_lshlrev_b32 {v(X2)}, 4, {v(X2)}",
      f"v_and_b32 {v(VO)}, 3, {v(LANE)}",
      f"v_lshlrev_b32 {v(VO+3)}, 3, {v(VO)}",
      f"v_xor_b32 {v(X2)}, {v(X2)}, {v(VO+3)}",
      f"v_lshl_add_u32 {v(ATR)}, {v(X1)}, 7, {v(X2)}",
      f"v_add_u32 {v(ATR)}, {s(sM0)}, {v(ATR)}")
    for k in range(1, 4): o(f"v_xor_b32 {v(ATR+k)}, {32*k}, {v(ATR)}")
    o.c("b1 (lanes 0-31) and w2 (lanes 32-63), target, first history line")
    o(f"v_lshlrev_b32 {v(AW2)}, 2, {v(LANE)}",
      "s_mov_b32 exec_hi, 0",
      f"global_load_dword {v(RW2)}, {v(AW2)}, s[12:13]",
      "s_not_b64 exec, exec",
      f"global_load_dword {v(RW2)}, {v(AW2)}, s[14:15] offset:-128",
      "s_mov_b64 exec, -1")
    if tpos == 1: tloads()
    if hp:
        o(f"v_min_u32 {v(X2)}, {hp-1}, {v(LANE)}",
          f"v_lshlrev_b32 {v(X2)}, 7, {v(X2)}",
          f"buffer_load_dword {v(HPD)}, {v(X2)}, {s(sSRD,4)}, 0 offen")
    nh = 1 if hp else 0
    o.c("score matrix [kk][q][sample][4]")
    o(f"v_lshl_add_u32 {v(AOUT)}, {v(X4)}, 4, {v(AOUT)}",
      f"v_and_b32 {v(X2)}, 1, {v(X3)}",
      f"v_lshl_add_u32 {v(AOUT)}, {v(X2)}, 5, {v(AOUT)}",
      f"s_lshl_b32 {s(sT0)}, {s(sG)}, 10",
      f"s_add_u32 {s(sT0)}, {s(sT0)}, {SBUF}",
      f"v_lshl_add_u32 {v(ASR)}, {v(LANE)}, 3, {s(sT0)}",
      f"v_and_b32 {v(CSW)}, 7, {v(X1)}",
      f"v_lshl_add_u32 {v(CSW)}, {v(CSW)}, 7, {s(sT0)}",
      f"v_lshl_add_u32 {v(CSW)}, {v(VO)}, 1, {v(CSW)}",
      f"ds_write2st64_b64 {v(ASR)}, {v(ACC,2)}, {v(ACC,2)} offset1:1",
      f"v_and_b32 {v(X1)}, 3, {v(X1)}",
      f"s_mul_i32 {s(sT0)}, {s(sG)}, {16*528}",
      f"s_add_u32 {s(sT0)}, {s(sT0)}, {TU}",
      f"v_mul_u32_u24 {v(ATW)}, 528, {v(X0)}",
      f"v_add_u32 {v(ATW)}, {s(sT0)}, {v(ATW)}",
      f"v_lshl_add_u32 {v(AUW)}, {v(X3)}, 4, {v(ATW)}",
      f"v_lshl_add_u32 {v(ATW)}, {v(X3)}, 5, {v(ATW)}",
      f"v_lshl_add_u32 {v(AU)}, {v(X3)}, 3, {v(X1)}",
      f"v_lshl_add_u32 {v(AU)}, {v(AU)}, 7, {v(VO+3)}",
      f"v_lshl_add_u32 {v(AU)}, {v(X2)}, 5, {v(AU)}",
      f"v_and_b32 {v(X1)}, 2, {v(X1)}",
      f"v_lshl_add_u32 {v(AU)}, {v(X1)}, 5, {v(AU)}",
      f"v_add_u32 {v(AU)}, {WST+16384}, {v(AU)}",
      f"v_xor_b32 {v(AU+1)}, 64, {v(AU)}",
      f"v_xor_b32 {v(AU+2)}, 32, {v(AU)}",
      f"v_xor_b32 {v(AU+3)}, 0x60, {v(AU)}",
      f"v_add_u32 {v(AW2)}, {MISC}, {v(AW2)}",
      f"v_lshlrev_b32 {v(AB1)}, 3, {v(X3)}",
      f"v_add_u32 {v(AB1)}, {MISC}, {v(AB1)}",
      f"v_lshlrev_b32 {v(VO+2)}, 4, {v(VO)}",
      f"v_mov_b32 {v(LID)}, 0x3f80",
      f"v_mov_b32 {v(LID+1)}, 0",
      f"v_lshlrev_b64 {v(LID,2)}, {v(VO+2)}, {v(LID,2)}",
      f"s_mov_b32 {s(sNL)}, {hex(NLOG2E)}",
      f"s_mov_b32 {s(sNL+1)}, {hex(NLOG2E)}",
      f"s_mov_b32 {s(sC0)}, {hex(f2u(2.0**-SH))}",
      f"s_movk_i32 {s(s78)}, 0x78",
      f"v_mov_b32 {v(MSK)}, 0",
      f"v_mov_b32 {v(UD+16)}, {hex(f2u(-float(SH)))}",
      f"v_mov_b32 {v(UD+17)}, {hex(f2u(-float(SH)))}")
    def dma_tile(le, last=0x3400):
        for i in range(4):
            o(f"v_and_or_b32 {v(le+i)}, {v(le+i)}, {s(sK)}, {v(CO if i & 1 else CE)}",
              f"buffer_load_dwordx4 {v(le+i)}, {s(sSRD,4)}, 0 offen{NT} lds")
            if i < 3 or last: o(f"s_add_u32 m0, m0, {hex(0x400 if i < 3 else last)}")
    issued = [1]
    def dma_point(pt):
        for k, pk in ((1, p1), (2, p2), (3, p3)):
            if pk == pt:
                assert issued[0] == k
                dma_tile(LE+4*k); issued[0] += 1
    stamp(7)
    o(f"s_waitcnt vmcnt({4+nh})")
    stamp(2)
    for j in range(5): o(f"v_cmp_ne_u32_e64 {s(sM+2*j,2)}, 0, {v(M+j)}")
    for j in range(5):
        o(f"s_mov_b64 exec, {s(sM+2*j,2)}",
          f"v_mbcnt_lo_u32_b32 {v(POS+j)}, {s(sM+2*j)}, 0",
          f"v_mbcnt_hi_u32_b32 {v(POS+j)}, {s(sM+2*j+1)}, {v(POS+j)}",
          f"v_alignbit_b32 {v(E+j)}, {v(M+j)}, {v(INFO+j)}, 16",
          f"v_lshl_add_u32 {v(POS+j)}, {v(POS+j)}, 2, {s(sB+j)}",
          f"ds_write_b32 {v(POS+j)}, {v(E+j)}")
        if j < 4:
            o(f"s_bcnt1_i32_b64 {s(sT0)}, {s(sM+2*j,2)}",
              f"s_lshl2_add_u32 {s(sB+j+1)}, {s(sT0)}, {s(sB+j)}")
    o("s_mov_b64 exec, -1")
    for i in range(4): o(f"ds_read_b128 {v(LE+4*i,4)}, {v(ALD)} offset:{128*i}")
    o(f"s_bcnt1_i32_b64 {s(sT0)}, {s(sM+8,2)}",
      f"s_lshl2_add_u32 {s(sT0)}, {s(sT0)}, {s(sB+4)}",
      f"s_sub_u32 {s(sT0)}, {s(sT0)}, {s(sB)}",
      f"s_add_u32 {s(sT0)}, {s(sT0)}, 124",
      f"s_lshr_b32 {s(sN)}, {s(sT0)}, 7")
    if bench: o(f"s_mov_b32 {s(sN)}, {bench}")
    o(f"v_mov_b32 {v(X2)}, {s(sN)}",
      "s_waitcnt lgkmcnt(3)")
    dma_tile(LE)
    stamp(8)
    o(f"ds_write_b32 {v(ACNT)}, {v(X2)}",
      "s_waitcnt lgkmcnt(1)")
    dma_point(0)
    def refill_read():
        for i in range(4): o(f"ds_read_b128 {v(LF+4*i,4)}, {v(ALD)} offset:{0 if bench else 512+128*i}")
    def refill_calc():
        for i in range(16): o(f"v_and_or_b32 {v(LF+i)}, {v(LF+i)}, {s(sK)}, {v(CO if i & 1 else CE)}")
    o(f"s_waitcnt vmcnt({4*issued[0] + nh + (2 if tpos == 1 else 0)})",
      f"ds_write_b32 {v(AW2)}, {v(RW2)}")
    for t in range(4): o(f"ds_read_b64 {v(RB1+2*t,2)}, {v(AB1)} offset:{32*t}")
    o("s_waitcnt lgkmcnt(0)")
    stamp(3)
    o("s_barrier")
    stamp(14)
    o.c("per-sample bias u = s*(t @ (Wb - Wc) + b1) - shift, scaled target s*t")
    for ks in range(2):
        for t in range(4):
            for kk in range(2):
                o(f"ds_read_b64_tr_b16 {v(F0+16*ks+4*t+2*kk,2)}, {v(AU+t)} offset:{4096*ks+512*kk}")
    for i in range(4): o(m4(UD+4*i, LID, RB1+2*i))
    o(f"s_lshl_b32 {s(sB2)}, {s(sB2)}, 16",
      f"v_mov_b32 {v(B2)}, {s(sB2)}",
      f"s_waitcnt vmcnt({4*issued[0] + nh})")
    for i in range(4): o(m4(TR+4*i, LID, TB+2*i))
    tw = []
    for i in range(4):
        tw += [f"v_mul_f32 {v(TR+4*i+k)}, {s(sNL)}, {v(TR+4*i+k)}" for k in range(4)]
        tw += [f"ds_write_b128 {v(ATW)}, {v(TR+4*i,4)} offset:{128*(i//2)+16*(i%2)}"]
    um = lambda ks, t: f"v_mfma_f32_16x16x32_bf16 {v(UD+4*t,4)}, {v(F0+16*ks+4*t,4)}, {v(TB+4*ks,4)}, {v(UD+4*t,4)}"
    o("s_waitcnt lgkmcnt(8)", um(0,0), um(0,1), *tw[0:2])
    o(um(0,2), *tw[2:4])
    o(um(0,3), "s_waitcnt lgkmcnt(0)", tw[4])
    o(um(1,0), *tw[5:7]); o(um(1,1), *tw[7:10]); o(um(1,2), *tw[10:12]); o(um(1,3), *tw[12:])
    dma_point(1)
    stamp(9)
    for t in range(4):
        for i in range(2): o(f"v_pk_fma_f32 {v(UD+4*t+2*i,2)}, {v(UD+4*t+2*i,2)}, {s(sNL,2)}, {v(UD+16,2)}")
        o(f"ds_write_b128 {v(AUW)}, {v(UD+4*t,4)} offset:{256+64*t}")
    o("s_waitcnt lgkmcnt(0)")
    stamp(10)
    o("s_barrier")
    stamp(11)
    refill_read()
    dma_point(2)
    o("s_waitcnt lgkmcnt(0)")
    refill_calc()
    o(f"s_waitcnt vmcnt({4*(issued[0]-1)})")
    stamp(12)
    o("s_barrier")
    stamp(13)
    o("s_setprio 0")
    dma_point(3)
    assert issued[0] == 4
    if bench: o("s_waitcnt vmcnt(0)", "s_barrier")
    stamp(4)
    o(f"s_cmp_eq_u32 {s(sN)}, 0",
      "s_cbranch_scc1 L_store",
      "s_waitcnt vmcnt(8)",
      "s_barrier")
    if bars: o(f"s_memrealtime {s(sST+14,2)}")
    o("s_branch L_lf0")
    o.label("L_lloop")
    for k in range(4):
        o("s_barrier")
        if bars: o(f"s_memrealtime {s(sST+2*(11 if k == 0 else 7+k),2)}")
        o(f"ds_read_b32 {v(SUM)}, {v(AENT)} offset:{DS+128*(k-1)}",
          f"ds_read_b32 {v(SUM+1)}, {v(AENT)} offset:{DS+5120+128*(k-1)}",
          f"s_cmp_eq_u32 {s(sN)}, {k}",
          "s_waitcnt lgkmcnt(0)")
        if boost & 1: o("s_setprio 3")
        o(f"v_add_f32 {v(SUM)}, {v(SUM)}, {v(SUM+1)}",
          f"v_fma_f32 {v(SUM)}, {v(SUM)}, {s(sC0)}, {v(B2)}",
          f"v_mul_f32 {v(SUM)}, {v(SUM)}, {v(MSK)}",
          f"v_cvt_pk_bf16_f32 {v(SUM)}, {v(SUM)}, {v(SUM)}")
        if boost & 4: o(f"v_and_or_b32 {v(ASW)}, {v(ENT)}, {s(s78)}, {v(CSW)}")
        if boost & 1: o("s_setprio 0")
        o(f"ds_write_b16 {v(ASW)}, {v(SUM)}",
          f"ds_read2st64_b64 {v(SOP,4)}, {v(ASR)} offset1:1",
          f"ds_write_b16 {v(ASW)}, {v(MSK)}",
          "s_waitcnt lgkmcnt(1)")
        if boost & 2: o("s_setprio 3")
        for jj in range(4):
            o(f"v_mfma_f32_16x16x32_bf16 {v(ACC+4*jj,4)}, {v(TR+4*jj,4)}, {v(SOP,4)}, {v(ACC+4*jj,4)}")
        if boost & 2: o("s_setprio 0")
        o("s_cbranch_scc1 L_store")
        o.label(f"L_lf{k}")
        o(f"ds_read_b32 {v(ENT)}, {v(AENT)} offset:{128*k}",
          f"ds_read_u16_d16_hi {v(MSK)}, {v(AENT)} offset:{128*k+2}")
        for jj in range(4):
            for kk in range(2): o(f"ds_read_b64_tr_b16 {v(TR+4*jj+2*kk,2)}, {v(ATR+jj)} offset:{16384*k+2048*kk}")
        o(f"s_add_u32 m0, {s(sM0)}, {16384*k}",
          f"s_cmp_gt_u32 {s(sN)}, {k+4}",
          f"s_cbranch_scc0 L_nf{k}",
          "s_waitcnt lgkmcnt(0)")
        for i in range(4):
            o(f"buffer_load_dwordx4 {v(LF+4*k+i)}, {s(sSRD,4)}, 0 offen{NT} lds")
            if i < 3: o("s_add_u32 m0, m0, 0x400", "s_nop 0")
        o("s_waitcnt vmcnt(8)",
          f"s_branch L_nx{k}")
        o.label(f"L_nf{k}")
        o(f"s_cmp_eq_u32 {s(sN)}, {k+4}",
          "s_waitcnt vmcnt(4)",
          f"s_cbranch_scc1 L_nx{k}",
          "s_waitcnt vmcnt(0)")
        o.label(f"L_nx{k}")
        if not boost & 4:
            o("s_waitcnt lgkmcnt(9)",
              f"v_and_or_b32 {v(ASW)}, {v(ENT)}, {s(s78)}, {v(CSW)}")
    if bars:
        o("s_waitcnt lgkmcnt(0)", f"s_mov_b64 {s(sST+24,2)}, {s(sST+16,2)}", f"s_mov_b64 {s(sST+26,2)}, {s(sST+18,2)}")
    o(f"s_sub_u32 {s(sN)}, {s(sN)}, 4",
      f"v_add_u32 {v(AENT)}, 0x200, {v(AENT)}",
      f"s_cmp_gt_u32 {s(sN)}, 4",
      "s_cbranch_scc0 L_lloop",
      f"v_add_u32 {v(ALD)}, 0x200, {v(ALD)}")
    refill_read()
    o("s_waitcnt lgkmcnt(0)")
    refill_calc()
    o("s_branch L_lloop")
    o.label("L_store")
    stamp(5)
    o("s_nop 3")
    for i in range(8): o(f"v_cvt_pk_bf16_f32 {v(ACC+i)}, {v(ACC+2*i)}, {v(ACC+2*i+1)}")
    o(f"v_permlane16_swap_b32 {v(ACC)}, {v(ACC+2)}",
      f"v_permlane16_swap_b32 {v(ACC+1)}, {v(ACC+3)}",
      f"global_store_dwordx4 {v(AOUT)}, {v(ACC,4)}, s[18:19]{ST}",
      f"v_permlane16_swap_b32 {v(ACC+4)}, {v(ACC+6)}",
      f"v_permlane16_swap_b32 {v(ACC+5)}, {v(ACC+7)}",
      f"global_store_dwordx4 {v(AOUT)}, {v(ACC+4,4)}, s[18:19] offset:64{ST}")
    o("s_branch L_fin" if stamps else "s_endpgm")

    o.c("==== waves 0-3: weight staging, then the activation unit ====")
    o.label("L_c1")
    o(f"s_mov_b32 {s(sNL)}, {hex(NLOG2E)}",
      f"s_mov_b32 {s(sNL+1)}, {hex(NLOG2E)}",
      f"s_mov_b32 {s(sC0)}, {hex(f2u(2.0**-SH))}",
      f"s_mov_b32 {s(sC0+1)}, {hex(f2u(2.0**-SH))}",
      f"s_movk_i32 {s(s66)}, 66",
      f"s_movk_i32 {s(s78)}, 0x78",
      f"v_xor_b32 {v(AWB)}, 32, {v(AWW)}")
    o.c("staging read address (32*half + r)*128 + (r>>1)*64 + (c&1)*32 + sub*16 + (c>>1)*8")
    o(f"v_lshrrev_b32 {v(X3)}, 5, {v(LANE)}",
      f"v_bfe_u32 {v(X1)}, {v(LANE)}, 2, 2",
      f"v_lshl_add_u32 {v(AWR)}, {v(X3)}, 5, {v(X1)}",
      f"v_lshrrev_b32 {v(X1)}, 1, {v(X1)}",
      f"v_lshl_add_u32 {v(AWR)}, {v(AWR)}, 1, {v(X1)}",
      f"v_and_b32 {v(X1)}, 1, {v(LANE)}",
      f"v_lshl_add_u32 {v(AWR)}, {v(AWR)}, 1, {v(X1)}",
      f"v_bfe_u32 {v(X1)}, {v(LANE)}, 4, 1",
      f"v_lshl_add_u32 {v(AWR)}, {v(AWR)}, 1, {v(X1)}",
      f"v_lshrrev_b32 {v(X1)}, 1, {v(X0)}",
      f"v_lshl_add_u32 {v(AWR)}, {v(AWR)}, 1, {v(X1)}",
      f"v_lshlrev_b32 {v(AWR)}, 3, {v(AWR)}",
      f"v_add_u32 {v(AWR)}, {WST}, {v(AWR)}",
      f"v_xor_b32 {v(AWR+1)}, 64, {v(AWR)}")
    o.c("entry, row-sum, record and fragment addresses")
    o(f"s_mul_i32 {s(sT0)}, {s(sG)}, 1280",
      f"s_add_u32 {s(sT0)}, {s(sT0)}, {LIST}",
      f"v_lshrrev_b32 {v(X1)}, 3, {v(LANE)}",
      f"v_and_b32 {v(X2)}, 7, {v(LANE)}",
      f"v_and_b32 {v(X0)}, 3, {v(X1)}",
      f"v_lshl_add_u32 {v(X2)}, {v(X2)}, 2, {v(X0)}",
      f"v_lshl_add_u32 {v(CENT)}, {v(X2)}, 2, {s(sT0)}",
      f"v_mul_u32_u24 {v(CSUM)}, 5120, {v(X3)}",
      f"v_add_u32 {v(CSUM)}, {v(CSUM)}, {v(CENT)}",
      f"s_movk_i32 {s(sINC)}, 0x80",
      f"s_movk_i32 {s(sINC+1)}, 0x80",
      f"s_mul_i32 {s(sT0)}, {s(sG)}, {16*528}",
      f"s_add_u32 {s(sT0)}, {s(sT0)}, {TU}",
      f"v_lshl_add_u32 {v(CTU)}, {v(X3)}, 7, {s(sT0)}",
      f"v_and_b32 {v(X1)}, 5, {v(X1)}",
      f"v_and_b32 {v(X2)}, 6, {v(LANE)}",
      f"v_xor_b32 {v(X1)}, {v(X1)}, {v(X2)}",
      f"v_and_b32 {v(X2)}, 31, {v(LANE)}",
      f"s_lshl_b32 {s(sT0)}, {s(sG)}, 12",
      f"v_lshl_add_u32 {v(X2)}, {v(X2)}, 7, {s(sT0)}",
      f"v_lshl_add_u32 {v(AH)}, {v(X1)}, 4, {v(X2)}")
    for k in range(1, 4): o(f"v_xor_b32 {v(AH+k)}, {16*k}, {v(AH)}")
    o(f"v_lshlrev_b32 {v(AC2)}, 6, {v(X3)}",
      f"v_add_u32 {v(AC2)}, {MISC+128}, {v(AC2)}",
      f"s_lshl2_add_u32 {s(sT1)}, {s(sG)}, {MISC+256}",
      f"v_mov_b32 {v(X1)}, {s(sT1)}")
    stamp(7)
    o(f"s_waitcnt vmcnt({6+ncx})")
    stamp(2)
    fr = lambda mat, e: HF+16*mat+8*e
    for mat in (1, 0):
        for e in range(2):
            o(m4(fr(mat,e), NID if mat else ID, RW+12*e), m4(fr(mat,e)+4, NID if mat else ID, RW+12*e+2))
    def acc(mat):
        return [m4(fr(mat,e)+4*i, ID, RW+12*e+4+4*mat+2*i, v(fr(mat,e)+4*i,4)) for e in range(2) for i in range(2)]
    def pack(mat, e):
        f = fr(mat, e)
        return ([f"v_cvt_pk_bf16_f32 {v(f+i)}, {v(f+2*i)}, {v(f+2*i+1)}" for i in range(4)]
                + [f"ds_write_b128 {v(AWB if mat and e else AWW)}, {v(f,4)} offset:{16384*mat+1024*e}"])
    o(f"s_waitcnt vmcnt({4+ncx})", *acc(1))
    o(f"s_waitcnt vmcnt({2+ncx})", *acc(0))
    o(*pack(1, 0)); o(*pack(1, 1))
    for e in range(2):
        for i in range(4): o(f"v_pk_mul_f32 {v(fr(0,e)+2*i,2)}, {v(fr(0,e)+2*i,2)}, {s(sNL,2)}")
        o(*pack(0, e))
    o(f"s_waitcnt vmcnt({ncx}) lgkmcnt(0)")
    stamp(3)
    o("s_barrier")
    stamp(14)
    def wfrag(mat, ht, ks): return 32*ht + 16*mat + 4*ks
    def wreads(ht):
        return [f"ds_read_b64_tr_b16 {a(wfrag(mat,ht,ks)+2*kk,2)}, {v(AWR+ht)} offset:{8192*mat+1024*ks+512*kk}"
                for mat in range(2) for ks in range(4) for kk in range(2)]
    rdT = lambda i: f"ds_read_b128 {v(T+4*i,4)}, {v(ATU)} offset:{16*i}"
    rdU = lambda ht, i, r=US: f"ds_read_b128 {v(r+4*i,4)}, {v(ATU)} offset:{256+64*ht+16*i}"
    rdH = lambda k: f"ds_read_b128 {v(H+4*k,4)}, {v(AH+k)}"
    bumpH = lambda k: f"v_add_u16 {v(AH+k)}, 0x4000, {v(AH+k)}"
    dec1 = f"v_and_b32 {v(TMP)}, {s(s78)}, {v(CEN)}"
    dec2 = f"v_mad_u32_u24 {v(ATU)}, {v(TMP)}, {s(s66)}, {v(CTU)}"
    o(f"ds_read_b32 {v(TMP)}, {v(CENT)}",
      f"ds_read_b32 {v(X2)}, {v(X1)}",
      f"ds_read_b32 {v(CEN)}, {v(CENT)} offset:128")
    for i in range(4): o(f"ds_read_b128 {v(US+4*i,4)}, {v(AC2)} offset:{16*i}")
    o(*wreads(0)); o(*wreads(1))
    o("s_waitcnt lgkmcnt(15)",
      f"v_and_b32 {v(TMP)}, {s(s78)}, {v(TMP)}",
      f"v_readfirstlane_b32 {s(sN)}, {v(X2)}",
      dec2, dec1)
    for i in range(8): o(m4(W2+4*i, ID, US+2*i))
    if ncx: o("s_waitcnt vmcnt(0)")
    stamp(10)
    o("s_barrier")
    stamp(11)
    for i in range(8): o(rdT(i))
    for i in range(4): o(rdU(0, i, D))
    for i in range(4): o(rdU(1, i))
    o(dec2, "s_setprio 2", f"s_cmp_eq_u32 {s(sN)}, 0")
    stamp(12)
    o("s_barrier")
    stamp(13)
    if bench: o("s_barrier")
    stamp(4)
    o("s_cbranch_scc1 L_cexit")

    def MM(ht, ks, c0=US):
        b = H+4*ks if ks < 4 else HF+4*(ks-4)
        c = c0 if ks == 0 else D+16*ht
        return f"v_mfma_f32_32x32x16_bf16 {v(D+16*ht,16)}, {a(wfrag(ks//4,ht,ks%4),4)}, {v(b,4)}, {v(c,16)}"
    ex = lambda ht, i: f"v_exp_f32_e64 {v(D+16*ht+i)}, {v(D+16*ht+i)} clamp"
    p = lambda b: v(b, 2)
    def partA(ht):
        r, w = D+16*ht, W2+16*ht
        out = [f"v_pk_add_f32 {p(r+2*i)}, {p(r+2*i)}, {s(sC0,2)}" for i in range(8)]
        for g in range(4):
            x, y = r+4*g, r+4*g+2
            out += [f"v_pk_mul_f32 {p(N+2*g)}, {p(w+4*g)}, {p(y)}",
                    f"v_pk_fma_f32 {p(N+2*g)}, {p(w+4*g+2)}, {p(x)}, {p(N+2*g)}",
                    f"v_pk_mul_f32 {p(x)}, {p(x)}, {p(y)}"]
        out += [f"v_pk_mul_f32 {p(r+8*g+2)}, {p(r+8*g)}, {p(r+8*g+4)}" for g in range(2)]
        return out
    rc = lambda ht, i, e="": f"v_rcp_f32{e} {v(D+16*ht+8*(i//2)+2+i%2)}, {v(D+16*ht+8*(i//2)+2+i%2)}"
    def partB(ht):
        r = D+16*ht
        out = []
        for g in range(2):
            out += [f"v_pk_mul_f32 {p(N+4*g)}, {p(N+4*g)}, {p(r+8*g+4)}",
                    f"v_pk_fma_f32 {p(N+4*g)}, {p(N+4*g+2)}, {p(r+8*g)}, {p(N+4*g)}"]
        for g in range(2):
            if ht == 0 and g == 0: out.append(f"v_pk_mul_f32 {p(SA)}, {p(N)}, {p(r+2)}")
            else: out.append(f"v_pk_fma_f32 {p(SA)}, {p(N+4*g)}, {p(r+8*g+2)}, {p(SA)}")
        return out
    cv = lambda j: f"v_cvt_pk_bf16_f32 {v(HF+j)}, {v(HF+2*j)}, {v(HF+2*j+1)}"
    sumw = f"ds_write_b32 {v(CSUM)}, {v(SA)} offset:{DS-128}"

    o.c("---- pipeline fill: first hidden half of tile 0 ----")
    for k in range(4): o(rdH(k))
    for k in range(4): o(bumpH(k))
    for k in range(4):
        o(f"s_waitcnt lgkmcnt({3-k})", m4(HF+8*k, ID, H+4*k), m4(HF+8*k+4, ID, H+4*k+2))
    prod = []
    for k in range(4):
        prod += [f"v_mul_f32 {v(HF+8*k+i)}, {v(HF+8*k+i)}, {v(T+8*k+i)}" for i in range(8)]
        prod += [cv(4*k+i) for i in range(4)]
    cut = [0, 7, 14, 21, 28, 36, 42, 48]
    tr = {2: [rdT(0)], 3: [rdT(1)], 4: [rdT(2)], 5: [rdT(3)], 6: [rdT(4)]}
    for ks in range(7):
        o(MM(0, ks, D), *tr.get(ks, []))
        o(*prod[cut[ks]:cut[ks+1]])
    o(MM(1, 0), rdT(5), MM(0, 7), rdT(6), "s_nop 6")

    o.c("---- tile loop: second hidden half of tile i, first half of tile i+1 ----")
    o(".p2align 3")
    o.label("L_alpha")
    o(f"v_lshl_add_u64 {p(CENT)}, {p(CENT)}, 0, {s(sINC,2)}")
    o(MM(1,1), rdT(7), rdU(0,0), ex(0,0), ex(0,1))
    o(MM(1,2), rdU(0,1), rdU(0,2), ex(0,2), ex(0,3))
    o(MM(1,3), "s_waitcnt lgkmcnt(4)", "s_barrier", rdH(0), rdH(1), ex(0,4))
    o(MM(1,4), rdH(2), rdH(3), ex(0,5), ex(0,6))
    o(MM(1,5), rdU(0,3), f"ds_read_b32 {v(CEN)}, {v(CENT)} offset:128", ex(0,7), ex(0,8))
    o(MM(1,6), f"s_sub_u32 {s(sN)}, {s(sN)}, 1", f"s_cmp_eq_u32 {s(sN)}, 0", ex(0,9), ex(0,10), ex(0,11))
    o(MM(1,7), "s_cbranch_scc1 L_drain", "s_waitcnt lgkmcnt(0)", *[ex(0,i) for i in range(12, 16)])
    o(*partA(0))
    fill = [rc(0, 0, "_e64"), rc(0, 1, "_e64"), bumpH(0), bumpH(1), bumpH(2), bumpH(3), dec1.replace("v_and_b32", "v_and_b32_e64")]
    for k in range(8):
        o(m4(HF+4*k, ID, H+2*k))
        if k < 7: o(fill[k])
    o(rc(0, 2), rc(0, 3))
    o(*partB(0))
    for i in range(16): o(f"v_pk_mul_f32 {p(HF+2*i)}, {p(HF+2*i)}, {p(T+2*i)}")
    o(MM(0,0), cv(0), cv(1), cv(2), cv(3), ex(1,0))
    o(MM(0,1), rdU(1,0), rdU(1,1), cv(4), cv(5), cv(6), cv(7), ex(1,1))
    o(MM(0,2), rdU(1,2), rdU(1,3), cv(8), cv(9), cv(10), cv(11), dec2)
    o(MM(0,3), rdT(0), rdT(1), cv(12), cv(13), cv(14), cv(15), ex(1,2))
    o(MM(0,4), rdT(2), rdT(3), ex(1,3), ex(1,4), ex(1,5))
    o(MM(0,5), rdT(4), rdT(5), ex(1,6), ex(1,7))
    o(MM(0,6), rdT(6), ex(1,8), ex(1,9), ex(1,10))
    o(MM(0,7), *[ex(1,i) for i in range(11, 16)])
    o(*partA(1))
    o(*[rc(1, i) for i in range(4)])
    o(*partB(1))
    o(f"v_add_f32 {v(SA)}, {v(SA)}, {v(SA+1)}", "s_waitcnt lgkmcnt(7)")
    o(MM(1,0), sumw, "s_branch L_alpha")
    o.c("---- pipeline drain: last tile ----")
    o(".p2align 3")
    o.label("L_drain")
    o(*[ex(0,i) for i in range(12, 16)])
    o(*partA(0))
    o(*[rc(0, i) for i in range(4)])
    o(*partB(0))
    o(*[ex(1, i) for i in range(16)])
    o(*partA(1))
    o(*[rc(1, i) for i in range(4)])
    o(*partB(1))
    o(f"v_add_f32 {v(SA)}, {v(SA)}, {v(SA+1)}", sumw, "s_waitcnt lgkmcnt(0)", "s_barrier")
    o.label("L_cexit")
    stamp(5)
    o.label("L_fin")
    if dg >= 0:
        stamp(6)
        from diag import diag_tail
        diag_tail(o, sST, sW, da, dg, K, dw, rel=rel)
    elif stamps:
        stamp(6)
        o("s_load_dwordx2 s[54:55], s[0:1], 72", "s_waitcnt lgkmcnt(0)")
        for i in range(15): o(f"v_mov_b32 {v(i)}, {s(sST+2*i)}")
        o(f"v_mov_b32 v15, {s(sN)}",
          f"s_lshl3_add_u32 {s(sT0)}, s2, {s(sW)}",
          f"s_lshl_b32 {s(sT0)}, {s(sT0)}, 6",
          f"v_mov_b32 v16, {s(sT0)}",
          "s_mov_b64 exec, 1")
        for i in range(4): o(f"global_store_dwordx4 v16, v[{4*i}:{4*i+3}], s[54:55] offset:{16*i}")
    o.label("L_end")
    o.label("L_last")
    o("s_endpgm")

    if abl:
        i0 = o.l.index("L_lloop:"); i1 = o.l.index("L_store:")
        def dropL(x):
            if abl & 1 and ("ds_" in x or x.strip().startswith("v_") or "buffer_" in x): return True
            if abl & 2 and "mfma" in x: return True
            return False
        o.l = o.l[:i0] + [x for x in o.l[i0:i1] if not dropL(x)] + o.l[i1:]
    head = open(f"cdna_kernels/{NAME}.s.ref").read().split("; Override launch")[0]
    return (head + f"; @launch grid=(256,1,1) block=(512,1,1) lds={LDS_BYTES}\n"
        + '.amdgcn_target "amdgcn-amd-amdhsa--gfx950"\n.text\n'
        + f".globl {NAME}_kernel\n.p2align 8\n.type {NAME}_kernel,@function\n{NAME}_kernel:\n"
        + o.text()
        + f'.section .rodata,"a"\n.p2align 6\n.amdhsa_kernel {NAME}_kernel\n'
        + f"  .amdhsa_next_free_vgpr {NV+64}\n  .amdhsa_next_free_sgpr 100\n  .amdhsa_accum_offset {NV}\n"
        + "  .amdhsa_group_segment_fixed_size 0\n  .amdhsa_kernarg_size 80\n  .amdhsa_user_sgpr_count 2\n"
        + "  .amdhsa_user_sgpr_kernarg_segment_ptr 1\n  .amdhsa_system_sgpr_workgroup_id_x 1\n.end_amdhsa_kernel\n")

if __name__ == "__main__":
    kw = dict(x.split("=") for x in sys.argv[2:])
    kw = {k: int(val) for k, val in kw.items()}
    open(sys.argv[1], "w").write(gen(**kw))
```

```python
import sys, struct

NAME = "standalone__sequential_behavior_din__recsys"

HIST = 0
SBUF = 65536
WST  = 69632
TU   = 94208
LIST = 129024
SUMS = 134272
MISC = 144512
LDS_BYTES = MISC + 512
DS = SUMS - LIST
NLOG2E = 0xBFB8AA3B
SH = 30
def f2u(x): return struct.unpack("<I", struct.pack("<f", x))[0]

class Asm:
    def __init__(self): self.l = []
    def __call__(self, *ss):
        for x in ss: self.l.append("    " + x)
    def label(self, s): self.l.append(s + ":")
    def c(self, s): self.l.append("    ; " + s)
    def text(self): return "\n".join(self.l) + "\n"

def v(b, n=1): return f"v{b}" if n == 1 else f"v[{b}:{b+n-1}]"
def a(b, n=1): return f"a{b}" if n == 1 else f"a[{b}:{b+n-1}]"
def s(b, n=1): return f"s{b}" if n == 1 else f"s[{b}:{b+n-1}]"
def m4(d, aa, b, c=0): return f"v_mfma_f32_4x4x4_16b_bf16 {v(d,4)}, {v(aa,2)}, {v(b,2)}, {c}"

def gen(nt=0, stamps=0, dg=-1, da=0, K=20, dw=0, rel=0, bench=0, pf=2, p1=0, p2=0, p3=1, hp=1, vmin=6, pfc=15, pfl=8,
        abl=0, st=0, boost=5, tpos=1, bars=0, rot=0, cyc=0, nearly=20):
    stamps = stamps or dg >= 0
    o = Asm()
    NT = " nt" if nt else ""
    ST = ["", " nt", " sc1", " sc0 sc1"][st]
    sW, sG, sGG, sN = 20, 21, 22, 23
    sM = 24
    sB = 34
    sB2, s78, sM0, sK, s66 = 39, 40, 41, 42, 43
    sNL, sC0 = 44, 46
    sSRD = 48
    sT0, sT1 = 52, 53
    sINC = 54
    sV = 3
    sST = 56
    sPC, sPF = 88, 87
    def stamp(i):
        if bench:
            if i in (4, 5):
                o(f"s_memtime {s(sST+2*i,2)}", f"s_memrealtime {s(sST+2*i-4,2)}")
        elif stamps and not (bars and 7 <= i <= 13): o(f"s_memrealtime {s(sST+2*i,2)}")
    LANE = 1
    NV = 192
    X0, X1, X2, X3, X4, X5 = 22, 23, 24, 25, 26, 27
    VO = 28
    M, INFO, E, POS = 2, 7, 12, 17
    LF = 2
    TB, RB1, RW2, AW2, AB1 = 32, 40, 48, 49, 50
    ATW, AUW, CE, CO, ALD, AENT = 52, 53, 54, 55, 56, 57
    LID, ATR, F0, UD = 58, 60, 64, 96
    ACC, TR, LE, SOP, SUM = 116, 132, 148, 164, 168
    ASR, CSW, ASW, MSK, ENT, B2, AOUT, ACNT, HPD = range(170, 179)
    AU = 180
    D, T, HF, H, W2, US, N = 0, 32, 64, 96, 112, 144, 160
    SA, ID, AH = 168, 170, 172
    CENT, CSUM, ATU, CEN, CTU, TMP = range(176, 182)
    RW, NID, AWW, AWB, AWR, AC2 = 32, 182, 184, 185, 186, 188
    def code_prefetch(n, label):
        if pf:
            o(f"s_mul_i32 {s(sT1)}, {s(sG)}, {64*n}",
              f"s_min_u32 {s(sT1)}, {s(sT1)}, L_last-{label}-{64*(n-1)}",
              f"s_add_u32 {s(sT1)}, {s(sT1)}, {label}-L_pc",
              f"s_add_u32 {s(sPC)}, {s(sPC)}, {s(sT1)}",
              f"s_addc_u32 {s(sPC+1)}, {s(sPC+1)}, 0")
            for i in range(n): o(f"s_load_dword {s(sPF)}, {s(sPC,2)}, {64*i}")

    stamp(0)
    o("s_load_dwordx16 s[4:19], s[0:1], 0",
      "v_lshrrev_b32 v2, 6, v0",
      "s_cmp_ge_u32 s2, 0x100",
      f"v_readfirstlane_b32 {s(sW)}, v2",
      "s_cbranch_scc1 L_end",
      f"v_and_b32 {v(LANE)}, 63, v0")
    if pf:
        o(f"s_getpc_b64 {s(sPC,2)}")
        o.label("L_pc")
    o(f"s_and_b32 {s(sG)}, {s(sW)}, 3",
      f"s_cmp_lt_u32 {s(sW)}, 4",
      "s_cbranch_scc0 L_l0")
    o.c("==== waves 0-3, first loads: w1 ====")
    o.c("wave g owns rows 16g..16g+15; slot (lane&7) of row d holds chunk 4*half + 2*(ht ^ d1) + sub")
    o(f"s_lshl_b32 {s(sT0)}, {s(sG)}, 11",
      f"v_lshrrev_b32 {v(X2)}, 2, {v(LANE)}",
      f"v_xor_b32 {v(X2)}, {v(X2)}, {v(LANE)}",
      f"v_and_b32 {v(X2)}, 4, {v(X2)}",
      f"v_and_b32 {v(X3)}, 2, {v(LANE)}",
      f"v_and_b32 {v(X0)}, 0x39, {v(LANE)}",
      f"v_lshl_add_u32 {v(X0)}, {v(X0)}, 4, {s(sT0)}",
      f"v_lshl_add_u32 {v(X0)}, {v(X2)}, 3, {v(X0)}",
      f"v_lshl_add_u32 {v(VO)}, {v(X3)}, 5, {v(X0)}",
      "s_waitcnt lgkmcnt(0)")
    stamp(1)
    for f in range(1, 4): o(f"v_add_u32 {v(VO+f)}, {8192*f}, {v(VO)}")
    o(f"s_add_u32 {s(sT0)}, {s(sT0)}, {WST}",
      f"s_add_u32 m0, {s(sT0)}, 8192",
      f"v_lshl_add_u32 {v(AWW)}, {v(LANE)}, 4, {s(sT0)}",
      f"v_and_b32 {v(X0)}, 3, {v(LANE)}",
      f"v_lshlrev_b32 {v(X1)}, 4, {v(X0)}")
    for n, f in ((0, 2), (2, 1), (1, 0)):
        for e in range(2):
            o(f"global_load_dwordx4 {v(RW+12*e+4*n,4)}, {v(VO+f)}, s[10:11] offset:{1024*e}")
    o(f"global_load_lds_dwordx4 {v(VO+3)}, s[10:11]",
      f"global_load_lds_dwordx4 {v(VO+3)}, s[10:11] offset:1024",
      "s_branch L_c1")
    ncx = 0

    o.c("==== waves 4-7: row compaction, gathers, scores, weighted sum ====")
    o.label("L_l0")
    o("s_setprio 3",
      f"s_lshl2_add_u32 {s(sGG)}, s2, {s(sG)}",
      f"s_mul_i32 {s(sT0)}, {s(sGG)}, 640",
      f"v_lshl_add_u32 {v(VO)}, {v(LANE)}, 1, {s(sT0)}",
      f"s_mul_i32 {s(sT0)}, {s(sGG)}, 40960",
      "s_waitcnt lgkmcnt(0)")
    stamp(1)
    for j in range(5): o(f"global_load_ushort {v(M+j)}, {v(VO)}, s[8:9] offset:{128*j}")
    code_prefetch(pfl, "L_pfl")
    o(f"s_load_dword {s(sB2)}, s[16:17], 0",
      f"s_add_u32 {s(sSRD)}, s6, {s(sT0)}",
      f"s_addc_u32 {s(sSRD+1)}, s7, 0",
      f"s_mov_b32 {s(sSRD+2)}, 40960",
      f"s_mov_b32 {s(sSRD+3)}, 0x20000",
      f"s_mul_i32 {s(sB)}, {s(sG)}, 1280",
      f"s_add_u32 {s(sB)}, {s(sB)}, {LIST}",
      f"s_mov_b32 {s(sK)}, 0xff80",
      f"s_lshl_b32 {s(sM0)}, {s(sG)}, 12",
      f"s_mov_b32 m0, {s(sM0)}")
    o.c("pad entries, then (row*128 | sample*8) in the high half")
    for i in range(4): o(f"v_mov_b32 {v(F0+i)}, {s(sK)}")
    o(f"v_lshl_add_u32 {v(F0+4)}, {v(LANE)}, 4, {s(sB)}",
      f"v_lshl_add_u32 {v(F0+5)}, {v(LANE)}, 2, {s(sB)}",
      f"ds_write_b128 {v(F0+4)}, {v(F0,4)}",
      f"ds_write_b32 {v(F0+5)}, {v(F0)} offset:1024",
      f"v_mul_u32_u24 {v(INFO)}, 8414824, {v(LANE)}")
    for j in range(1, 5): o(f"v_add_u32 {v(INFO+j)}, {hex(8414824*64*j)}, {v(INFO)}")
    o(f"v_lshrrev_b32 {v(X1)}, 3, {v(LANE)}",
      f"v_and_b32 {v(X2)}, 7, {v(LANE)}",
      f"v_lshlrev_b32 {v(ALD)}, 4, {v(X1)}",
      f"v_and_b32 {v(CE)}, 6, {v(X1)}",
      f"v_xor_b32 {v(CE)}, {v(CE)}, {v(X2)}",
      f"v_lshlrev_b32 {v(CE)}, 4, {v(CE)}",
      f"v_xor_b32 {v(CO)}, 16, {v(CE)}",
      f"v_and_b32 {v(X1)}, 3, {v(X1)}",
      f"v_lshl_add_u32 {v(AENT)}, {v(X2)}, 2, {v(X1)}",
      f"s_lshl2_add_u32 {s(sT1)}, {s(sG)}, {MISC+256}",
      f"v_mov_b32 {v(ACNT)}, {s(sT1)}")
    o.c("b1 (lanes 0-31) and w2 (lanes 32-63), target, last history rows")
    o(f"s_lshl_b32 {s(sT1)}, {s(sGG)}, 11",
      f"v_lshrrev_b32 {v(X3)}, 4, {v(LANE)}",
      f"v_and_b32 {v(X0)}, 15, {v(LANE)}",
      f"v_lshl_add_u32 {v(AOUT)}, {v(X0)}, 7, {s(sT1)}",
      f"v_lshl_add_u32 {v(VO+1)}, {v(X3)}, 4, {v(AOUT)}",
      f"v_lshlrev_b32 {v(AW2)}, 2, {v(LANE)}")
    late = [
      f"v_lshrrev_b32 {v(X4)}, 5, {v(LANE)}",
      f"v_lshrrev_b32 {v(X1)}, 2, {v(LANE)}",
      f"v_and_or_b32 {v(X2)}, {v(X1)}, 6, {v(X4)}",
      f"v_lshlrev_b32 {v(X2)}, 4, {v(X2)}",
      f"v_and_b32 {v(VO)}, 3, {v(LANE)}",
      f"v_lshlrev_b32 {v(VO+3)}, 3, {v(VO)}",
      f"v_xor_b32 {v(X2)}, {v(X2)}, {v(VO+3)}",
      f"v_lshl_add_u32 {v(ATR)}, {v(X1)}, 7, {v(X2)}",
      f"v_add_u32 {v(ATR)}, {s(sM0)}, {v(ATR)}"]
    late += [f"v_xor_b32 {v(ATR+k)}, {32*k}, {v(ATR)}" for k in range(1, 4)]
    late += [f"v_mov_b64 {v(ACC+i,2)}, 0" for i in range(0, 16, 2)]
    late += [
      f"v_lshl_add_u32 {v(AOUT)}, {v(X4)}, 4, {v(AOUT)}",
      f"v_and_b32 {v(X2)}, 1, {v(X3)}",
      f"v_lshl_add_u32 {v(AOUT)}, {v(X2)}, 5, {v(AOUT)}",
      f"s_lshl_b32 {s(sINC)}, {s(sG)}, 10",
      f"s_add_u32 {s(sINC)}, {s(sINC)}, {SBUF}",
      f"v_lshl_add_u32 {v(ASR)}, {v(LANE)}, 3, {s(sINC)}",
      f"v_and_b32 {v(CSW)}, 7, {v(X1)}",
      f"v_lshl_add_u32 {v(CSW)}, {v(CSW)}, 7, {s(sINC)}",
      f"v_lshl_add_u32 {v(CSW)}, {v(VO)}, 1, {v(CSW)}",
      f"v_and_b32 {v(X1)}, 3, {v(X1)}",
      f"s_mul_i32 {s(sINC)}, {s(sG)}, {16*528}",
      f"s_add_u32 {s(sINC)}, {s(sINC)}, {TU}",
      f"v_mul_u32_u24 {v(ATW)}, 528, {v(X0)}",
      f"v_add_u32 {v(ATW)}, {s(sINC)}, {v(ATW)}",
      f"v_lshl_add_u32 {v(AUW)}, {v(X3)}, 4, {v(ATW)}",
      f"v_lshl_add_u32 {v(ATW)}, {v(X3)}, 5, {v(ATW)}",
      f"v_lshl_add_u32 {v(AU)}, {v(X3)}, 3, {v(X1)}",
      f"v_lshl_add_u32 {v(AU)}, {v(AU)}, 7, {v(VO+3)}",
      f"v_lshl_add_u32 {v(AU)}, {v(X2)}, 5, {v(AU)}",
      f"v_and_b32 {v(X1)}, 2, {v(X1)}",
      f"v_lshl_add_u32 {v(AU)}, {v(X1)}, 5, {v(AU)}",
      f"v_add_u32 {v(AU)}, {WST+16384}, {v(AU)}",
      f"v_xor_b32 {v(AU+1)}, 64, {v(AU)}",
      f"v_xor_b32 {v(AU+2)}, 32, {v(AU)}",
      f"v_xor_b32 {v(AU+3)}, 0x60, {v(AU)}",
      f"v_add_u32 {v(X5)}, {MISC}, {v(AW2)}",
      f"v_lshlrev_b32 {v(AB1)}, 3, {v(X3)}",
      f"v_add_u32 {v(AB1)}, {MISC}, {v(AB1)}",
      f"v_lshlrev_b32 {v(VO+2)}, 4, {v(VO)}",
      f"v_mov_b32 {v(LID)}, 0x3f80",
      f"v_mov_b32 {v(LID+1)}, 0",
      f"v_lshlrev_b64 {v(LID,2)}, {v(VO+2)}, {v(LID,2)}",
      f"s_mov_b32 {s(sNL)}, {hex(NLOG2E)}",
      f"s_mov_b32 {s(sNL+1)}, {hex(NLOG2E)}",
      f"s_mov_b32 {s(sC0)}, {hex(f2u(2.0**-SH))}",
      f"s_movk_i32 {s(s78)}, 0x78",
      f"v_mov_b32 {v(MSK)}, 0",
      f"v_mov_b32 {v(UD+16)}, {hex(f2u(-float(SH)))}",
      f"v_mov_b32 {v(UD+17)}, {hex(f2u(-float(SH)))}"]
    o(*late[:nearly])
    o("s_mov_b32 exec_hi, 0",
      f"global_load_dword {v(RW2)}, {v(AW2)}, s[12:13]",
      "s_not_b64 exec, exec",
      f"global_load_dword {v(RW2)}, {v(AW2)}, s[14:15] offset:-128",
      "s_mov_b64 exec, -1",
      f"global_load_dwordx4 {v(TB,4)}, {v(VO+1)}, s[4:5]",
      f"global_load_dwordx4 {v(TB+4,4)}, {v(VO+1)}, s[4:5] offset:64")
    if hp:
        o(f"v_min_u32 {v(HPD)}, {2*hp-1}, {v(LANE)}",
          f"v_lshlrev_b32 {v(HPD)}, 6, {v(HPD)}",
          f"v_sub_u32 {v(HPD)}, {40960-64}, {v(HPD)}",
          f"buffer_load_dword {v(HPD)}, {v(HPD)}, {s(sSRD,4)}, 0 offen")
    nh = 1 if hp else 0
    def dma_tile(le, last=0x3400):
        for i in range(4):
            o(f"v_and_or_b32 {v(le+i)}, {v(le+i)}, {s(sK)}, {v(CO if i & 1 else CE)}",
              f"buffer_load_dwordx4 {v(le+i)}, {s(sSRD,4)}, 0 offen{NT} lds")
            if i < 3 or last: o(f"s_add_u32 m0, m0, {hex(0x400 if i < 3 else last)}")
    issued = [1]
    def dma_point(pt):
        for k, pk in ((1, p1), (2, p2), (3, p3)):
            if pk == pt:
                assert issued[0] == k
                dma_tile(LE+4*k); issued[0] += 1
    stamp(7)
    o(f"s_waitcnt vmcnt({4+nh})")
    stamp(2)
    for j in range(5): o(f"v_cmp_ne_u32_e64 {s(sM+2*j,2)}, 0, {v(M+j)}")
    for j in range(5):
        o(f"s_mov_b64 exec, {s(sM+2*j,2)}",
          f"v_mbcnt_lo_u32_b32 {v(POS+j)}, {s(sM+2*j)}, 0",
          f"v_mbcnt_hi_u32_b32 {v(POS+j)}, {s(sM+2*j+1)}, {v(POS+j)}",
          f"v_alignbit_b32 {v(E+j)}, {v(M+j)}, {v(INFO+j)}, 16",
          f"v_lshl_add_u32 {v(POS+j)}, {v(POS+j)}, 2, {s(sB+j)}",
          f"ds_write_b32 {v(POS+j)}, {v(E+j)}")
        if j < 4:
            o(f"s_bcnt1_i32_b64 {s(sT0)}, {s(sM+2*j,2)}",
              f"s_lshl2_add_u32 {s(sB+j+1)}, {s(sT0)}, {s(sB+j)}")
    o(f"s_bcnt1_i32_b64 {s(sT0)}, {s(sM+8,2)}",
      f"s_lshl2_add_u32 {s(sT0)}, {s(sT0)}, {s(sB+4)}",
      f"s_sub_u32 {s(sT0)}, {s(sT0)}, {s(sB)}",
      f"s_add_u32 {s(sT0)}, {s(sT0)}, 124",
      f"s_lshr_b32 {s(sN)}, {s(sT0)}, 7")
    if bench: o(f"s_mov_b32 {s(sN)}, {bench}")
    o(f"s_max_u32 {s(sV)}, {s(sN)}, {vmin}",
      f"s_lshl_b32 {s(sT1)}, {s(sV)}, 7",
      f"s_add_u32 {s(sT1)}, {s(sT1)}, {s(sB)}",
      f"s_sub_u32 {s(sT1)}, {s(sT1)}, 1024")
    o.c("tiles are taken last to first; V = max(tiles, %d) steps, the leading ones empty" % vmin)
    o("s_mov_b64 exec, -1",
      f"v_add_u32 {v(ALD)}, {s(sT1)}, {v(ALD)}")
    for i in range(4): o(f"ds_read_b128 {v(LE+4*i,4)}, {v(ALD)} offset:{896-128*i}")
    o(f"v_mov_b32 {v(SUM)}, {s(sN)}",
      f"v_lshl_add_u32 {v(AENT)}, {v(AENT)}, 2, {s(sT1)}",
      "s_waitcnt lgkmcnt(3)")
    dma_tile(LE)
    stamp(8)
    o(f"ds_write_b32 {v(ACNT)}, {v(SUM)}",
      "s_waitcnt lgkmcnt(1)")
    dma_point(0)
    o.label("L_pfl")
    o(*late[nearly:])
    o(f"ds_write2st64_b64 {v(ASR)}, {v(ACC,2)}, {v(ACC,2)} offset1:1")
    def refill_read():
        for i in range(4): o(f"ds_read_b128 {v(LF+4*i,4)}, {v(ALD)} offset:{384-128*i}")
    def refill_calc():
        for i in range(16): o(f"v_and_or_b32 {v(LF+i)}, {v(LF+i)}, {s(sK)}, {v(CO if i & 1 else CE)}")
    o(f"s_waitcnt vmcnt({4*issued[0] + nh + 2})",
      f"ds_write_b32 {v(X5)}, {v(RW2)}")
    for t in range(4): o(f"ds_read_b64 {v(RB1+2*t,2)}, {v(AB1)} offset:{32*t}")
    o("s_waitcnt lgkmcnt(0)")
    stamp(3)
    o("s_barrier")
    stamp(14)
    o.c("per-sample bias u = s*(t @ (Wb - Wc) + b1) - shift, scaled target s*t")
    for ks in range(2):
        for t in range(4):
            for kk in range(2):
                o(f"ds_read_b64_tr_b16 {v(F0+16*ks+4*t+2*kk,2)}, {v(AU+t)} offset:{4096*ks+512*kk}")
    for i in range(4): o(m4(UD+4*i, LID, RB1+2*i))
    o(f"s_lshl_b32 {s(sB2)}, {s(sB2)}, 16",
      f"v_mov_b32 {v(B2)}, {s(sB2)}",
      f"s_waitcnt vmcnt({4*issued[0] + nh})")
    for i in range(4): o(m4(TR+4*i, LID, TB+2*i))
    tw = []
    for i in range(4):
        tw += [f"v_mul_f32 {v(TR+4*i+k)}, {s(sNL)}, {v(TR+4*i+k)}" for k in range(4)]
        tw += [f"ds_write_b128 {v(ATW)}, {v(TR+4*i,4)} offset:{128*(i//2)+16*(i%2)}"]
    um = lambda ks, t: f"v_mfma_f32_16x16x32_bf16 {v(UD+4*t,4)}, {v(F0+16*ks+4*t,4)}, {v(TB+4*ks,4)}, {v(UD+4*t,4)}"
    o("s_waitcnt lgkmcnt(8)", um(0,0), um(0,1), *tw[0:2])
    o(um(0,2), *tw[2:4])
    o(um(0,3), "s_waitcnt lgkmcnt(0)", tw[4])
    o(um(1,0), *tw[5:7]); o(um(1,1), *tw[7:10]); o(um(1,2), *tw[10:12]); o(um(1,3), *tw[12:])
    dma_point(1)
    stamp(9)
    for t in range(4):
        for i in range(2): o(f"v_pk_fma_f32 {v(UD+4*t+2*i,2)}, {v(UD+4*t+2*i,2)}, {s(sNL,2)}, {v(UD+16,2)}")
        o(f"ds_write_b128 {v(AUW)}, {v(UD+4*t,4)} offset:{256+64*t}")
    o("s_waitcnt lgkmcnt(0)")
    stamp(10)
    o("s_barrier")
    stamp(11)
    refill_read()
    dma_point(2)
    o("s_waitcnt lgkmcnt(0)")
    refill_calc()
    o(f"s_waitcnt vmcnt({4*(issued[0]-1)})")
    stamp(12)
    o("s_barrier")
    stamp(13)
    o("s_setprio 0")
    dma_point(3)
    assert issued[0] == 4
    if bench: o("s_waitcnt vmcnt(0)", "s_barrier")
    stamp(4)
    o(f"s_cmp_eq_u32 {s(sN)}, 0",
      f"s_mov_b32 {s(sN)}, {s(sV)}",
      "s_cbranch_scc1 L_store",
      "s_waitcnt vmcnt(8)")
    if bars == 2: o(f"s_memrealtime {s(sST+14,2)}")
    o("s_barrier")
    if bars == 1: o(f"s_memrealtime {s(sST+14,2)}")
    o("s_branch L_lf0")
    o.label("L_lloop")
    for k in range(4):
        if bars == 2: o(f"s_memrealtime {s(sST+2*(11 if k == 0 else 7+k),2)}")
        o("s_barrier")
        if bars == 1: o(f"s_memrealtime {s(sST+2*(11 if k == 0 else 7+k),2)}")
        o(f"ds_read_b32 {v(SUM)}, {v(AENT)} offset:{DS+896-128*(k-1)}",
          f"ds_read_b32 {v(SUM+1)}, {v(AENT)} offset:{DS+5120+896-128*(k-1)}",
          f"s_cmp_eq_u32 {s(sN)}, {k}",
          "s_waitcnt lgkmcnt(0)")
        if boost & 1: o("s_setprio 3")
        o(f"v_add_f32 {v(SUM)}, {v(SUM)}, {v(SUM+1)}",
          f"v_fma_f32 {v(SUM)}, {v(SUM)}, {s(sC0)}, {v(B2)}",
          f"v_mul_legacy_f32 {v(SUM)}, {v(SUM)}, {v(MSK)}",
          f"v_cvt_pk_bf16_f32 {v(SUM)}, {v(SUM)}, {v(SUM)}")
        if boost & 4: o(f"v_and_or_b32 {v(ASW)}, {v(ENT)}, {s(s78)}, {v(CSW)}")
        if boost & 1: o("s_setprio 0")
        o(f"ds_write_b16 {v(ASW)}, {v(SUM)}",
          f"ds_read2st64_b64 {v(SOP,4)}, {v(ASR)} offset1:1",
          f"ds_write_b16 {v(ASW)}, {v(MSK)}",
          "s_waitcnt lgkmcnt(1)")
        if boost & 2: o("s_setprio 3")
        for jj in range(4):
            o(f"v_mfma_f32_16x16x32_bf16 {v(ACC+4*jj,4)}, {v(TR+4*jj,4)}, {v(SOP,4)}, {v(ACC+4*jj,4)}")
        if boost & 2: o("s_setprio 0")
        o("s_cbranch_scc1 L_store")
        o.label(f"L_lf{k}")
        o(f"ds_read_b32 {v(ENT)}, {v(AENT)} offset:{896-128*k}",
          f"ds_read_u16_d16_hi {v(MSK)}, {v(AENT)} offset:{896-128*k+2}")
        for jj in range(4):
            for kk in range(2): o(f"ds_read_b64_tr_b16 {v(TR+4*jj+2*kk,2)}, {v(ATR+jj)} offset:{16384*k+2048*kk}")
        o(f"s_add_u32 m0, {s(sM0)}, {16384*k}",
          f"s_cmp_gt_u32 {s(sN)}, {k+4}",
          f"s_cbranch_scc0 L_nf{k}",
          "s_waitcnt lgkmcnt(0)")
        for i in range(4):
            o(f"buffer_load_dwordx4 {v(LF+4*k+i)}, {s(sSRD,4)}, 0 offen{NT} lds")
            if i < 3: o("s_add_u32 m0, m0, 0x400", "s_nop 0")
        o("s_waitcnt vmcnt(8)",
          f"s_branch L_nx{k}")
        o.label(f"L_nf{k}")
        o(f"s_cmp_eq_u32 {s(sN)}, {k+4}",
          "s_waitcnt vmcnt(4)",
          f"s_cbranch_scc1 L_nx{k}",
          "s_waitcnt vmcnt(0)")
        o.label(f"L_nx{k}")
        if not boost & 4:
            o("s_waitcnt lgkmcnt(9)",
              f"v_and_or_b32 {v(ASW)}, {v(ENT)}, {s(s78)}, {v(CSW)}")
    if bars:
        o("s_waitcnt lgkmcnt(0)", f"s_mov_b64 {s(sST+24,2)}, {s(sST+16,2)}", f"s_mov_b64 {s(sST+26,2)}, {s(sST+18,2)}")
    o(f"s_sub_u32 {s(sN)}, {s(sN)}, 4",
      f"v_subrev_u32 {v(AENT)}, 0x200, {v(AENT)}",
      f"s_cmp_gt_u32 {s(sN)}, 4",
      "s_cbranch_scc0 L_lloop",
      f"v_subrev_u32 {v(ALD)}, 0x200, {v(ALD)}")
    refill_read()
    o("s_waitcnt lgkmcnt(0)")
    refill_calc()
    o("s_branch L_lloop")
    o.label("L_store")
    stamp(5)
    o("s_nop 3")
    for i in range(8): o(f"v_cvt_pk_bf16_f32 {v(ACC+i)}, {v(ACC+2*i)}, {v(ACC+2*i+1)}")
    o(f"v_permlane16_swap_b32 {v(ACC)}, {v(ACC+2)}",
      f"v_permlane16_swap_b32 {v(ACC+1)}, {v(ACC+3)}",
      f"global_store_dwordx4 {v(AOUT)}, {v(ACC,4)}, s[18:19]{ST}",
      f"v_permlane16_swap_b32 {v(ACC+4)}, {v(ACC+6)}",
      f"v_permlane16_swap_b32 {v(ACC+5)}, {v(ACC+7)}",
      f"global_store_dwordx4 {v(AOUT)}, {v(ACC+4,4)}, s[18:19] offset:64{ST}")
    o("s_branch L_fin" if stamps else "s_endpgm")

    o.c("==== waves 0-3: weight staging, then the activation unit ====")
    o.label("L_c1")
    code_prefetch(pfc, "L_pfc")
    o(f"v_mov_b32 {v(ID)}, 0x3f80",
      f"v_mov_b32 {v(ID+1)}, 0",
      f"v_mov_b32 {v(NID)}, 0xbf80",
      f"v_mov_b32 {v(NID+1)}, 0",
      f"v_lshlrev_b64 {v(ID,2)}, {v(X1)}, {v(ID,2)}",
      f"v_lshlrev_b64 {v(NID,2)}, {v(X1)}, {v(NID,2)}")
    o(f"s_mov_b32 {s(sNL)}, {hex(NLOG2E)}",
      f"s_mov_b32 {s(sNL+1)}, {hex(NLOG2E)}",
      f"s_mov_b32 {s(sC0)}, {hex(f2u(2.0**-SH))}",
      f"s_mov_b32 {s(sC0+1)}, {hex(f2u(2.0**-SH))}",
      f"s_movk_i32 {s(s66)}, 66",
      f"s_movk_i32 {s(s78)}, 0x78",
      f"v_xor_b32 {v(AWB)}, 32, {v(AWW)}")
    o.c("staging read address (32*half + r)*128 + (r>>1)*64 + (c&1)*32 + sub*16 + (c>>1)*8")
    o(f"v_lshrrev_b32 {v(X3)}, 5, {v(LANE)}",
      f"v_bfe_u32 {v(X1)}, {v(LANE)}, 2, 2",
      f"v_lshl_add_u32 {v(AWR)}, {v(X3)}, 5, {v(X1)}",
      f"v_lshrrev_b32 {v(X1)}, 1, {v(X1)}",
      f"v_lshl_add_u32 {v(AWR)}, {v(AWR)}, 1, {v(X1)}",
      f"v_and_b32 {v(X1)}, 1, {v(LANE)}",
      f"v_lshl_add_u32 {v(AWR)}, {v(AWR)}, 1, {v(X1)}",
      f"v_bfe_u32 {v(X1)}, {v(LANE)}, 4, 1",
      f"v_lshl_add_u32 {v(AWR)}, {v(AWR)}, 1, {v(X1)}",
      f"v_lshrrev_b32 {v(X1)}, 1, {v(X0)}",
      f"v_lshl_add_u32 {v(AWR)}, {v(AWR)}, 1, {v(X1)}",
      f"v_lshlrev_b32 {v(AWR)}, 3, {v(AWR)}",
      f"v_add_u32 {v(AWR)}, {WST}, {v(AWR)}",
      f"v_xor_b32 {v(AWR+1)}, 64, {v(AWR)}")
    o.c("entry, row-sum, record and fragment addresses")
    o(f"s_mul_i32 {s(sT0)}, {s(sG)}, 1280",
      f"s_add_u32 {s(sT0)}, {s(sT0)}, {LIST-256}",
      f"v_lshrrev_b32 {v(X1)}, 3, {v(LANE)}",
      f"v_and_b32 {v(X2)}, 7, {v(LANE)}",
      f"v_and_b32 {v(X0)}, 3, {v(X1)}",
      f"v_lshl_add_u32 {v(X2)}, {v(X2)}, 2, {v(X0)}",
      f"v_lshl_add_u32 {v(CENT)}, {v(X2)}, 2, {s(sT0)}",
      f"v_mul_u32_u24 {v(CSUM)}, 5120, {v(X3)}",
      f"s_movk_i32 {s(sINC)}, 0xff80",
      f"s_movk_i32 {s(sINC+1)}, 0xff7f",
      f"s_mul_i32 {s(sT0)}, {s(sG)}, {16*528}",
      f"s_add_u32 {s(sT0)}, {s(sT0)}, {TU}",
      f"v_lshl_add_u32 {v(CTU)}, {v(X3)}, 7, {s(sT0)}",
      f"v_and_b32 {v(X1)}, 5, {v(X1)}",
      f"v_and_b32 {v(X2)}, 6, {v(LANE)}",
      f"v_xor_b32 {v(X1)}, {v(X1)}, {v(X2)}",
      f"v_and_b32 {v(X2)}, 31, {v(LANE)}",
      f"s_lshl_b32 {s(sT0)}, {s(sG)}, 12",
      f"v_lshl_add_u32 {v(X2)}, {v(X2)}, 7, {s(sT0)}",
      f"v_lshl_add_u32 {v(AH)}, {v(X1)}, 4, {v(X2)}")
    for k in range(1, 4): o(f"v_xor_b32 {v(AH+k)}, {16*k}, {v(AH)}")
    o(f"v_lshlrev_b32 {v(AC2)}, 6, {v(X3)}",
      f"v_add_u32 {v(AC2)}, {MISC+128}, {v(AC2)}",
      f"s_lshl2_add_u32 {s(sT1)}, {s(sG)}, {MISC+256}",
      f"v_mov_b32 {v(X1)}, {s(sT1)}")
    o.label("L_pfc")
    stamp(7)
    o(f"s_waitcnt vmcnt({6+ncx})")
    stamp(2)
    fr = lambda mat, e: HF+16*mat+8*e
    for mat in (1, 0):
        for e in range(2):
            o(m4(fr(mat,e), NID if mat else ID, RW+12*e), m4(fr(mat,e)+4, NID if mat else ID, RW+12*e+2))
    def acc(mat):
        return [m4(fr(mat,e)+4*i, ID, RW+12*e+4+4*mat+2*i, v(fr(mat,e)+4*i,4)) for e in range(2) for i in range(2)]
    def pack(mat, e):
        f = fr(mat, e)
        return ([f"v_cvt_pk_bf16_f32 {v(f+i)}, {v(f+2*i)}, {v(f+2*i+1)}" for i in range(4)]
                + [f"ds_write_b128 {v(AWB if mat and e else AWW)}, {v(f,4)} offset:{16384*mat+1024*e}"])
    o(f"s_waitcnt vmcnt({4+ncx})", *acc(1))
    o(f"s_waitcnt vmcnt({2+ncx})", *acc(0))
    o(*pack(1, 0)); o(*pack(1, 1))
    for e in range(2):
        for i in range(4): o(f"v_pk_mul_f32 {v(fr(0,e)+2*i,2)}, {v(fr(0,e)+2*i,2)}, {s(sNL,2)}")
        o(*pack(0, e))
    o(f"s_waitcnt vmcnt({ncx}) lgkmcnt(0)")
    stamp(3)
    o("s_barrier")
    stamp(14)
    def wfrag(mat, ht, ks): return 32*ht + 16*mat + 4*ks
    def wreads(ht):
        return [f"ds_read_b64_tr_b16 {a(wfrag(mat,ht,ks)+2*kk,2)}, {v(AWR+ht)} offset:{8192*mat+1024*ks+512*kk}"
                for mat in range(2) for ks in range(4) for kk in range(2)]
    rdT = lambda i: f"ds_read_b128 {v(T+4*i,4)}, {v(ATU)} offset:{16*i}"
    rdU = lambda ht, i, r=US: f"ds_read_b128 {v(r+4*i,4)}, {v(ATU)} offset:{256+64*ht+16*i}"
    rdH = lambda k: f"ds_read_b128 {v(H+4*k,4)}, {v(AH+k)}"
    bumpH = lambda k: f"v_add_u16 {v(AH+k)}, 0x4000, {v(AH+k)}"
    dec1 = f"v_and_b32 {v(TMP)}, {s(s78)}, {v(CEN)}"
    dec2 = f"v_mad_u32_u24 {v(ATU)}, {v(TMP)}, {s(s66)}, {v(CTU)}"
    o(f"ds_read_b32 {v(X2)}, {v(X1)}")
    for i in range(4): o(f"ds_read_b128 {v(US+4*i,4)}, {v(AC2)} offset:{16*i}")
    o(*wreads(0)[:8])
    o("s_waitcnt lgkmcnt(12)",
      f"v_lshl_add_u32 {v(CENT)}, {v(X2)}, 7, {v(CENT)}",
      f"v_readfirstlane_b32 {s(sN)}, {v(X2)}",
      f"ds_read_b32 {v(TMP)}, {v(CENT)} offset:128",
      f"ds_read_b32 {v(CEN)}, {v(CENT)}")
    o(*wreads(0)[8:]); o(*wreads(1))
    o(f"v_add_u32 {v(CSUM)}, {v(CSUM)}, {v(CENT)}",
      f"s_max_u32 {s(sV)}, {s(sN)}, {vmin}",
      f"s_sub_u32 {s(sV)}, {s(sV)}, {s(sN)}",
      f"s_lshl_b32 {s(sT0)}, {s(sV)}, 14",
      "s_waitcnt lgkmcnt(15)",
      f"v_and_b32 {v(TMP)}, {s(s78)}, {v(TMP)}",
      dec2, dec1)
    for i in range(8):
        o(m4(W2+4*i, ID, US+2*i))
        if i < 4: o(f"v_add_u16 {v(AH+i)}, {s(sT0)}, {v(AH+i)}")
    stamp(10)
    o("s_barrier")
    stamp(11)
    for i in range(8): o(rdT(i))
    for i in range(4): o(rdU(0, i, D))
    for i in range(4): o(rdU(1, i))
    o(dec2, "s_setprio 2", f"s_cmp_eq_u32 {s(sN)}, 0", "s_cbranch_scc1 L_cexit")
    stamp(12)
    if bench: o("s_barrier")
    o.label("L_skip")
    o(f"s_sub_u32 {s(sV)}, {s(sV)}, 1",
      "s_barrier",
      "s_cbranch_scc0 L_skip")
    stamp(13)
    stamp(4)

    def MM(ht, ks, c0=US):
        b = H+4*ks if ks < 4 else HF+4*(ks-4)
        c = c0 if ks == 0 else D+16*ht
        return f"v_mfma_f32_32x32x16_bf16 {v(D+16*ht,16)}, {a(wfrag(ks//4,ht,ks%4),4)}, {v(b,4)}, {v(c,16)}"
    ex = lambda ht, i: f"v_exp_f32_e64 {v(D+16*ht+i)}, {v(D+16*ht+i)} clamp"
    p = lambda b: v(b, 2)
    def partA(ht):
        r, w = D+16*ht, W2+16*ht
        out = [f"v_pk_add_f32 {p(r+2*i)}, {p(r+2*i)}, {s(sC0,2)}" for i in range(8)]
        for g in range(4):
            x, y = r+4*g, r+4*g+2
            out += [f"v_pk_mul_f32 {p(N+2*g)}, {p(w+4*g)}, {p(y)}",
                    f"v_pk_fma_f32 {p(N+2*g)}, {p(w+4*g+2)}, {p(x)}, {p(N+2*g)}",
                    f"v_pk_mul_f32 {p(x)}, {p(x)}, {p(y)}"]
        out += [f"v_pk_mul_f32 {p(r+8*g+2)}, {p(r+8*g)}, {p(r+8*g+4)}" for g in range(2)]
        return out
    rc = lambda ht, i, e="": f"v_rcp_f32{e} {v(D+16*ht+8*(i//2)+2+i%2)}, {v(D+16*ht+8*(i//2)+2+i%2)}"
    def partB(ht):
        r = D+16*ht
        out = []
        for g in range(2):
            out += [f"v_pk_mul_f32 {p(N+4*g)}, {p(N+4*g)}, {p(r+8*g+4)}",
                    f"v_pk_fma_f32 {p(N+4*g)}, {p(N+4*g+2)}, {p(r+8*g)}, {p(N+4*g)}"]
        for g in range(2):
            if ht == 0 and g == 0: out.append(f"v_pk_mul_f32 {p(SA)}, {p(N)}, {p(r+2)}")
            else: out.append(f"v_pk_fma_f32 {p(SA)}, {p(N+4*g)}, {p(r+8*g+2)}, {p(SA)}")
        return out
    cv = lambda j: f"v_cvt_pk_bf16_f32 {v(HF+j)}, {v(HF+2*j)}, {v(HF+2*j+1)}"
    sumw = f"ds_write_b32 {v(CSUM)}, {v(SA)} offset:{DS+256}"

    o.c("---- pipeline fill: first hidden half of tile 0 ----")
    for k in range(4): o(rdH(k))
    for k in range(4): o(bumpH(k))
    for k in range(4):
        o(f"s_waitcnt lgkmcnt({3-k})", m4(HF+8*k, ID, H+4*k), m4(HF+8*k+4, ID, H+4*k+2))
    prod = []
    for k in range(4):
        prod += [f"v_mul_f32 {v(HF+8*k+i)}, {v(HF+8*k+i)}, {v(T+8*k+i)}" for i in range(8)]
        prod += [cv(4*k+i) for i in range(4)]
    cut = [0, 7, 14, 21, 28, 36, 42, 48]
    tr = {2: [rdT(0)], 3: [rdT(1)], 4: [rdT(2)], 5: [rdT(3)], 6: [rdT(4)]}
    for ks in range(7):
        o(MM(0, ks, D), *tr.get(ks, []))
        o(*prod[cut[ks]:cut[ks+1]])
    o(MM(1, 0), rdT(5), MM(0, 7), rdT(6), "s_nop 6")

    o.c("---- tile loop: second hidden half of tile i, first half of tile i+1 ----")
    o(".p2align 3")
    o.label("L_alpha")
    o(f"v_lshl_add_u64 {p(CENT)}, {p(CENT)}, 0, {s(sINC,2)}")
    o(MM(1,1), rdT(7), rdU(0,0), ex(0,0), ex(0,1))
    o(MM(1,2), rdU(0,1), rdU(0,2), ex(0,2), ex(0,3))
    o(MM(1,3), "s_waitcnt lgkmcnt(4)", "s_barrier", rdH(0), rdH(1), ex(0,4))
    o(MM(1,4), rdH(2), rdH(3), ex(0,5), ex(0,6))
    o(MM(1,5), rdU(0,3), f"ds_read_b32 {v(CEN)}, {v(CENT)}", ex(0,7), ex(0,8))
    o(MM(1,6), f"s_sub_u32 {s(sN)}, {s(sN)}, 1", f"s_cmp_eq_u32 {s(sN)}, 0", ex(0,9), ex(0,10), ex(0,11))
    o(MM(1,7), "s_cbranch_scc1 L_drain", "s_waitcnt lgkmcnt(0)", *[ex(0,i) for i in range(12, 16)])
    o(*partA(0))
    fill = [rc(0, 0, "_e64"), rc(0, 1, "_e64"), bumpH(0), bumpH(1), bumpH(2), bumpH(3), dec1.replace("v_and_b32", "v_and_b32_e64")]
    for k in range(8):
        o(m4(HF+4*k, ID, H+2*k))
        if k < 7: o(fill[k])
    o(rc(0, 2), rc(0, 3))
    o(*partB(0))
    for i in range(16): o(f"v_pk_mul_f32 {p(HF+2*i)}, {p(HF+2*i)}, {p(T+2*i)}")
    o(MM(0,0), cv(0), cv(1), cv(2), cv(3), ex(1,0))
    o(MM(0,1), rdU(1,0), rdU(1,1), cv(4), cv(5), cv(6), cv(7), ex(1,1))
    o(MM(0,2), rdU(1,2), rdU(1,3), cv(8), cv(9), cv(10), cv(11), dec2)
    o(MM(0,3), rdT(0), rdT(1), cv(12), cv(13), cv(14), cv(15), ex(1,2))
    o(MM(0,4), rdT(2), rdT(3), ex(1,3), ex(1,4), ex(1,5))
    o(MM(0,5), rdT(4), rdT(5), ex(1,6), ex(1,7))
    o(MM(0,6), rdT(6), ex(1,8), ex(1,9), ex(1,10))
    o(MM(0,7), *[ex(1,i) for i in range(11, 16)])
    o(*partA(1))
    o(*[rc(1, i) for i in range(4)])
    o(*partB(1))
    o(f"v_add_f32 {v(SA)}, {v(SA)}, {v(SA+1)}", "s_waitcnt lgkmcnt(7)")
    o(MM(1,0), sumw, "s_branch L_alpha")
    o.c("---- pipeline drain: last tile ----")
    o(".p2align 3")
    o.label("L_drain")
    o(*[ex(0,i) for i in range(12, 16)])
    o(*partA(0))
    o(*[rc(0, i) for i in range(4)])
    o(*partB(0))
    o(*[ex(1, i) for i in range(16)])
    o(*partA(1))
    o(*[rc(1, i) for i in range(4)])
    o(*partB(1))
    o(f"v_add_f32 {v(SA)}, {v(SA)}, {v(SA+1)}", sumw, "s_waitcnt lgkmcnt(0)", "s_barrier")
    o.label("L_cexit")
    stamp(5)
    o.label("L_fin")
    if dg >= 0:
        stamp(6)
        from diag import diag_tail
        diag_tail(o, sST, sW, da, dg, K, dw, rel=rel)
    elif stamps:
        stamp(6)
        o("s_load_dwordx2 s[54:55], s[0:1], 72", "s_waitcnt lgkmcnt(0)")
        for i in range(15): o(f"v_mov_b32 {v(i)}, {s(sST+2*i)}")
        o(f"v_mov_b32 v15, {s(sN)}",
          f"s_lshl3_add_u32 {s(sT0)}, s2, {s(sW)}",
          f"s_lshl_b32 {s(sT0)}, {s(sT0)}, 6",
          f"v_mov_b32 v16, {s(sT0)}",
          "s_mov_b64 exec, 1")
        for i in range(4): o(f"global_store_dwordx4 v16, v[{4*i}:{4*i+3}], s[54:55] offset:{16*i}")
    o.label("L_end")
    o.label("L_last")
    o("s_endpgm")

    if abl:
        i0 = o.l.index("L_lloop:"); i1 = o.l.index("L_store:")
        def dropL(x):
            if abl & 1 and ("ds_" in x or x.strip().startswith("v_") or "buffer_" in x): return True
            if abl & 2 and "mfma" in x: return True
            return False
        o.l = o.l[:i0] + [x for x in o.l[i0:i1] if not dropL(x)] + o.l[i1:]
    if cyc: o.l = [x.replace("s_memrealtime", "s_memtime") for x in o.l]
    head = open(f"cdna_kernels/{NAME}.s.ref").read().split("; Override launch")[0]
    return (head + f"; @launch grid=(256,1,1) block=(512,1,1) lds={LDS_BYTES}\n"
        + '.amdgcn_target "amdgcn-amd-amdhsa--gfx950"\n.text\n'
        + f".globl {NAME}_kernel\n.p2align 8\n.type {NAME}_kernel,@function\n{NAME}_kernel:\n"
        + o.text()
        + f'.section .rodata,"a"\n.p2align 6\n.amdhsa_kernel {NAME}_kernel\n'
        + f"  .amdhsa_next_free_vgpr {NV+64}\n  .amdhsa_next_free_sgpr 100\n  .amdhsa_accum_offset {NV}\n"
        + "  .amdhsa_group_segment_fixed_size 0\n  .amdhsa_kernarg_size 80\n  .amdhsa_user_sgpr_count 2\n"
        + "  .amdhsa_user_sgpr_kernarg_segment_ptr 1\n  .amdhsa_system_sgpr_workgroup_id_x 1\n.end_amdhsa_kernel\n")

if __name__ == "__main__":
    kw = dict(x.split("=") for x in sys.argv[2:])
    kw = {k: int(val) for k, val in kw.items()}
    open(sys.argv[1], "w").write(gen(**kw))
```

```python
import sys, struct, re, math

NAME = "standalone__sequential_behavior_din__recsys"

HIST = 0
SBUF = 65536
WST  = 69632
LIST = 95232
SUMS = 100352
MISC = 110848
OHT  = 111616
LDS_BYTES = OHT + 512
DS = SUMS - LIST
SH = 30
FA, FB = 0xbfd4, 0x3f5f
def f2u(x): return struct.unpack("<I", struct.pack("<f", x))[0]
NLOG2E = f2u(-math.log2(math.e))
NLOG2E_B = f2u(-math.log2(math.e) / 0.87109375)

class Asm:
    def __init__(self): self.l = []
    def __call__(self, *ss):
        for x in ss: self.l.append("    " + x)
    def label(self, s): self.l.append(s + ":")
    def c(self, s): self.l.append("    ; " + s)
    def text(self): return "\n".join(self.l) + "\n"
    def even(self, start):
        short = re.compile(r"\s*(v_exp_f32|v_rcp_f32|v_fmac_f32|v_mul_f32|v_add_f32|v_and_b32|v_permlane16_swap_b32) ")
        n4 = [i for i in range(self.l.index(start + ":") + 1, len(self.l))
              if short.match(self.l[i]) or re.match(r"\s*s_(?!mem)", self.l[i])]
        if len(n4) % 2:
            i = [j for j in n4 if short.match(self.l[j]) and "perm" not in self.l[j]][-1]
            self.l[i] = re.sub(r"(v_\w+) ", r"\1_e64 ", self.l[i], 1)

def v(b, n=1): return f"v{b}" if n == 1 else f"v[{b}:{b+n-1}]"
def a(b, n=1): return f"a{b}" if n == 1 else f"a[{b}:{b+n-1}]"
def s(b, n=1): return f"s{b}" if n == 1 else f"s[{b}:{b+n-1}]"
def m4(d, aa, b, c=0): return f"v_mfma_f32_4x4x4_16b_bf16 {v(d,4)}, {v(aa,2)}, {v(b,2)}, {c}"
def m16(d, aa, b, c): return f"v_mfma_f32_16x16x32_bf16 {v(d,4)}, {v(aa,4)}, {v(b,4)}, {c}"
def k16(d, aa, b): return f"v_mfma_f32_16x16x16_bf16 {v(d,4)}, {v(aa,2)}, {v(b,2)}, 0"
def weave(main, fill, k=1):
    out, j = [], 0
    for x in main:
        out.append(x); out += fill[j:j+k]; j += k
    return out + fill[j:]

def gen(nt=1, stamps=0, dg=-1, da=0, K=20, dw=0, rel=0, bench=0, pfd=1, pro=1133, sched=24567,
        abl=0, st=2, bars=0, cyc=0, rot=1, es=1, eb=1, ov=0, ge=1):
    vmin = 6
    pro = [int(x) for x in f"{pro:04d}"]; sched = [int(x) for x in f"{sched:06d}"]
    assert sched[2] >= 2 + ge and sched[4] >= 4 + ge
    stamps = stamps or dg >= 0
    o = Asm()
    NT = " nt" if nt else ""
    ST = ["", " nt", " sc1", " sc0 sc1"][st]
    sV = 3
    sW, sG, sGG, sN = 20, 21, 22, 23
    sM = 24
    sB = 34
    s78, sM0, sK, sSL = 40, 41, 42, 43
    sNL, sC0, sNB = 44, 46, 24
    sSRD = 48
    sT0, sT1 = 52, 53
    sINC = 54
    sST = 56
    sPC = 88
    sE, sX = 34, 36
    def stamp(i):
        if bench:
            if i in (4, 5):
                o(f"s_memtime {s(sST+2*i,2)}", f"s_memrealtime {s(sST+2*i-4,2)}")
        elif stamps and not (bars and 7 <= i <= 13) and (stamps == 1 or i in (0, 5, 6, 11)):
            o(f"s_memrealtime {s(sST+2*i,2)}")
    LANE = 1
    NV = 192
    X0, X1, X2, X3, X4, X5 = 22, 23, 24, 25, 26, 27
    VO = 28
    M, INFO, E, POS = 2, 7, 12, 17
    LF = 2
    CE, CO, ALD, AENT, ATR, F0 = 54, 55, 56, 57, 60, 64
    GL, GE, GT = 58, 59, 72
    ACC, TR, LE, SOP, SUM = 116, 132, 148, 164, 168
    ASR, CSW, MSK, ENT, B2, AOUT, ACNT, N8 = range(170, 178)
    ASW, OB = 180, 184
    D, T, HF, H = (0, 16), (32, 48), (64, 80), (96, 104)
    W2, TT, UT, N, OH = 112, 128, 136, 144, (152, 154)
    AH, CENT, CSUM, ID, SA, SB, CEN, COH = 156, 158, 159, 160, 162, 164, 166, 168
    AWR, AWW, AC2, AB1, OHV, SEL = 170, 174, 175, 176, 178, 180
    RW, TB, RW2, AW2, RB1, PID, NID = 32, 56, 6, 7, 8, 12, 14
    UF, UD, TD = 64, 96, 16

    stamp(0)
    o("s_load_dwordx4 s[8:11], s[0:1], 16",
      "v_lshrrev_b32 v2, 6, v0",
      "s_cmp_ge_u32 s2, 0x100",
      f"v_readfirstlane_b32 {s(sW)}, v2",
      "s_cbranch_scc1 L_end",
      f"v_and_b32 {v(LANE)}, 63, v0")
    if pfd:
        o.c("each wave pulls one 128-byte line of this code into L2")
        o(f"s_getpc_b64 {s(sPC,2)}")
        o.label("L_pc")
        o(f"s_and_b32 {s(sT0)}, s2, 0x78",
          f"s_add_u32 {s(sT0)}, {s(sT0)}, {s(sW)}",
          f"s_lshl_b32 {s(sT0)}, {s(sT0)}, 7",
          f"s_min_u32 {s(sT0)}, {s(sT0)}, L_last-L_pc-64",
          "v_and_b32 v20, 32, v0",
          f"v_lshl_add_u32 v20, v20, 1, {s(sT0)}",
          f"global_load_dword v21, v20, {s(sPC,2)}")
    kargs = ["s_load_dwordx4 s[4:7], s[0:1], 0", "s_load_dwordx8 s[12:19], s[0:1], 32"]
    o(f"s_and_b32 {s(sG)}, {s(sW)}, 3",
      f"s_lshl2_add_u32 {s(sGG)}, s2, {s(sG)}",
      f"s_cmp_lt_u32 {s(sW)}, 4",
      "s_cbranch_scc1 L_l0")
    o.c("==== waves 4-7, first loads ====")
    o.c("a wave stages 16 rows of w1; slot p of row d holds chunk p ^ 2*d1 ^ 4*d4")
    if rot:
        o(f"s_lshr_b32 {s(sT0)}, s2, 3", f"s_add_u32 {s(sT0)}, {s(sT0)}, {s(sG)}", f"s_and_b32 {s(sT0)}, {s(sT0)}, 3")
    sR = sT0 if rot else sG
    o(f"s_and_b32 {s(sT1)}, {s(sR)}, 1",
      f"s_lshl_b32 {s(sT0)}, {s(sR)}, 11",
      f"s_lshl_b32 {s(sT1)}, {s(sT1)}, 6",
      f"s_or_b32 {s(sT1)}, {s(sT1)}, {s(sT0)}",
      f"v_and_b32 {v(X4)}, 16, {v(LANE)}",
      f"v_lshlrev_b32 {v(X2)}, 4, {v(LANE)}",
      f"v_lshlrev_b32 {v(X0)}, 1, {v(X4)}",
      f"v_xor_b32 {v(X0)}, {v(X0)}, {v(X2)}",
      f"v_xor_b32 {v(VO)}, {s(sT1)}, {v(X0)}")
    for f in range(1, 4): o(f"v_add_u32 {v(VO+f)}, {8192*f}, {v(VO)}")
    o(f"s_add_u32 {s(sT0)}, {s(sT0)}, {WST}",
      f"s_add_u32 m0, {s(sT0)}, 8192",
      f"v_lshrrev_b32 {v(X3)}, 4, {v(LANE)}",
      f"v_and_b32 {v(X5)}, 15, {v(LANE)}",
      f"s_lshl_b32 {s(sT1)}, {s(sGG)}, 11",
      f"v_lshl_add_u32 {v(X1)}, {v(X5)}, 7, {s(sT1)}",
      f"v_lshl_add_u32 {v(X1)}, {v(X3)}, 5, {v(X1)}",
      f"v_lshlrev_b32 {v(AW2)}, 2, {v(LANE)}",
      "s_waitcnt lgkmcnt(0)")
    stamp(1)
    o(*kargs)
    for n, f in ((0, 2), (2, 1), (1, 0)):
        for e in range(2):
            o(f"global_load_dwordx4 {v(RW+12*e+4*n,4)}, {v(VO+f)}, s[10:11] offset:{1024*e}")
    o.c("b1 (lanes 0-31), w2 (lanes 32-63), target fragments, Wd")
    o("s_mov_b32 exec_hi, 0", "s_waitcnt lgkmcnt(0)",
      f"global_load_dword {v(RW2)}, {v(AW2)}, s[12:13]",
      "s_not_b64 exec, exec",
      f"global_load_dword {v(RW2)}, {v(AW2)}, s[14:15] offset:-128",
      "s_mov_b64 exec, -1",
      f"global_load_dwordx4 {v(TB,4)}, {v(X1)}, s[4:5]",
      f"global_load_dwordx4 {v(TB+4,4)}, {v(X1)}, s[4:5] offset:16",
      f"global_load_lds_dwordx4 {v(VO+3)}, s[10:11]",
      f"global_load_lds_dwordx4 {v(VO+3)}, s[10:11] offset:1024",
      "s_branch L_c1")

    o.c("==== waves 0-3: row compaction, gathers, scores, weighted sum ====")
    o.label("L_l0")
    o("s_setprio 3",
      f"s_mul_i32 {s(sT0)}, {s(sGG)}, 640",
      f"v_lshl_add_u32 {v(VO)}, {v(LANE)}, 1, {s(sT0)}",
      f"s_mul_i32 {s(sT0)}, {s(sGG)}, 40960",
      "s_waitcnt lgkmcnt(0)")
    stamp(1)
    for j in range(5): o(f"global_load_ushort {v(M+j)}, {v(VO)}, s[8:9] offset:{128*j}")
    o(*kargs)
    o(f"s_mov_b32 {s(sSRD+2)}, 40960",
      f"s_mov_b32 {s(sSRD+3)}, 0x20000",
      f"s_mul_i32 {s(sB)}, {s(sG)}, 1280",
      f"s_add_u32 {s(sB)}, {s(sB)}, {LIST}",
      f"s_mov_b32 {s(sK)}, 0xff80",
      f"s_lshl_b32 {s(sM0)}, {s(sG)}, 12")
    o.c("pad entries, then (row*128 | sample*8) in the high half")
    for i in range(4): o(f"v_mov_b32 {v(F0+i)}, {s(sK)}")
    o(f"v_lshl_add_u32 {v(F0+4)}, {v(LANE)}, 4, {s(sB)}",
      f"v_lshl_add_u32 {v(F0+5)}, {v(LANE)}, 2, {s(sB)}",
      f"ds_write_b128 {v(F0+4)}, {v(F0,4)}",
      f"ds_write_b32 {v(F0+5)}, {v(F0)} offset:1024",
      f"v_mul_u32_u24 {v(INFO)}, 8414824, {v(LANE)}")
    for j in range(1, 5): o(f"v_add_u32 {v(INFO+j)}, {hex(8414824*64*j)}, {v(INFO)}")
    o(f"v_lshrrev_b32 {v(X1)}, 3, {v(LANE)}",
      f"v_and_b32 {v(X2)}, 7, {v(LANE)}",
      f"v_lshl_add_u32 {v(ALD)}, {v(X1)}, 4, {s(sB)}",
      f"v_and_b32 {v(CE)}, 6, {v(X1)}",
      f"v_xor_b32 {v(CE)}, {v(CE)}, {v(X2)}",
      f"v_lshlrev_b32 {v(CE)}, 4, {v(CE)}",
      f"v_xor_b32 {v(CO)}, 16, {v(CE)}",
      f"v_and_b32 {v(X1)}, 3, {v(X1)}",
      f"v_lshl_add_u32 {v(AENT)}, {v(X2)}, 2, {v(X1)}",
      f"v_lshl_add_u32 {v(AENT)}, {v(AENT)}, 2, {s(sB)}",
      f"s_sub_u32 {s(sV)}, {s(sB)}, 124",
      f"s_lshl2_add_u32 {s(sT1)}, {s(sG)}, {MISC+256}",
      f"v_mov_b32 {v(ACNT)}, {s(sT1)}")
    o(f"v_and_b32 {v(VO)}, 3, {v(LANE)}",
      f"v_mov_b32 {v(MSK)}, 0",
      "s_waitcnt lgkmcnt(0)",
      f"s_add_u32 {s(sSRD)}, s6, {s(sT0)}",
      f"s_addc_u32 {s(sSRD+1)}, s7, 0")
    dma = lambda r: f"buffer_load_dwordx4 {v(r)}, {s(sSRD,4)}, 0 offen{NT} lds"
    adr = lambda r, i: f"v_and_or_b32 {v(r+i)}, {v(r+i)}, {s(sK)}, {v(CO if i & 1 else CE)}"
    def dma_unit(u):
        for i in (2*u, 2*u+1):
            o(adr(LE, i), dma(LE+i))
            if i % 4 < 3: o("s_add_u32 m0, m0, 0x400")
            else: o("s_add_u32 m0, m0, 0xb400", "s_and_b32 m0, m0, 0xffff")
    issued = [2]
    def dma_point(pt):
        for u in range(2, 6):
            if pro[u-2] == pt:
                assert issued[0] == u
                dma_unit(u); issued[0] += 1
    stamp(7)
    o("s_waitcnt vmcnt(0)")
    stamp(2)
    for j in range(5): o(f"v_cmp_ne_u32_e64 {s(sM+2*j,2)}, 0, {v(M+j)}")
    for j in range(5):
        o(f"s_mov_b64 exec, {s(sM+2*j,2)}",
          f"v_mbcnt_lo_u32_b32 {v(POS+j)}, {s(sM+2*j)}, 0",
          f"v_mbcnt_hi_u32_b32 {v(POS+j)}, {s(sM+2*j+1)}, {v(POS+j)}",
          f"v_alignbit_b32 {v(E+j)}, {v(M+j)}, {v(INFO+j)}, 16",
          f"v_lshl_add_u32 {v(POS+j)}, {v(POS+j)}, 2, {s(sB+j)}",
          f"ds_write_b32 {v(POS+j)}, {v(E+j)}",
          f"s_bcnt1_i32_b64 {s(sT0)}, {s(sM+2*j,2)}",
          f"s_lshl2_add_u32 {s(sB+j+1 if j < 4 else sT0)}, {s(sT0)}, {s(sB+j)}")
    o.c("list tiles are taken last to first, tile c in slot c&3; V = max(tiles, 6) steps, the leading ones empty")
    o(f"s_sub_u32 {s(sT0)}, {s(sT0)}, {s(sV)}",
      f"s_lshr_b32 {s(sN)}, {s(sT0)}, 7")
    if bench: o(f"s_mov_b32 {s(sN)}, {bench}")
    o(f"s_max_u32 {s(sV)}, {s(sN)}, 6",
      f"s_sub_u32 {s(sV)}, {s(sV)}, 6",
      f"s_lshl_b32 {s(sT1)}, {s(sV)}, 7",
      "s_mov_b64 exec, -1",
      f"v_add_u32 {v(GL)}, {s(sT1)}, {v(ALD)}")
    for i in range(3): o(f"ds_read_b128 {v(LE+4*i,4)}, {v(GL)} offset:{640-128*i}")
    o(f"global_load_ushort {v(B2)}, {v(MSK)}, s[16:17]",
      f"s_add_u32 {s(sT0)}, {s(sV)}, 1",
      f"s_and_b32 {s(sT0)}, {s(sT0)}, 3",
      f"s_lshl_b32 {s(sSL)}, {s(sT0)}, 14",
      f"s_add_u32 m0, {s(sSL)}, {s(sM0)}",
      f"v_mov_b32 {v(SUM)}, {s(sN)}",
      f"v_add_u32 {v(GE)}, {s(sT1)}, {v(AENT)}",
      "s_waitcnt lgkmcnt(2)")
    dma_unit(0); dma_unit(1)
    stamp(8)
    o(f"ds_write_b32 {v(ACNT)}, {v(SUM)}")
    for i in range(3): o(f"ds_read_b128 {v(LF+4*i,4)}, {v(ALD)} offset:{256-128*i}")
    o(f"ds_read_b32 {v(ENT)}, {v(AENT)} offset:640")
    o("s_waitcnt lgkmcnt(5)")
    dma_point(0)
    o("s_setprio 0", "s_waitcnt lgkmcnt(0)")
    stamp(3)
    o("s_barrier")
    stamp(14)
    dma_point(1)
    stamp(9)
    o(*[adr(LF, i) for i in range(12)])
    o.c("transposed fragments (row' = lane>>2), output offset, score matrix [kk][q][sample][4]")
    o(f"v_lshrrev_b32 {v(X4)}, 5, {v(LANE)}",
      f"v_lshrrev_b32 {v(X1)}, 2, {v(LANE)}",
      f"v_and_or_b32 {v(X2)}, {v(X1)}, 6, {v(X4)}",
      f"v_lshlrev_b32 {v(X2)}, 4, {v(X2)}",
      f"v_lshlrev_b32 {v(VO+3)}, 3, {v(VO)}",
      f"v_xor_b32 {v(X2)}, {v(X2)}, {v(VO+3)}",
      f"v_lshl_add_u32 {v(ATR)}, {v(X1)}, 7, {v(X2)}",
      f"v_add_u32 {v(ATR)}, {s(sM0)}, {v(ATR)}")
    for k in range(1, 4): o(f"v_xor_b32 {v(ATR+k)}, {32*k}, {v(ATR)}")
    for i in range(0, 16, 2): o(f"v_mov_b64 {v(ACC+i,2)}, 0")
    o(f"s_lshl_b32 {s(sT1)}, {s(sGG)}, 11",
      f"v_and_b32 {v(X0)}, 15, {v(LANE)}",
      f"v_lshl_add_u32 {v(AOUT)}, {v(X0)}, 7, {s(sT1)}",
      f"v_lshl_add_u32 {v(AOUT)}, {v(X4)}, 4, {v(AOUT)}",
      f"v_and_b32 {v(X2)}, 16, {v(LANE)}",
      f"v_lshl_add_u32 {v(AOUT)}, {v(X2)}, 1, {v(AOUT)}",
      f"s_lshl_b32 {s(sT0)}, {s(sG)}, 10",
      f"s_add_u32 {s(sT0)}, {s(sT0)}, {SBUF}",
      f"v_lshl_add_u32 {v(ASR)}, {v(LANE)}, 3, {s(sT0)}",
      f"v_and_b32 {v(CSW)}, 7, {v(X1)}",
      f"v_lshl_add_u32 {v(CSW)}, {v(CSW)}, 7, {s(sT0)}",
      f"v_lshl_add_u32 {v(CSW)}, {v(VO)}, 1, {v(CSW)}",
      f"ds_write2st64_b64 {v(ASR)}, {v(ACC,2)}, {v(ACC,2)} offset1:1",
      f"s_mov_b32 {s(sC0)}, {hex(f2u(2.0**-SH))}",
      f"s_movk_i32 {s(s78)}, 0x78",
      f"v_lshlrev_b32 {v(N8)}, 3, {v(X0)}",
      f"v_and_or_b32 {v(ASW)}, {v(ENT)}, {s(s78)}, {v(CSW)}",
      f"v_and_b32 {v(MSK)}, 0xffff0000, {v(ENT)}",
      f"s_mov_b64 {s(sX,2)}, -1")
    stamp(10)
    o(f"s_waitcnt vmcnt({2*(issued[0]-2)})",
      f"v_lshlrev_b32 {v(B2)}, 16, {v(B2)}")
    dma_point(2)
    stamp(12)
    o("s_barrier")
    stamp(13)
    dma_point(3)
    if bench: o("s_waitcnt vmcnt(0)", "s_barrier")
    stamp(4)
    o(f"s_cmp_eq_u32 {s(sN)}, 0",
      "s_cbranch_scc1 L_store",
      f"s_waitcnt vmcnt({2*(issued[0]-3)})")
    dma_point(4)
    assert issued[0] == 6
    def store(first):
        for h_ in range(2):
            o(*[f"v_cvt_pk_bf16_f32 {v(OB+4*h_+i)}, {v(ACC+8*h_+2*i)}, {v(ACC+8*h_+2*i+1)}" for i in (0, 2, 1, 3)])
            o(first if h_ == 0 else "s_nop 0",
              f"v_permlane16_swap_b32 {v(OB+4*h_)}, {v(OB+4*h_+2)}",
              f"v_permlane16_swap_b32 {v(OB+4*h_+1)}, {v(OB+4*h_+3)}",
              f"global_store_dwordx4 {v(AOUT)}, {v(OB+4*h_,4)}, s[18:19] offset:{64*h_}{ST}")
    def score(ae, c, last=False, mid=None):
        o(f"ds_read_b32 {v(SUM)}, {v(ae)} offset:{DS+128*(c+1)}",
          f"ds_read_b32 {v(SUM+1)}, {v(ae)} offset:{DS+5120+128*(c+1)}")
        if not last: o(f"ds_read_b32 {v(ENT)}, {v(ae)} offset:{128*c}")
        if mid: mid()
        if not last: o("s_setprio 3")
        o(f"s_waitcnt lgkmcnt({0 if last else 1})",
          f"v_add_f32 {v(SUM)}, {v(SUM)}, {v(SUM+1)}",
          f"v_fma_f32 {v(SUM)}, {v(SUM)}, {s(sC0)}, {v(B2)}",
          f"v_mul_legacy_f32 {v(SUM)}, {v(SUM)}, {v(MSK)}",
          f"v_cvt_pk_bf16_f32 {v(SUM)}, {v(SUM)}, {v(SUM)}",
          f"ds_write_b16 {v(ASW)}, {v(SUM)}",
          f"ds_read2st64_b64 {v(SOP,4)}, {v(ASR)} offset1:1")
        if not last:
            o(f"ds_write_b16 {v(ASW)}, {v(MSK)}",
              f"ds_read_u16_d16_hi {v(MSK)}, {v(ae)} offset:{128*c+2}",
              "s_waitcnt lgkmcnt(4)",
              f"v_and_or_b32 {v(ASW)}, {v(ENT)}, {s(s78)}, {v(CSW)}",
              "s_setprio 0")
    fin = [m16(ACC+4*jj, TR+4*jj, SOP, v(ACC+4*jj,4)) for jj in range(4)]
    def trreads(at, off):
        for jj in range(4):
            for kk in range(2): o(f"ds_read_b64_tr_b16 {v(TR+4*jj+2*kk,2)}, {v(at+jj)} offset:{off+2048*kk}")
    def bar(j):
        if bars == 2 and j % 2 == 0: o(f"s_memrealtime {s(sST+2*(7+j//2),2)}")
        o("s_barrier")
        if bars == 1 and j % 2 == 0: o(f"s_memrealtime {s(sST+2*(7+j//2),2)}")
    def gather(j):
        for u in range(6, 12):
            if sched[u-6] == j:
                c, hf = 5 - u//2, u & 1
                o(f"s_add_u32 m0, {s(sM0)}, {16384*(c & 3) + 2048*hf}", "s_nop 0", dma(LF+2*(u-6)),
                  "s_add_u32 m0, m0, 0x400", "s_nop 0", dma(LF+2*(u-6)+1))
    def landed(j):
        have = 6 + sum(x <= j for x in sched)
        if j + 3 > 11: return []
        assert have > j + 3
        return [f"vmcnt({2*(have-4-j)})"]
    o(f"s_cmp_eq_u32 {s(sV)}, 0",
      "s_cbranch_scc0 L_more")
    o.c("---- the last six steps ----")
    o.label("L_lloop")
    for k in range(6):
        c = 5 - k
        bar(2*k)
        if k == 0:
            gather(0)
            o("s_waitcnt " + landed(0)[0])
            bar(1)
            o.label("L_join")
        else:
            score(AENT, c, mid=(lambda: gather(2*k)) if ge else None)
            if not ge: gather(2*k)
            o("s_waitcnt " + " ".join(landed(2*k) + ["lgkmcnt(0)"]), "s_setprio 3")
            bar(2*k+1)
            o(*fin, "s_setprio 0")
        if ge: gather(2*k+1)
        trreads(ATR, 16384*(c & 3))
        if not ge: gather(2*k+1)
        w = landed(2*k+1)
        if w: o("s_waitcnt " + w[0])
        if es and c == es - 1:
            o.c("samples above the highest one still to come are final: store them now")
            o(f"s_cmp_gt_u32 {s(sN)}, {es}", "s_cbranch_scc0 L_ne")
            if eb: o("s_setprio 3")
            o(f"v_readlane_b32 {s(sT0)}, {v(ENT)}, 31",
              "s_nop 0",
              f"s_and_b32 {s(sT0)}, {s(sT0)}, 0x78",
              f"v_cmp_ge_u32_e64 {s(sX,2)}, {s(sT0)}, {v(N8)}")
            store(f"s_not_b64 exec, {s(sX,2)}")
            o("s_setprio 0", "s_mov_b64 exec, -1")
            o.label("L_ne")
    bar(12)
    score(AENT, -1, True)
    o("s_waitcnt lgkmcnt(0)", *fin, "s_nop 0")
    o.label("L_store")
    stamp(5)
    o("s_nop 3")
    store(f"s_mov_b64 exec, {s(sX,2)}")
    o("s_branch L_fin" if stamps else "s_endpgm")
    o.c("---- steps while more than six tiles remain: tile c = V + 5, gather tile c - 3 ----")
    o.label("L_more")
    o(*[f"v_mov_b64 {v(TR+i,2)}, 0" for i in range(0, 16, 2)], f"v_mov_b32 {v(MSK)}, 0")
    o.label("L_more2")
    o("s_barrier")
    score(GE, 5)
    o(f"ds_read_b128 {v(LE,4)}, {v(GL)} offset:256",
      *[f"v_add_u32 {v(GT+i)}, {s(sSL)}, {v(ATR+i)}" for i in range(4)],
      f"s_add_u32 {s(sT0)}, {s(sSL)}, 0x4000",
      f"s_and_b32 {s(sT0)}, {s(sT0)}, 0xffff",
      f"s_add_u32 m0, {s(sT0)}, {s(sM0)}",
      f"s_add_u32 {s(sSL)}, {s(sSL)}, 0xc000",
      f"s_and_b32 {s(sSL)}, {s(sSL)}, 0xffff",
      f"v_subrev_u32 {v(GL)}, 0x80, {v(GL)}",
      f"v_subrev_u32 {v(GE)}, 0x80, {v(GE)}",
      "s_waitcnt vmcnt(4) lgkmcnt(0)", "s_setprio 3",
      "s_barrier", *fin)
    trreads(GT, 0)
    dma_unit(0); dma_unit(1)
    o("s_setprio 0",
      f"s_sub_u32 {s(sV)}, {s(sV)}, 1",
      f"s_cmp_eq_u32 {s(sV)}, 0",
      "s_waitcnt vmcnt(6)",
      "s_cbranch_scc0 L_more2",
      "s_barrier")
    score(AENT, 5)
    gather(0)
    o("s_waitcnt " + " ".join(landed(0) + ["lgkmcnt(0)"]), "s_setprio 3", "s_barrier", *fin, "s_setprio 0", "s_branch L_join")

    o.c("==== waves 4-7: weight staging, per-sample terms, then the activation unit ====")
    o.label("L_c1")
    o(f"v_add_u32 {v(AWW)}, {s(sT0)}, {v(X2)}",
      f"v_and_b32 {v(X0)}, 3, {v(LANE)}",
      f"v_lshlrev_b32 {v(X1)}, 4, {v(X0)}")
    o.c("4x4 identity, its negative, the selection operands and the two factors of -log2(e)")
    o(f"v_mov_b32 {v(ID)}, 1",
      f"v_mov_b32 {v(ID+1)}, 0",
      f"v_lshlrev_b64 {v(ID,2)}, {v(X1)}, {v(ID,2)}",
      f"v_mul_u32_u24 {v(PID)}, 0x3f80, {v(ID)}",
      f"v_mul_u32_u24 {v(PID+1)}, 0x3f80, {v(ID+1)}",
      f"v_mul_u32_u24 {v(NID)}, 0xbf80, {v(ID)}",
      f"v_mul_u32_u24 {v(NID+1)}, 0xbf80, {v(ID+1)}",
      *[f"v_mov_b64 {v(OHV+2*i,2)}, 0" for i in range(4)],
      f"s_mov_b32 {s(sT1)}, {OHT}",
      f"v_lshl_add_u32 {v(X1)}, {v(LANE)}, 3, {s(sT1)}",
      f"v_lshl_add_u32 {v(COH)}, {v(X3)}, 7, {s(sT1)}",
      "s_mov_b32 exec_lo, 0x00f0000f",
      "s_mov_b32 exec_hi, 0xf0000f00",
      f"v_mov_b64 {v(SEL+2,2)}, {v(PID,2)}",
      f"v_mul_u32_u24 {v(OHV)}, {hex(FB)}, {v(ID)}",
      f"v_mul_u32_u24 {v(OHV+1)}, {hex(FB)}, {v(ID+1)}",
      "s_mov_b64 exec, -1",
      f"ds_write_b64 {v(X1)}, {v(OHV,2)}",
      f"v_mul_u32_u24 {v(ID)}, {hex(FA)}, {v(ID)}",
      f"v_mul_u32_u24 {v(ID+1)}, {hex(FA)}, {v(ID+1)}",
      f"s_mov_b32 {s(sNL)}, {hex(NLOG2E)}",
      f"s_mov_b32 {s(sNL+1)}, {hex(NLOG2E)}",
      f"s_mov_b32 {s(sNB)}, {hex(NLOG2E_B)}",
      f"s_mov_b32 {s(sNB+1)}, {hex(NLOG2E_B)}",
      f"s_mov_b32 {s(sC0)}, {hex(f2u(2.0**-SH))}",
      f"s_mov_b32 {s(sC0+1)}, {hex(f2u(2.0**-SH))}",
      f"s_movk_i32 {s(s78)}, 0x78")
    o.c("staging read address (16q + r)*128 + (q&1)*64 + (r>>1)*32 + c*8")
    o(f"v_bfe_u32 {v(X1)}, {v(LANE)}, 2, 2",
      f"v_lshl_add_u32 {v(X1)}, {v(X3)}, 4, {v(X1)}",
      f"v_and_b32 {v(X2)}, 24, {v(LANE)}",
      f"v_lshl_add_u32 {v(X2)}, {v(X0)}, 1, {v(X2)}",
      f"v_lshlrev_b32 {v(X2)}, 2, {v(X2)}",
      f"v_lshl_add_u32 {v(AWR)}, {v(X1)}, 7, {v(X2)}",
      f"v_add_u32 {v(AWR)}, {WST}, {v(AWR)}",
      *[f"v_xor_b32 {v(AWR+k)}, {32*k}, {v(AWR)}" for k in range(1, 4)],
      f"s_mov_b32 {s(sT1)}, {MISC}",
      f"v_lshl_add_u32 {v(AB1)}, {v(X5)}, 1, {s(sT1)}",
      f"v_lshl_add_u32 {v(AC2)}, {v(X3)}, 3, {s(sT1)}",
      f"v_add_u32 {v(VO+1)}, {s(sT1)}, {v(AW2)}",
      f"s_lshl2_add_u32 {s(sT1)}, {s(sG)}, {s(sT1)}",
      f"v_mov_b32 {v(VO+2)}, {s(sT1)}",
      f"v_mov_b64 {v(RB1,2)}, 0",
      f"v_mov_b64 {v(RB1+2,2)}, 0")
    o.c("entry, row-sum and fragment addresses")
    o(f"s_mul_i32 {s(sT0)}, {s(sG)}, 1280",
      f"s_add_u32 {s(sT0)}, {s(sT0)}, {LIST-256}",
      f"v_bfe_u32 {v(X1)}, {v(LANE)}, 3, 1",
      f"v_and_b32 {v(X2)}, 7, {v(LANE)}",
      f"v_lshl_add_u32 {v(X2)}, {v(X2)}, 2, {v(X1)}",
      f"v_lshl_add_u32 {v(CENT)}, {v(X2)}, 2, {s(sT0)}",
      f"v_lshrrev_b32 {v(X2)}, 5, {v(LANE)}",
      f"v_mul_u32_u24 {v(CSUM)}, 5120, {v(X2)}",
      f"v_lshrrev_b32 {v(X2)}, 1, {v(X4)}",
      f"v_add_u32 {v(CSUM)}, {v(X2)}, {v(CSUM)}",
      f"s_movk_i32 {s(sINC)}, 0xff80",
      f"s_movk_i32 {s(sINC+1)}, 0xff7f",
      f"v_and_or_b32 {v(X1)}, {v(LANE)}, 6, {v(X1)}",
      f"v_lshlrev_b32 {v(X2)}, 1, {v(X3)}",
      f"v_xor_b32 {v(X1)}, {v(X1)}, {v(X2)}",
      f"s_lshl_b32 {s(sT0)}, {s(sG)}, 12",
      f"v_lshl_add_u32 {v(X2)}, {v(X5)}, 7, {s(sT0)}",
      f"v_lshl_add_u32 {v(AH)}, {v(X1)}, 4, {v(X2)}",
      f"v_xor_b32 {v(AH+1)}, 16, {v(AH)}")
    stamp(7)
    o("s_waitcnt vmcnt(10)")
    stamp(2)
    fr = lambda mat, e: UF+16*mat+8*e
    ini = lambda mat: [m4(fr(mat,e)+4*i, NID if mat else PID, RW+12*e+2*i) for e in range(2) for i in range(2)]
    acc = lambda mat: [m4(fr(mat,e)+4*i, PID, RW+12*e+4+4*mat+2*i, v(fr(mat,e)+4*i,4)) for e in range(2) for i in range(2)]
    def pack(mat, e):
        f = fr(mat, e)
        return ([f"v_pk_mul_f32 {v(f+2*i,2)}, {v(f+2*i,2)}, {s(sNB if mat else sNL,2)}" for i in range(4)]
                + [f"v_cvt_pk_bf16_f32 {v(f+i)}, {v(f+2*i)}, {v(f+2*i+1)}" for i in range(4)]
                + [f"ds_write_b128 {v(AWW)}, {v(f,4)} offset:{16384*mat+1024*e}"])
    o(*ini(1), *ini(0), "s_waitcnt vmcnt(8)", *acc(1), "s_waitcnt vmcnt(6)", *acc(0))
    o(*pack(1, 0), *pack(1, 1), *pack(0, 0), *pack(0, 1))
    o("s_setprio 2", "s_waitcnt lgkmcnt(0)")
    stamp(3)
    o("s_barrier")
    stamp(14)
    wfrag = lambda mat, t, ks: 16*t + 8*mat + 4*ks
    def wreads(mat):
        return [f"ds_read_b64_tr_b16 {a(wfrag(mat,t,ks)+2*kk,2)}, {v(AWR+t)} offset:{8192*mat+1024*ks+512*kk}"
                for t in range(4) for ks in range(2) for kk in range(2)]
    rdH = lambda u, k: f"ds_read_b128 {v(H[u]+4*k,4)}, {v(AH+k)} offset:{2048*u}"
    rdOH = lambda u: f"ds_read_b64 {v(OH[u],2)}, {v(CEN+u)}"
    rdE = f"ds_read2_b32 {v(CEN,2)}, {v(CENT)} offset1:34"
    bumpH = lambda k: f"v_add_u16 {v(AH+k)}, 0xc000, {v(AH+k)}"
    dec = lambda u: f"v_and_or_b32 {v(CEN+u)}, {v(CEN+u)}, {s(s78)}, {v(COH)}"
    MU = lambda u, t: k16(D[u]+4*t, UT+2*t, OH[u])
    MG = lambda u, t: k16(T[u]+4*t, TT+2*t, OH[u])
    o.c("per-sample bias u = t @ (Wb - Wc) + b1 and t itself as [feature][sample] operands")
    ur = [f"ds_read_b64_tr_b16 {v(UF+8*t+4*ks+2*kk,2)}, {v(AWR+t)} offset:{16384+1024*ks+512*kk}"
          for t in range(4) for ks in range(2) for kk in range(2)]
    wa, wd = wreads(0), wreads(1)
    o(f"ds_read_b32 {v(X2)}, {v(VO+2)} offset:256", *ur[:8])
    o("s_waitcnt vmcnt(4)",
      f"ds_write_b32 {v(VO+1)}, {v(RW2)}")
    for t in range(4): o(f"ds_read_u16_d16_hi {v(RB1+t)}, {v(AB1)} offset:{32*t}")
    o("s_waitcnt lgkmcnt(13)",
      f"v_lshl_add_u32 {v(CENT)}, {v(X2)}, 7, {v(CENT)}",
      f"v_readfirstlane_b32 {s(sN)}, {v(X2)}",
      f"ds_read2_b32 {v(CEN,2)}, {v(CENT)} offset0:32 offset1:34",
      f"ds_read_b32 {v(SA)}, {v(CENT)}")
    for t in range(4): o(f"ds_read_b64 {v(RW+2*t,2)}, {v(AC2)} offset:{128+32*t}")
    o(*ur[8:])
    o(f"v_add_u32 {v(CSUM)}, {v(CSUM)}, {v(CENT)}",
      f"s_max_u32 {s(sV)}, {s(sN)}, {vmin}",
      f"s_sub_u32 {s(sV)}, {s(sV)}, {s(sN)}",
      f"s_lshl_b32 {s(sV)}, {s(sV)}, 1",
      f"s_add_u32 {s(sT0)}, {s(sN)}, 3",
      f"s_lshl_b32 {s(sT0)}, {s(sT0)}, 14",
      "s_waitcnt lgkmcnt(8)",
      dec(0), dec(1), rdOH(0), rdOH(1), *wa[:5])
    o(*weave([m4(W2+4*i, PID, RW+2*i) for i in range(4)], [f"v_mul_f32 {v(UD+i)}, {s(sNB)}, {v(RB1+i//4)}" for i in range(16)], 4))
    o(*wa[5:])
    o(f"v_and_or_b32 {v(CEN)}, {v(SA)}, {s(s78)}, {v(COH)}",
      *[f"v_add_u16 {v(AH+i)}, {s(sT0)}, {v(AH+i)}" for i in range(2)])
    o("s_waitcnt vmcnt(2) lgkmcnt(15)")
    stamp(9)
    um = lambda t, ks: m16(UD+4*t, TB+4*ks, UF+8*t+4*ks, v(UD+4*t,4))
    cvp = lambda dst, src, t: [f"v_cvt_pk_bf16_f32 {v(dst+2*t+i)}, {v(src+4*t+2*i)}, {v(src+4*t+2*i+1)}" for i in range(2)]
    o(*[m16(TD+4*t, TB+4*(t>>1), SEL+2-2*(t&1), 0) for t in range(4)])
    o(um(0,0), um(0,1), um(1,0), um(1,1), um(2,0), *cvp(TT,TD,0), um(2,1), *cvp(TT,TD,1))
    o(um(3,0), *cvp(TT,TD,2), um(3,1), *cvp(TT,TD,3))
    o(MG(0,0), *cvp(UT,UD,0), MG(0,1), *cvp(UT,UD,1), MG(0,2), *cvp(UT,UD,2), MG(0,3), *cvp(UT,UD,3))
    o(*[MU(0,t) for t in range(4)], f"s_sub_u32 {s(sN)}, {s(sN)}, 1", "s_waitcnt vmcnt(0)", "s_cbranch_scc1 L_cexit")
    stamp(12)
    if bench: o("s_barrier")
    o(f"s_cmp_lg_u32 {s(sV)}, 0", "s_barrier")
    stamp(13)
    stamp(4)

    def MM(u, j):
        mat, t, ks = j >> 3, (j >> 1) & 3, j & 1
        b = (HF if mat else H)[u] + 4*ks
        return f"v_mfma_f32_16x16x32_bf16 {v(D[u]+4*t,4)}, {a(wfrag(mat,t,ks),4)}, {v(b,4)}, {v(D[u]+4*t,4)}"
    ex = lambda u, i: f"v_exp_f32 {v(D[u]+i)}, {v(D[u]+i)}"
    un = lambda u, k: m4(HF[u]+4*k, ID, H[u]+2*k)
    p = lambda b: v(b, 2)
    def tree(u):
        r = D[u]
        out = [f"v_pk_fma_f32 {p(r+2*i)}, {p(r+2*i)}, {s(sC0,2)}, {s(sC0,2)} clamp" for i in range(8)]
        for g in range(4):
            x, y = r+4*g, r+4*g+2
            out += [f"v_pk_mul_f32 {p(N+2*g)}, {p(W2+4*g)}, {p(y)}",
                    f"v_pk_fma_f32 {p(N+2*g)}, {p(W2+4*g+2)}, {p(x)}, {p(N+2*g)}",
                    f"v_pk_mul_f32 {p(x)}, {p(x)}, {p(y)}"]
        for g in range(2):
            x, y = r+8*g, r+8*g+4
            out += [f"v_pk_mul_f32 {p(N+4*g)}, {p(N+4*g)}, {p(y)}",
                    f"v_pk_fma_f32 {p(N+4*g)}, {p(N+4*g+2)}, {p(x)}, {p(N+4*g)}",
                    f"v_pk_mul_f32 {p(N+4*g+2)}, {p(x)}, {p(y)}"]
        return out
    pmul = lambda u: [f"v_pk_mul_f32 {p(HF[u]+2*i)}, {p(HF[u]+2*i)}, {p(T[u]+2*i)}" for i in range(8)]
    rc = lambda i: f"v_rcp_f32 {v(N+4*(i//2)+2+i%2)}, {v(N+4*(i//2)+2+i%2)}"
    fm = lambda d, i: f"v_{'fmac' if i else 'mul'}_f32 {v(d)}, {v(N+4*(i//2)+i%2)}, {v(N+4*(i//2)+2+i%2)}"
    cv = lambda u, j: f"v_cvt_pk_bf16_f32 {v(HF[u]+j)}, {v(HF[u]+2*j)}, {v(HF[u]+2*j+1)}"
    swap = f"v_permlane16_swap_b32 {v(SA)}, {v(SB)}"
    sadd = f"v_add_f32 {v(SA)}, {v(SA)}, {v(SB)}"
    sumw = lambda off: f"ds_write_b32 {v(CSUM)}, {v(SA)} offset:{DS+off}"

    o.c("---- pipeline fill: rows 0-15 of the first tile ----")
    hr = [rdH(0,0), rdH(0,1), rdH(1,0), rdH(1,1)]
    o(*hr, *wd[:8], rdOH(0), *[MG(1,t) for t in range(4)], "s_cbranch_scc1 L_skip")
    o("s_waitcnt lgkmcnt(11)")
    o.label("L_fill")
    o(*weave([un(0,k) for k in range(4)], [bumpH(0), bumpH(1)]), "s_waitcnt lgkmcnt(9)")
    mu = lambda u, i: f"v_mul_f32 {v(HF[u]+i)}, {v(HF[u]+i)}, {v(T[u]+i)}"
    pa = [mu(0,i) for i in range(8)] + [cv(0,j) for j in range(4)] + [mu(0,i) for i in range(8,16)] + [cv(0,j) for j in range(4,8)]
    o(*weave([un(1,k) for k in range(4)], wd[8:], 2), *pa[:8])
    for j in range(8): o(MM(0,j), *pa[8+2*j:10+2*j])
    o("s_waitcnt lgkmcnt(0)", mu(1,0), mu(1,1))
    for j in range(8, 16): o(MM(0,j), *[mu(1,i) for i in range(2*j-14, min(16, 2*j-12))])
    o(MU(1,0))

    o.c("---- tile loop: rows 16-31 of tile i, then rows 0-15 of tile i+1 ----")
    o(".p2align 3")
    o.label("L_alpha")
    o(MU(1,1), rc(0), cv(1,0))
    o(MU(1,2), rc(1), cv(1,1))
    o(MU(1,3), rc(2), fm(SB,0))
    ga = [[f"s_sub_u32 {s(sN)}, {s(sN)}, 1", rc(3)], [fm(SB,1), fm(SB,2)], [fm(SB,3), cv(1,2)], [cv(1,3), swap],
          [cv(1,4), sadd], [sumw(256)], [cv(1,5), cv(1,6)], [cv(1,7), ex(0,0)],
          [ex(0,1)], ["s_waitcnt lgkmcnt(0)", "s_barrier"], [rdH(0,0), rdH(0,1)], [ex(0,2)],
          [ex(0,3)], [ex(0,4)], [ex(0,5)], ["s_cbranch_scc1 L_drain", ex(0,6)]]
    for j in range(16): o(MM(1,j), *ga[j])
    o(MG(0,0), ex(0,7), ex(0,8), MG(0,1), ex(0,9), MG(0,2), ex(0,10), ex(0,11), MG(0,3), "s_waitcnt lgkmcnt(0)", ex(0,12))
    bump = f"v_lshl_add_u64 {p(CENT)}, {p(CENT)}, 0, {s(sINC,2)}"
    o(un(0,0), bump, un(0,1), ex(0,13), un(0,2), un(0,3), ex(0,14), ex(0,15))
    o.even("L_alpha")
    o(*tree(0), *pmul(0))
    o(MU(0,0), cv(0,0), cv(0,1), cv(0,2))
    o(MU(0,1), rc(0), cv(0,3))
    o(MU(0,2), rc(1), cv(0,4))
    o(MU(0,3), rc(2), cv(0,5))
    pf = lambda i: f"v_fma_f32 {v(D[1]+i)}, {v(D[1]+i)}, {s(sC0)}, {s(sC0)} clamp"
    xp = lambda j: [pf(2*j), pf(2*j+1)] if j < ov else []
    gb = [[rdE, cv(0,6)], [rc(3)], [cv(0,7), fm(SA,0)], [fm(SA,1), fm(SA,2)],
          [ex(1,0)], ["s_waitcnt lgkmcnt(0)", dec(0), dec(1)], [rdOH(1), rdOH(0)], [ex(1,1)],
          [ex(1,2)], ["s_barrier", rdH(1,0)], [rdH(1,1), ex(1,3)] + xp(0), [ex(1,4)] + xp(1),
          [ex(1,5)], [ex(1,6)] + xp(2), [ex(1,7)], ["s_waitcnt lgkmcnt(2)", ex(1,8)] + xp(3)]
    for j in range(16): o(MM(0,j), *gb[j])
    o(MG(1,0), ex(1,9), fm(SA,3), MG(1,1), ex(1,10), bumpH(0), MG(1,2), ex(1,11), bumpH(1), MG(1,3), "s_waitcnt lgkmcnt(0)", ex(1,12))
    o(un(1,0), un(1,1), ex(1,13), un(1,2), un(1,3), ex(1,14), ex(1,15))
    o.even("L_alpha")
    o(*tree(1)[ov:], *pmul(1))
    o(MU(1,0), "s_branch L_alpha")
    o.c("---- pipeline drain: last tile ----")
    o(".p2align 3")
    o.label("L_drain")
    pc = lambda d: [f"v_pk_mul_f32 {p(d)}, {p(N)}, {p(N+2)}", f"v_pk_fma_f32 {p(d)}, {p(N+4)}, {p(N+6)}, {p(d)}",
                    f"v_add_f32_e64 {v(d)}, {v(d)}, {v(d+1)}"]
    o(*[ex(0,i) for i in range(6, 16)])
    o.even("L_drain")
    o(*tree(0), "s_barrier", rc(0), rc(1), rc(2), rc(3))
    o(*[ex(1, i) for i in range(16)])
    o.even("L_drain")
    o(*pc(SA), *tree(1), rc(0), rc(1), rc(2), rc(3), *pc(SB))
    o("s_nop 1", swap, sadd, sumw(128), "s_waitcnt lgkmcnt(0)", "s_barrier")
    o.label("L_cexit")
    stamp(5)
    o("s_branch L_fin" if stamps else "s_endpgm")
    o.c("---- a group with fewer than six tiles sits out the leading steps ----")
    o.label("L_skip")
    o(f"s_sub_u32 {s(sV)}, {s(sV)}, 1",
      f"s_cmp_lg_u32 {s(sV)}, 0",
      "s_barrier",
      "s_cbranch_scc1 L_skip")
    o(*hr, "s_waitcnt lgkmcnt(0)", "s_branch L_fill")
    o.label("L_fin")
    if dg >= 0:
        stamp(6)
        from diag import diag_tail
        diag_tail(o, sST, sW, da, dg, K, dw, rel=rel)
    elif stamps:
        stamp(6)
        o("s_waitcnt vmcnt(0)", "s_mov_b64 exec, -1")
        stamp(11)
        o("s_sleep 40", "s_load_dwordx2 s[54:55], s[0:1], 72", "s_waitcnt lgkmcnt(0)")
        for i in range(15): o(f"v_mov_b32 {v(i)}, {s(sST+2*i)}")
        o(f"v_mov_b32 v15, {s(sN)}",
          f"s_xor_b32 {s(sW)}, {s(sW)}, 4",
          f"s_lshl3_add_u32 {s(sT0)}, s2, {s(sW)}",
          f"s_lshl_b32 {s(sT0)}, {s(sT0)}, 6",
          f"v_mov_b32 v16, {s(sT0)}",
          "s_mov_b64 exec, 1")
        for i in range(4): o(f"global_store_dwordx4 v16, v[{4*i}:{4*i+3}], s[54:55] offset:{16*i}")
    o.label("L_end")
    o.label("L_last")
    o("s_endpgm")

    if abl:
        i0 = o.l.index("L_lloop:"); i1 = o.l.index("L_c1:")
        def dropL(x):
            if abl & 1 and ("ds_" in x or x.strip().startswith("v_") or "buffer_" in x): return True
            if abl & 2 and "mfma" in x: return True
            return False
        o.l = o.l[:i0] + [x for x in o.l[i0:i1] if not dropL(x)] + o.l[i1:]
    if cyc: o.l = [x.replace("s_memrealtime", "s_memtime") for x in o.l]
    head = open(f"cdna_kernels/{NAME}.s.ref").read().split("; Override launch")[0]
    return (head + f"; @launch grid=(256,1,1) block=(512,1,1) lds={LDS_BYTES}\n"
        + '.amdgcn_target "amdgcn-amd-amdhsa--gfx950"\n.text\n'
        + f".globl {NAME}_kernel\n.p2align 8\n.type {NAME}_kernel,@function\n{NAME}_kernel:\n"
        + o.text()
        + f'.section .rodata,"a"\n.p2align 6\n.amdhsa_kernel {NAME}_kernel\n'
        + f"  .amdhsa_next_free_vgpr {NV+64}\n  .amdhsa_next_free_sgpr 100\n  .amdhsa_accum_offset {NV}\n"
        + "  .amdhsa_group_segment_fixed_size 0\n  .amdhsa_kernarg_size 80\n  .amdhsa_user_sgpr_count 2\n"
        + "  .amdhsa_user_sgpr_kernarg_segment_ptr 1\n  .amdhsa_system_sgpr_workgroup_id_x 1\n.end_amdhsa_kernel\n")

if __name__ == "__main__":
    kw = dict(x.split("=") for x in sys.argv[2:])
    kw = {k: int(val) for k, val in kw.items()}
    open(sys.argv[1], "w").write(gen(**kw))
```

```python
import sys, struct, re, math

NAME = "standalone__sequential_behavior_din__recsys"

HIST = 0
SBUF = 65536
WST  = 69632
LIST = 95232
SUMS = 100352
MISC = 110848
OHT  = 111616
MASK = 112128
LDS_BYTES = MASK + 2560
DS = SUMS - LIST
SH = 30
FA, FB = 0xbfd4, 0x3f5f
def f2u(x): return struct.unpack("<I", struct.pack("<f", x))[0]
NLOG2E = f2u(-math.log2(math.e))
NLOG2E_B = f2u(-math.log2(math.e) / 0.87109375)

DOC = """;
"""

class Asm:
    def __init__(self): self.l = []
    def __call__(self, *ss):
        for x in ss: self.l.append("    " + x)
    def label(self, s): self.l.append(s + ":")
    def c(self, s): self.l.append("    ; " + s)
    def text(self): return "\n".join(self.l) + "\n"
    def even(self, start):
        short = re.compile(r"\s*(v_exp_f32|v_rcp_f32|v_fmac_f32|v_mul_f32|v_add_f32|v_and_b32|v_permlane16_swap_b32) ")
        n4 = [i for i in range(self.l.index(start + ":") + 1, len(self.l))
              if short.match(self.l[i]) or re.match(r"\s*s_(?!mem)", self.l[i])]
        if len(n4) % 2:
            i = [j for j in n4 if short.match(self.l[j]) and "perm" not in self.l[j]][-1]
            self.l[i] = re.sub(r"(v_\w+) ", r"\1_e64 ", self.l[i], 1)

def v(b, n=1): return f"v{b}" if n == 1 else f"v[{b}:{b+n-1}]"
def a(b, n=1): return f"a{b}" if n == 1 else f"a[{b}:{b+n-1}]"
def s(b, n=1): return f"s{b}" if n == 1 else f"s[{b}:{b+n-1}]"
def m4(d, aa, b, c=0): return f"v_mfma_f32_4x4x4_16b_bf16 {v(d,4)}, {v(aa,2)}, {v(b,2)}, {c}"
def m16(d, aa, b, c): return f"v_mfma_f32_16x16x32_bf16 {v(d,4)}, {v(aa,4)}, {v(b,4)}, {c}"
def k16(d, aa, b, c=0): return f"v_mfma_f32_16x16x16_bf16 {v(d,4)}, {v(aa,2)}, {v(b,2)}, {c}"
def weave(main, fill, k=1):
    out, j = [], 0
    for x in main:
        out.append(x); out += fill[j:j+k]; j += k
    return out + fill[j:]

def gen(nt=1, stamps=0, dg=-1, da=0, K=20, dw=0, rel=0, bench=0, pfd=1, pro=1133, sched=23567,
        abl=0, bars=0, cyc=0, es=1, lp=1, mv=1):
    vmin = 6
    pro = [int(x) for x in f"{pro:04d}"]; sched = [int(x) for x in f"{sched:06d}"]
    assert sched[2] >= 3 and sched[4] >= 5
    stamps = stamps or dg >= 0
    o = Asm()
    NT = " nt" if nt else ""
    ST = " sc1"
    sV = 3
    sW, sG, sGG, sN = 20, 21, 22, 23
    sM = 24
    sB = 34
    s78, sM0, sK, sSL = 40, 41, 42, 43
    sNL, sC0, sNB = 44, 46, 24
    sSRD = 48
    sT0, sT1 = 52, 53
    sINC = 54
    sST = 56
    sPC = 88
    sE, sX = 34, 36
    def stamp(i):
        if bench:
            if i in (4, 5):
                o(f"s_memtime {s(sST+2*i,2)}", f"s_memrealtime {s(sST+2*i-4,2)}")
        elif stamps and not (bars and 7 <= i <= 13) and (stamps == 1 or i in (0, 5, 6, 11)):
            o(f"s_memrealtime {s(sST+2*i,2)}")
    LANE = 1
    NV = 192
    X0, X1, X2, X3, X4, X5 = 22, 23, 24, 25, 26, 27
    VO = 28
    M, INFO, E, POS = 2, 7, 12, 17
    LF = 2
    CE, CO, ALD, AENT, ATR, F0 = 54, 55, 56, 57, 60, 64
    GL, GE, GT = 58, 59, 72
    ACC, TR, LE, SOP, SUM = 116, 132, 148, 164, 168
    ASR, CSW, MSK, ENT, B2, AOUT, ACNT, N8 = range(170, 178)
    WV = 179
    ASW, OB = 180, 184
    D, T, HF, H = (0, 16), (32, 48), (64, 80), (96, 104)
    W2, TT, UT, N, OH = 112, 128, 136, 144, (152, 154)
    AH, CENT, CSUM, ID, SA, SB, CEN, COH = 156, 158, 159, 160, 162, 164, 166, 165
    AWR, AWW, AC2, AB1, OHV, SEL = 188, 2, 3, 4, 144, 146
    CW, SHQ = 172, 168
    RW, TB, RW2, AW2, RB1, PID, NID = 32, 56, 6, 7, 8, 12, 14
    UF, UD, TD = 64, 96, 16

    stamp(0)
    o("s_load_dwordx4 s[8:11], s[0:1], 16",
      "v_lshrrev_b32 v2, 6, v0",
      "s_cmp_ge_u32 s2, 0x100",
      f"v_readfirstlane_b32 {s(sW)}, v2",
      "s_cbranch_scc1 L_end",
      f"v_and_b32 {v(LANE)}, 63, v0")
    if pfd:
        o.c("each wave pulls one 128-byte line of this code into L2")
        o(f"s_getpc_b64 {s(sPC,2)}")
        o.label("L_pc")
        o(f"s_and_b32 {s(sT0)}, s2, 0x78",
          f"s_add_u32 {s(sT0)}, {s(sT0)}, {s(sW)}",
          f"s_lshl_b32 {s(sT0)}, {s(sT0)}, 7",
          f"s_min_u32 {s(sT0)}, {s(sT0)}, L_last-L_pc-64",
          "v_and_b32 v20, 32, v0",
          f"v_lshl_add_u32 v20, v20, 1, {s(sT0)}",
          f"global_load_dword v21, v20, {s(sPC,2)}")
    kargs = ["s_load_dwordx4 s[4:7], s[0:1], 0", "s_load_dwordx8 s[12:19], s[0:1], 32"]
    o(f"s_and_b32 {s(sG)}, {s(sW)}, 3",
      f"s_lshl2_add_u32 {s(sGG)}, s2, {s(sG)}",
      f"s_cmp_lt_u32 {s(sW)}, 4",
      "s_cbranch_scc1 L_l0")
    o.c("==== waves 4-7, first loads ====")
    o.c("a wave stages 16 rows of w1; slot p of row d holds chunk p ^ 2*d1 ^ 4*d4")
    sR = sG
    o(f"s_and_b32 {s(sT1)}, {s(sR)}, 1",
      f"s_lshl_b32 {s(sT0)}, {s(sR)}, 11",
      f"s_lshl_b32 {s(sT1)}, {s(sT1)}, 6",
      f"s_or_b32 {s(sT1)}, {s(sT1)}, {s(sT0)}",
      f"v_and_b32 {v(X4)}, 16, {v(LANE)}",
      f"v_lshlrev_b32 {v(X2)}, 4, {v(LANE)}",
      f"v_lshlrev_b32 {v(X0)}, 1, {v(X4)}",
      f"v_xor_b32 {v(X0)}, {v(X0)}, {v(X2)}",
      f"v_xor_b32 {v(VO)}, {s(sT1)}, {v(X0)}")
    for f in range(1, 4): o(f"v_add_u32 {v(VO+f)}, {8192*f}, {v(VO)}")
    o(f"s_add_u32 {s(sT0)}, {s(sT0)}, {WST}",
      f"s_add_u32 m0, {s(sT0)}, 8192",
      f"v_lshrrev_b32 {v(X3)}, 4, {v(LANE)}",
      f"v_and_b32 {v(X5)}, 15, {v(LANE)}",
      f"s_lshl_b32 {s(sT1)}, {s(sGG)}, 11",
      f"v_lshl_add_u32 {v(X1)}, {v(X5)}, 7, {s(sT1)}",
      f"v_lshl_add_u32 {v(X1)}, {v(X3)}, 5, {v(X1)}",
      "s_waitcnt lgkmcnt(0)")
    stamp(1)
    o("s_load_dwordx2 s[4:5], s[0:1], 0")
    for n, f in ((0, 2), (2, 1), (1, 0)):
        for e in range(2):
            o(f"global_load_dwordx4 {v(RW+12*e+4*n,4)}, {v(VO+f)}, s[10:11] offset:{1024*e}")
    tl = ["s_waitcnt lgkmcnt(0)",
          f"global_load_dwordx4 {v(TB,4)}, {v(X1)}, s[4:5]",
          f"global_load_dwordx4 {v(TB+4,4)}, {v(X1)}, s[4:5] offset:16"]
    dw_ = [f"global_load_lds_dwordx4 {v(VO+3)}, s[10:11]",
           f"global_load_lds_dwordx4 {v(VO+3)}, s[10:11] offset:1024"]
    o(*tl, *dw_, "s_branch L_c1")

    o.c("==== waves 0-3: row compaction, gathers, scores, weighted sum ====")
    o.label("L_l0")
    o("s_setprio 3" if lp < 3 else "s_setprio 0",
      f"s_mul_i32 {s(sT0)}, {s(sGG)}, 640",
      f"v_lshlrev_b32 {v(VO+1)}, 4, {v(LANE)}",
      f"v_add_u32 {v(VO)}, {s(sT0)}, {v(VO+1)}",
      f"s_mul_i32 {s(sT1)}, {s(sG)}, 640",
      f"s_add_u32 {s(sT1)}, {s(sT1)}, {MASK}",
      f"s_mov_b32 m0, {s(sT1)}",
      f"v_lshl_add_u32 {v(VO+2)}, {v(LANE)}, 1, {s(sT1)}",
      "s_movk_i32 exec_hi, 0xff",
      "s_waitcnt lgkmcnt(0)")
    stamp(1)
    o(f"global_load_lds_dwordx4 {v(VO)}, s[8:9]", *kargs,
      f"s_mov_b32 m0, {MISC}",
      "s_mov_b64 exec, 0xff",
      f"s_mul_i32 {s(sT0)}, {s(sGG)}, 40960",
      "s_waitcnt lgkmcnt(0)",
      f"global_load_lds_dwordx4 {v(VO+1)}, s[12:13]",
      "s_mov_b64 exec, -1",
      f"v_lshlrev_b32 {v(VO+1)}, 1, {v(LANE)}",
      f"global_load_ushort {v(WV)}, {v(VO+1)}, s[14:15]")
    o(f"s_mov_b32 {s(sSRD+2)}, 40960",
      f"s_mov_b32 {s(sSRD+3)}, 0x20000",
      f"s_mul_i32 {s(sB)}, {s(sG)}, 1280",
      f"s_add_u32 {s(sB)}, {s(sB)}, {LIST}",
      f"s_mov_b32 {s(sK)}, 0xff80",
      f"s_lshl_b32 {s(sM0)}, {s(sG)}, 12")
    o.c("pad entries, then (row*128 | sample*8) in the high half")
    for i in range(4): o(f"v_mov_b32 {v(F0+i)}, {s(sK)}")
    o(f"v_lshl_add_u32 {v(F0+4)}, {v(LANE)}, 4, {s(sB)}",
      f"v_lshl_add_u32 {v(F0+5)}, {v(LANE)}, 2, {s(sB)}",
      f"ds_write_b128 {v(F0+4)}, {v(F0,4)}",
      f"ds_write_b32 {v(F0+5)}, {v(F0)} offset:1024",
      f"v_mul_u32_u24 {v(INFO)}, 8414824, {v(LANE)}")
    for j in range(1, 5): o(f"v_add_u32 {v(INFO+j)}, {hex(8414824*64*j)}, {v(INFO)}")
    o(f"v_lshrrev_b32 {v(X1)}, 3, {v(LANE)}",
      f"v_and_b32 {v(X2)}, 7, {v(LANE)}",
      f"v_lshl_add_u32 {v(ALD)}, {v(X1)}, 4, {s(sB)}",
      f"v_and_b32 {v(CE)}, 6, {v(X1)}",
      f"v_xor_b32 {v(CE)}, {v(CE)}, {v(X2)}",
      f"v_lshlrev_b32 {v(CE)}, 4, {v(CE)}",
      f"v_xor_b32 {v(CO)}, 16, {v(CE)}",
      f"v_and_b32 {v(X1)}, 3, {v(X1)}",
      f"v_lshl_add_u32 {v(AENT)}, {v(X2)}, 2, {v(X1)}",
      f"v_lshl_add_u32 {v(AENT)}, {v(AENT)}, 2, {s(sB)}",
      f"s_sub_u32 {s(sV)}, {s(sB)}, 124",
      f"s_lshl2_add_u32 {s(sT1)}, {s(sG)}, {MISC+256}",
      f"v_mov_b32 {v(ACNT)}, {s(sT1)}")
    o(f"v_and_b32 {v(VO)}, 3, {v(LANE)}",
      f"v_mov_b32 {v(MSK)}, 0",
      f"s_add_u32 {s(sSRD)}, s6, {s(sT0)}",
      f"s_addc_u32 {s(sSRD+1)}, s7, 0")
    dma = lambda r: f"buffer_load_dwordx4 {v(r)}, {s(sSRD,4)}, 0 offen{NT} lds"
    adr = lambda r, i: f"v_and_or_b32 {v(r+i)}, {v(r+i)}, {s(sK)}, {v(CO if i & 1 else CE)}"
    def dma_unit(u):
        for i in (2*u, 2*u+1):
            o(adr(LE, i), dma(LE+i))
            if i % 4 < 3: o("s_add_u32 m0, m0, 0x400")
            else: o("s_add_u32 m0, m0, 0xb400", "s_and_b32 m0, m0, 0xffff")
    issued = [2]
    def dma_point(pt):
        for u in range(2, 6):
            if pro[u-2] == pt:
                assert issued[0] == u
                dma_unit(u); issued[0] += 1
    if lp == 2: o("s_setprio 0")
    stamp(7)
    o("s_waitcnt vmcnt(2)")
    stamp(2)
    for j in range(5): o(f"ds_read_u16 {v(M+j)}, {v(VO+2)} offset:{128*j}")
    o("s_waitcnt lgkmcnt(0)")
    for j in range(5): o(f"v_cmp_ne_u32_e64 {s(sM+2*j,2)}, 0, {v(M+j)}")
    for j in range(5):
        o(f"s_mov_b64 exec, {s(sM+2*j,2)}",
          f"v_mbcnt_lo_u32_b32 {v(POS+j)}, {s(sM+2*j)}, 0",
          f"v_mbcnt_hi_u32_b32 {v(POS+j)}, {s(sM+2*j+1)}, {v(POS+j)}",
          f"v_alignbit_b32 {v(E+j)}, {v(M+j)}, {v(INFO+j)}, 16",
          f"v_lshl_add_u32 {v(POS+j)}, {v(POS+j)}, 2, {s(sB+j)}",
          f"ds_write_b32 {v(POS+j)}, {v(E+j)}",
          f"s_bcnt1_i32_b64 {s(sT0)}, {s(sM+2*j,2)}",
          f"s_lshl2_add_u32 {s(sB+j+1 if j < 4 else sT0)}, {s(sT0)}, {s(sB+j)}")
    o.c("list tiles are taken last to first, tile c in slot c&3; V = max(tiles, 6) steps, the leading ones empty")
    o(f"s_sub_u32 {s(sT0)}, {s(sT0)}, {s(sV)}",
      f"s_lshr_b32 {s(sN)}, {s(sT0)}, 7")
    if bench: o(f"s_mov_b32 {s(sN)}, {bench}")
    o(f"s_max_u32 {s(sV)}, {s(sN)}, 6",
      f"s_sub_u32 {s(sV)}, {s(sV)}, 6",
      f"s_lshl_b32 {s(sT1)}, {s(sV)}, 7",
      "s_mov_b64 exec, -1",
      f"v_add_u32 {v(GL)}, {s(sT1)}, {v(ALD)}")
    for i in range(3): o(f"ds_read_b128 {v(LE+4*i,4)}, {v(GL)} offset:{640-128*i}")
    o(f"global_load_ushort {v(B2)}, {v(MSK)}, s[16:17]",
      f"s_add_u32 {s(sT0)}, {s(sV)}, 1",
      f"s_and_b32 {s(sT0)}, {s(sT0)}, 3",
      f"s_lshl_b32 {s(sSL)}, {s(sT0)}, 14",
      f"s_add_u32 m0, {s(sSL)}, {s(sM0)}",
      f"v_mov_b32 {v(SUM)}, {s(sN)}",
      f"v_add_u32 {v(GE)}, {s(sT1)}, {v(AENT)}",
      "s_waitcnt lgkmcnt(2)")
    dma_unit(0); dma_unit(1)
    stamp(8)
    o(f"ds_write_b32 {v(ACNT)}, {v(SUM)}")
    for i in range(3): o(f"ds_read_b128 {v(LF+4*i,4)}, {v(ALD)} offset:{256-128*i}")
    o(f"ds_read_b32 {v(ENT)}, {v(AENT)} offset:640")
    o("s_waitcnt lgkmcnt(5)")
    dma_point(0)
    o.c("M = power of two at the largest |w2|; table of M/w2 with |w2| held above M*2^-29")
    if lp == 1: o("s_setprio 0")
    o(f"s_waitcnt vmcnt({1 + 2*issued[0]})",
      f"v_lshlrev_b32 {v(WV)}, 16, {v(WV)}",
      f"v_and_b32 {v(X1)}, 0x7fffffff, {v(WV)}",
      f"v_and_b32 {v(X2)}, 0x7f800000, {v(WV)}",
      f"v_lshlrev_b32 {v(VO+1)}, 2, {v(LANE)}",
      f"v_add_u32 {v(VO+1)}, {MISC}, {v(VO+1)}")
    for r in (1, 2, 4, 8):
        o(f"v_max_u32_dpp {v(X2)}, {v(X2)}, {v(X2)} row_ror:{r} row_mask:0xf bank_mask:0xf", "s_nop 1")
    o(*[f"v_readlane_b32 {s(sM+i)}, {v(X2)}, {16*i}" for i in range(4)],
      f"s_max_u32 {s(sM)}, {s(sM)}, {s(sM+1)}",
      f"s_max_u32 {s(sM+2)}, {s(sM+2)}, {s(sM+3)}",
      f"s_max_u32 {s(sM)}, {s(sM)}, {s(sM+2)}",
      f"s_max_u32 {s(sM)}, {s(sM)}, {hex((SH+1) << 23)}",
      f"s_min_u32 {s(sM)}, {s(sM)}, 0x7e800000",
      f"s_sub_u32 {s(sC0)}, {s(sM)}, {hex(SH << 23)}",
      f"s_sub_u32 {s(sM+1)}, {s(sM)}, {hex(29 << 23)}",
      f"s_sub_u32 {s(sM)}, 0x7f000000, {s(sM)}",
      f"v_max_u32 {v(X1)}, {s(sM+1)}, {v(X1)}",
      f"v_mul_f32 {v(X1)}, {s(sM)}, {v(X1)}",
      f"v_rcp_f32 {v(X1)}, {v(X1)}",
      f"v_and_b32 {v(WV)}, 0x80000000, {v(WV)}",
      f"v_or_b32 {v(X1)}, {v(X1)}, {v(WV)}",
      f"ds_write_b32 {v(VO+1)}, {v(X1)} offset:384",
      *(["s_setprio 0"] if lp == 0 else []), "s_waitcnt lgkmcnt(0)")
    stamp(3)
    o("s_barrier")
    stamp(14)
    dma_point(1)
    stamp(9)
    o(*[adr(LF, i) for i in range(12)])
    o.c("transposed fragments (row' = lane>>2), output offset, score matrix [kk][q][sample][4]")
    o(f"v_lshrrev_b32 {v(X4)}, 5, {v(LANE)}",
      f"v_lshrrev_b32 {v(X1)}, 2, {v(LANE)}",
      f"v_and_or_b32 {v(X2)}, {v(X1)}, 6, {v(X4)}",
      f"v_lshlrev_b32 {v(X2)}, 4, {v(X2)}",
      f"v_lshlrev_b32 {v(VO+3)}, 3, {v(VO)}",
      f"v_xor_b32 {v(X2)}, {v(X2)}, {v(VO+3)}",
      f"v_lshl_add_u32 {v(ATR)}, {v(X1)}, 7, {v(X2)}",
      f"v_add_u32 {v(ATR)}, {s(sM0)}, {v(ATR)}")
    for k in range(1, 4): o(f"v_xor_b32 {v(ATR+k)}, {32*k}, {v(ATR)}")
    for i in range(0, 16, 2): o(f"v_mov_b64 {v(ACC+i,2)}, 0")
    o(f"s_lshl_b32 {s(sT1)}, {s(sGG)}, 11",
      f"v_and_b32 {v(X0)}, 15, {v(LANE)}",
      f"v_lshl_add_u32 {v(AOUT)}, {v(X0)}, 7, {s(sT1)}",
      f"v_lshl_add_u32 {v(AOUT)}, {v(X4)}, 4, {v(AOUT)}",
      f"v_and_b32 {v(X2)}, 16, {v(LANE)}",
      f"v_lshl_add_u32 {v(AOUT)}, {v(X2)}, 1, {v(AOUT)}",
      f"s_lshl_b32 {s(sT0)}, {s(sG)}, 10",
      f"s_add_u32 {s(sT0)}, {s(sT0)}, {SBUF}",
      f"v_lshl_add_u32 {v(ASR)}, {v(LANE)}, 3, {s(sT0)}",
      f"v_and_b32 {v(CSW)}, 7, {v(X1)}",
      f"v_lshl_add_u32 {v(CSW)}, {v(CSW)}, 7, {s(sT0)}",
      f"v_lshl_add_u32 {v(CSW)}, {v(VO)}, 1, {v(CSW)}",
      f"ds_write2st64_b64 {v(ASR)}, {v(ACC,2)}, {v(ACC,2)} offset1:1",
      f"s_movk_i32 {s(s78)}, 0x78",
      f"v_lshlrev_b32 {v(N8)}, 3, {v(X0)}",
      f"v_and_or_b32 {v(ASW)}, {v(ENT)}, {s(s78)}, {v(CSW)}",
      f"v_and_b32 {v(MSK)}, 0xffff0000, {v(ENT)}",
      f"s_mov_b64 {s(sX,2)}, -1")
    stamp(10)
    o(f"s_waitcnt vmcnt({2*(issued[0]-2)})",
      f"v_lshlrev_b32 {v(B2)}, 16, {v(B2)}")
    dma_point(2)
    stamp(12)
    o("s_barrier")
    stamp(13)
    dma_point(3)
    if bench: o("s_waitcnt vmcnt(0)", "s_barrier")
    stamp(4)
    o(f"s_cmp_eq_u32 {s(sN)}, 0",
      "s_cbranch_scc1 L_store",
      f"s_waitcnt vmcnt({2*(issued[0]-3)})")
    dma_point(4)
    assert issued[0] == 6
    def store(first):
        for h_ in range(2):
            o(*[f"v_cvt_pk_bf16_f32 {v(OB+4*h_+i)}, {v(ACC+8*h_+2*i)}, {v(ACC+8*h_+2*i+1)}" for i in (0, 2, 1, 3)])
            o(first if h_ == 0 else "s_nop 0",
              f"v_permlane16_swap_b32 {v(OB+4*h_)}, {v(OB+4*h_+2)}",
              f"v_permlane16_swap_b32 {v(OB+4*h_+1)}, {v(OB+4*h_+3)}",
              f"global_store_dwordx4 {v(AOUT)}, {v(OB+4*h_,4)}, s[18:19] offset:{64*h_}{ST}")
    def score(ae, c, last=False, mid=None):
        o(f"ds_read_b32 {v(SUM)}, {v(ae)} offset:{DS+128*(c+1)}",
          f"ds_read_b32 {v(SUM+1)}, {v(ae)} offset:{DS+5120+128*(c+1)}")
        if not last: o(f"ds_read_b32 {v(ENT)}, {v(ae)} offset:{128*c}")
        if mid: mid()
        if not last: o("s_setprio 3")
        o(f"s_waitcnt lgkmcnt({0 if last else 1})",
          f"v_add_f32 {v(SUM)}, {v(SUM)}, {v(SUM+1)}",
          f"v_fma_f32 {v(SUM)}, {v(SUM)}, {s(sC0)}, {v(B2)}",
          f"v_mul_legacy_f32 {v(SUM)}, {v(SUM)}, {v(MSK)}",
          f"v_cvt_pk_bf16_f32 {v(SUM)}, {v(SUM)}, {v(SUM)}",
          f"ds_write_b16 {v(ASW)}, {v(SUM)}",
          f"ds_read2st64_b64 {v(SOP,4)}, {v(ASR)} offset1:1")
        if not last:
            o(f"ds_write_b16 {v(ASW)}, {v(MSK)}",
              f"ds_read_u16_d16_hi {v(MSK)}, {v(ae)} offset:{128*c+2}",
              "s_waitcnt lgkmcnt(4)",
              f"v_and_or_b32 {v(ASW)}, {v(ENT)}, {s(s78)}, {v(CSW)}",
              "s_setprio 0")
    fin = [m16(ACC+4*jj, TR+4*jj, SOP, v(ACC+4*jj,4)) for jj in range(4)]
    def trreads(at, off):
        for jj in range(4):
            for kk in range(2): o(f"ds_read_b64_tr_b16 {v(TR+4*jj+2*kk,2)}, {v(at+jj)} offset:{off+2048*kk}")
    def bar(j):
        if bars == 2 and j % 2 == 0: o(f"s_memrealtime {s(sST+2*(7+j//2),2)}")
        o("s_barrier")
        if bars == 1 and j % 2 == 0: o(f"s_memrealtime {s(sST+2*(7+j//2),2)}")
    def gather(j):
        for u in range(6, 12):
            if sched[u-6] == j:
                c, hf = 5 - u//2, u & 1
                o(f"s_add_u32 m0, {s(sM0)}, {16384*(c & 3) + 2048*hf}", "s_nop 0", dma(LF+2*(u-6)),
                  "s_add_u32 m0, m0, 0x400", "s_nop 0", dma(LF+2*(u-6)+1))
    def landed(j):
        have = 6 + sum(x <= j for x in sched)
        if j + 3 > 11: return []
        assert have > j + 3
        return [f"vmcnt({2*(have-4-j)})"]
    o(f"s_cmp_eq_u32 {s(sV)}, 0",
      "s_cbranch_scc0 L_more")
    o.c("---- the last six steps ----")
    o.label("L_lloop")
    for k in range(6):
        c = 5 - k
        bar(2*k)
        if k == 0:
            gather(0)
            o("s_waitcnt " + landed(0)[0])
            bar(1)
            o.label("L_join")
        else:
            score(AENT, c, mid=lambda: gather(2*k))
            o("s_waitcnt " + " ".join(landed(2*k) + ["lgkmcnt(0)"]), "s_setprio 3")
            bar(2*k+1)
            o(*fin, "s_setprio 0")
        gather(2*k+1)
        trreads(ATR, 16384*(c & 3))
        w = landed(2*k+1)
        if w: o("s_waitcnt " + w[0])
    if es:
        o.c("samples above the highest one in the last tile are final: store them now")
        o(f"s_cmp_gt_u32 {s(sN)}, 1", "s_cbranch_scc0 L_ne", "s_setprio 3",
          f"v_readlane_b32 {s(sT0)}, {v(ENT)}, 31",
          *[f"v_cvt_pk_bf16_f32 {v(OB+i)}, {v(ACC+2*i)}, {v(ACC+2*i+1)}" for i in range(8)],
          f"s_and_b32 {s(sT0)}, {s(sT0)}, 0x78",
          f"v_cmp_ge_u32_e64 {s(sX,2)}, {s(sT0)}, {v(N8)}",
          *[f"v_permlane16_swap_b32 {v(OB+i)}, {v(OB+i+2)}" for i in (0, 1, 4, 5)],
          "s_setprio 0", f"s_not_b64 exec, {s(sX,2)}",
          *[f"global_store_dwordx4 {v(AOUT)}, {v(OB+4*h_,4)}, s[18:19] offset:{64*h_}{ST}" for h_ in range(2)],
          "s_mov_b64 exec, -1")
        o.label("L_ne")
    bar(12)
    score(AENT, -1, True)
    o("s_waitcnt lgkmcnt(0)", *fin, "s_nop 0")
    o.label("L_store")
    stamp(5)
    o("s_nop 3")
    store(f"s_mov_b64 exec, {s(sX,2)}")
    o("s_branch L_fin" if stamps else "s_endpgm")
    def more():
        o.c("---- steps while more than six tiles remain: tile c = V + 5, gather tile c - 3 ----")
        o.label("L_more")
        o(*[f"v_mov_b64 {v(TR+i,2)}, 0" for i in range(0, 16, 2)], f"v_mov_b32 {v(MSK)}, 0")
        o.label("L_more2")
        o("s_barrier")
        score(GE, 5)
        o(f"ds_read_b128 {v(LE,4)}, {v(GL)} offset:256",
          *[f"v_add_u32 {v(GT+i)}, {s(sSL)}, {v(ATR+i)}" for i in range(4)],
          f"s_add_u32 {s(sT0)}, {s(sSL)}, 0x4000",
          f"s_and_b32 {s(sT0)}, {s(sT0)}, 0xffff",
          f"s_add_u32 m0, {s(sT0)}, {s(sM0)}",
          f"s_add_u32 {s(sSL)}, {s(sSL)}, 0xc000",
          f"s_and_b32 {s(sSL)}, {s(sSL)}, 0xffff",
          f"v_subrev_u32 {v(GL)}, 0x80, {v(GL)}",
          f"v_subrev_u32 {v(GE)}, 0x80, {v(GE)}",
          "s_waitcnt vmcnt(4) lgkmcnt(0)", "s_setprio 3",
          "s_barrier", *fin)
        trreads(GT, 0)
        dma_unit(0); dma_unit(1)
        o("s_setprio 0",
          f"s_sub_u32 {s(sV)}, {s(sV)}, 1",
          f"s_cmp_eq_u32 {s(sV)}, 0",
          "s_waitcnt vmcnt(6)",
          "s_cbranch_scc0 L_more2",
          "s_barrier")
        score(AENT, 5)
        gather(0)
        o("s_waitcnt " + " ".join(landed(0) + ["lgkmcnt(0)"]), "s_setprio 3", "s_barrier", *fin, "s_setprio 0", "s_branch L_join")

    if not mv: more()
    o.c("==== waves 4-7: weight staging, per-sample terms, then the activation unit ====")
    o.label("L_c1")
    o(f"v_add_u32 {v(AWW)}, {s(sT0)}, {v(X2)}",
      f"v_and_b32 {v(X0)}, 3, {v(LANE)}",
      f"v_lshlrev_b32 {v(X1)}, 4, {v(X0)}")
    o.c("4x4 identity, its negative, the selection operands and the two factors of -log2(e)")
    o(f"v_mov_b32 {v(ID)}, 1",
      f"v_mov_b32 {v(ID+1)}, 0",
      f"v_lshlrev_b64 {v(ID,2)}, {v(X1)}, {v(ID,2)}",
      f"v_mul_u32_u24 {v(PID)}, 0x3f80, {v(ID)}",
      f"v_mul_u32_u24 {v(PID+1)}, 0x3f80, {v(ID+1)}",
      f"v_mul_u32_u24 {v(NID)}, 0xbf80, {v(ID)}",
      f"v_mul_u32_u24 {v(NID+1)}, 0xbf80, {v(ID+1)}",
      *[f"v_mov_b64 {v(OHV+2*i,2)}, 0" for i in range(4)],
      f"s_mov_b32 {s(sT1)}, {OHT}",
      f"v_lshl_add_u32 {v(X1)}, {v(LANE)}, 3, {s(sT1)}",
      f"v_lshl_add_u32 {v(COH)}, {v(X3)}, 7, {s(sT1)}",
      "s_mov_b32 exec_lo, 0x00f0000f",
      "s_mov_b32 exec_hi, 0xf0000f00",
      f"v_mov_b64 {v(SEL+2,2)}, {v(PID,2)}",
      f"v_mul_u32_u24 {v(OHV)}, {hex(FB)}, {v(ID)}",
      f"v_mul_u32_u24 {v(OHV+1)}, {hex(FB)}, {v(ID+1)}",
      "s_mov_b64 exec, -1",
      f"ds_write_b64 {v(X1)}, {v(OHV,2)}",
      f"v_mul_u32_u24 {v(ID)}, {hex(FA)}, {v(ID)}",
      f"v_mul_u32_u24 {v(ID+1)}, {hex(FA)}, {v(ID+1)}",
      f"s_mov_b32 {s(sNL)}, {hex(NLOG2E)}",
      f"s_mov_b32 {s(sNL+1)}, {hex(NLOG2E)}",
      f"s_mov_b32 {s(sNB)}, {hex(NLOG2E_B)}",
      f"s_mov_b32 {s(sNB+1)}, {hex(NLOG2E_B)}",
      f"s_mov_b32 {s(sC0)}, {hex(f2u(2.0**-SH))}",
      f"s_mov_b32 {s(sC0+1)}, {hex(f2u(2.0**-SH))}",
      f"s_movk_i32 {s(s78)}, 0x78")
    o.c("staging read address (16q + r)*128 + (q&1)*64 + (r>>1)*32 + c*8")
    o(f"v_bfe_u32 {v(X1)}, {v(LANE)}, 2, 2",
      f"v_lshl_add_u32 {v(X1)}, {v(X3)}, 4, {v(X1)}",
      f"v_and_b32 {v(X2)}, 24, {v(LANE)}",
      f"v_lshl_add_u32 {v(X2)}, {v(X0)}, 1, {v(X2)}",
      f"v_lshlrev_b32 {v(X2)}, 2, {v(X2)}",
      f"v_lshl_add_u32 {v(AWR)}, {v(X1)}, 7, {v(X2)}",
      f"v_add_u32 {v(AWR)}, {WST}, {v(AWR)}",
      *[f"v_xor_b32 {v(AWR+k)}, {32*k}, {v(AWR)}" for k in range(1, 4)],
      f"s_mov_b32 {s(sT1)}, {MISC}",
      f"v_lshl_add_u32 {v(AB1)}, {v(X5)}, 1, {s(sT1)}",
      f"v_lshl_add_u32 {v(AC2)}, {v(X3)}, 4, {s(sT1)}",
      *[f"v_mov_b32 {v(SHQ+i)}, {hex(f2u(-float(SH)))}" for i in range(4)],
      f"s_lshl2_add_u32 {s(sT1)}, {s(sG)}, {s(sT1)}",
      f"v_mov_b32 {v(VO+2)}, {s(sT1)}",
      f"v_mov_b64 {v(RB1,2)}, 0",
      f"v_mov_b64 {v(RB1+2,2)}, 0")
    o.c("entry, row-sum and fragment addresses")
    o(f"s_mul_i32 {s(sT0)}, {s(sG)}, 1280",
      f"s_add_u32 {s(sT0)}, {s(sT0)}, {LIST-256}",
      f"v_bfe_u32 {v(X1)}, {v(LANE)}, 3, 1",
      f"v_and_b32 {v(X2)}, 7, {v(LANE)}",
      f"v_lshl_add_u32 {v(X2)}, {v(X2)}, 2, {v(X1)}",
      f"v_lshl_add_u32 {v(CENT)}, {v(X2)}, 2, {s(sT0)}",
      f"v_lshrrev_b32 {v(X2)}, 5, {v(LANE)}",
      f"v_mul_u32_u24 {v(CSUM)}, 5120, {v(X2)}",
      f"v_lshrrev_b32 {v(X2)}, 1, {v(X4)}",
      f"v_add_u32 {v(CSUM)}, {v(X2)}, {v(CSUM)}",
      f"s_movk_i32 {s(sINC)}, 0xff80",
      f"s_movk_i32 {s(sINC+1)}, 0xff7f",
      f"v_and_or_b32 {v(X1)}, {v(LANE)}, 6, {v(X1)}",
      f"v_lshlrev_b32 {v(X2)}, 1, {v(X3)}",
      f"v_xor_b32 {v(X1)}, {v(X1)}, {v(X2)}",
      f"s_lshl_b32 {s(sT0)}, {s(sG)}, 12",
      f"v_lshl_add_u32 {v(X2)}, {v(X5)}, 7, {s(sT0)}",
      f"v_lshl_add_u32 {v(AH)}, {v(X1)}, 4, {v(X2)}",
      f"v_xor_b32 {v(AH+1)}, 16, {v(AH)}")
    if lp: o("s_setprio 2")
    stamp(7)
    o("s_waitcnt vmcnt(8)")
    stamp(2)
    fr = lambda mat, e: UF+16*mat+8*e
    ini = lambda mat: [m4(fr(mat,e)+4*i, NID if mat else PID, RW+12*e+2*i) for e in range(2) for i in range(2)]
    acc = lambda mat: [m4(fr(mat,e)+4*i, PID, RW+12*e+4+4*mat+2*i, v(fr(mat,e)+4*i,4)) for e in range(2) for i in range(2)]
    def pack(mat, e):
        f = fr(mat, e)
        return ([f"v_pk_mul_f32 {v(f+2*i,2)}, {v(f+2*i,2)}, {s(sNB if mat else sNL,2)}" for i in range(4)]
                + [f"v_cvt_pk_bf16_f32 {v(f+i)}, {v(f+2*i)}, {v(f+2*i+1)}" for i in range(4)]
                + [f"ds_write_b128 {v(AWW)}, {v(f,4)} offset:{16384*mat+1024*e}"])
    o(*ini(1), *ini(0), "s_waitcnt vmcnt(6)", *acc(1), "s_waitcnt vmcnt(4)", *acc(0))
    o(*pack(1, 0), *pack(1, 1), *pack(0, 0), *pack(0, 1))
    o(*([] if lp else ["s_setprio 2"]), "s_waitcnt lgkmcnt(0)")
    stamp(3)
    o("s_barrier")
    stamp(14)
    wfrag = lambda mat, t, ks: 16*t + 8*mat + 4*ks
    def wreads(mat):
        return [f"ds_read_b64_tr_b16 {a(wfrag(mat,t,ks)+2*kk,2)}, {v(AWR+t)} offset:{8192*mat+1024*ks+512*kk}"
                for t in range(4) for ks in range(2) for kk in range(2)]
    rdH = lambda u, k: f"ds_read_b128 {v(H[u]+4*k,4)}, {v(AH+k)} offset:{2048*u}"
    rdOH = lambda u: f"ds_read_b64 {v(OH[u],2)}, {v(CEN+u)}"
    rdE = f"ds_read2_b32 {v(CEN,2)}, {v(CENT)} offset1:34"
    bumpH = lambda k: f"v_add_u16 {v(AH+k)}, 0xc000, {v(AH+k)}"
    dec = lambda u: f"v_and_or_b32 {v(CEN+u)}, {v(CEN+u)}, {s(s78)}, {v(COH)}"
    MU = lambda u, t: k16(D[u]+4*t, UT+2*t, OH[u], v(SHQ,4))
    MG = lambda u, t: k16(T[u]+4*t, TT+2*t, OH[u])
    o.c("per-sample bias u = t @ (Wb - Wc) + b1 and t itself as [feature][sample] operands")
    ur = [f"ds_read_b64_tr_b16 {v(UF+8*t+4*ks+2*kk,2)}, {v(AWR+t)} offset:{16384+1024*ks+512*kk}"
          for t in range(4) for ks in range(2) for kk in range(2)]
    wa, wd = wreads(0), wreads(1)
    o(f"ds_read_b32 {v(X2)}, {v(VO+2)} offset:256", *ur[:8])
    for t in range(4): o(f"ds_read_u16_d16_hi {v(RB1+t)}, {v(AB1)} offset:{32*t}")
    o("s_waitcnt lgkmcnt(12)",
      f"v_lshl_add_u32 {v(CENT)}, {v(X2)}, 7, {v(CENT)}",
      f"v_readfirstlane_b32 {s(sN)}, {v(X2)}",
      f"ds_read2_b32 {v(CEN,2)}, {v(CENT)} offset0:32 offset1:34",
      f"ds_read_b32 {v(SA)}, {v(CENT)}")
    for t in range(4): o(f"ds_read_b128 {v(W2+4*t,4)}, {v(AC2)} offset:{384+64*t}")
    o(*ur[8:])
    o(f"v_add_u32 {v(CSUM)}, {v(CSUM)}, {v(CENT)}",
      f"s_max_u32 {s(sV)}, {s(sN)}, {vmin}",
      f"s_sub_u32 {s(sV)}, {s(sV)}, {s(sN)}",
      f"s_lshl_b32 {s(sV)}, {s(sV)}, 1",
      f"s_add_u32 {s(sT0)}, {s(sN)}, 3",
      f"s_lshl_b32 {s(sT0)}, {s(sT0)}, 14",
      "s_waitcnt lgkmcnt(8)",
      dec(0), dec(1), rdOH(0), rdOH(1), *wa[:5])
    o(*[f"v_pk_mul_f32 {v(UD+2*i,2)}, {v(RB1+(i//2 & 2),2)}, {s(sNB,2)} op_sel:[{i//2 & 1},0] op_sel_hi:[{i//2 & 1},1]" for i in range(8)])
    o(*[f"v_pk_mul_f32 {v(CW+2*i,2)}, {v(W2+2*i,2)}, {s(sC0,2)}" for i in range(8)])
    o(*wa[5:])
    o(f"v_and_or_b32 {v(CEN)}, {v(SA)}, {s(s78)}, {v(COH)}",
      *[f"v_add_u16 {v(AH+i)}, {s(sT0)}, {v(AH+i)}" for i in range(2)])
    o("s_waitcnt vmcnt(2) lgkmcnt(15)")
    stamp(9)
    um = lambda t, ks: m16(UD+4*t, TB+4*ks, UF+8*t+4*ks, v(UD+4*t,4))
    cvp = lambda dst, src, t: [f"v_cvt_pk_bf16_f32 {v(dst+2*t+i)}, {v(src+4*t+2*i)}, {v(src+4*t+2*i+1)}" for i in range(2)]
    o(*[m16(TD+4*t, TB+4*(t>>1), SEL+2-2*(t&1), 0) for t in range(4)])
    o(um(0,0), um(0,1), um(1,0), um(1,1), um(2,0), *cvp(TT,TD,0), um(2,1), *cvp(TT,TD,1))
    o(um(3,0), *cvp(TT,TD,2), um(3,1), *cvp(TT,TD,3))
    o(MG(0,0), *cvp(UT,UD,0), MG(0,1), *cvp(UT,UD,1), MG(0,2), *cvp(UT,UD,2), MG(0,3), *cvp(UT,UD,3))
    o(*[MU(0,t) for t in range(4)], f"s_sub_u32 {s(sN)}, {s(sN)}, 1", "s_waitcnt vmcnt(0)", "s_cbranch_scc1 L_cexit")
    stamp(12)
    if bench: o("s_barrier")
    o(f"s_cmp_lg_u32 {s(sV)}, 0", "s_barrier")
    stamp(13)
    stamp(4)

    def MM(u, j):
        mat, t, ks = j >> 3, (j >> 1) & 3, j & 1
        b = (HF if mat else H)[u] + 4*ks
        return f"v_mfma_f32_16x16x32_bf16 {v(D[u]+4*t,4)}, {a(wfrag(mat,t,ks),4)}, {v(b,4)}, {v(D[u]+4*t,4)}"
    ex = lambda u, i: f"v_exp_f32_e64 {v(D[u]+i)}, {v(D[u]+i)} clamp"
    un = lambda u, k: m4(HF[u]+4*k, ID, H[u]+2*k)
    p = lambda b: v(b, 2)
    def tree(u):
        r = D[u]
        out = [f"v_pk_fma_f32 {p(r+2*i)}, {p(r+2*i)}, {p(W2+2*i)}, {p(CW+2*i)}" for i in range(8)]
        for g in range(4):
            x, y = r+4*g, r+4*g+2
            out += [f"v_pk_add_f32 {p(N+2*g)}, {p(x)}, {p(y)}",
                    f"v_pk_mul_f32 {p(x)}, {p(x)}, {p(y)}"]
        for g in range(2):
            x, y = r+8*g, r+8*g+4
            out += [f"v_pk_mul_f32 {p(N+4*g)}, {p(N+4*g)}, {p(y)}",
                    f"v_pk_fma_f32 {p(N+4*g)}, {p(N+4*g+2)}, {p(x)}, {p(N+4*g)}",
                    f"v_pk_mul_f32 {p(N+4*g+2)}, {p(x)}, {p(y)}"]
        return out
    pmul = lambda u: [f"v_pk_mul_f32 {p(HF[u]+2*i)}, {p(HF[u]+2*i)}, {p(T[u]+2*i)}" for i in range(8)]
    rc = lambda i: f"v_rcp_f32 {v(N+4*(i//2)+2+i%2)}, {v(N+4*(i//2)+2+i%2)}"
    fm = lambda d, i: f"v_{'fmac' if i else 'mul'}_f32 {v(d)}, {v(N+4*(i//2)+i%2)}, {v(N+4*(i//2)+2+i%2)}"
    cv = lambda u, j: f"v_cvt_pk_bf16_f32 {v(HF[u]+j)}, {v(HF[u]+2*j)}, {v(HF[u]+2*j+1)}"
    swap = f"v_permlane16_swap_b32 {v(SA)}, {v(SB)}"
    sadd = f"v_add_f32 {v(SA)}, {v(SA)}, {v(SB)}"
    sumw = lambda off: f"ds_write_b32 {v(CSUM)}, {v(SA)} offset:{DS+off}"

    o.c("---- pipeline fill: rows 0-15 of the first tile ----")
    hr = [rdH(0,0), rdH(0,1), rdH(1,0), rdH(1,1)]
    o(*hr, *wd[:8], rdOH(0), *[MG(1,t) for t in range(4)], "s_cbranch_scc1 L_skip")
    o("s_waitcnt lgkmcnt(11)")
    o.label("L_fill")
    mu = lambda u, i: f"v_mul_f32 {v(HF[u]+i)}, {v(HF[u]+i)}, {v(T[u]+i)}"
    pa = [mu(0,i) for i in range(8)] + [cv(0,j) for j in range(4)] + [mu(0,i) for i in range(8,16)] + [cv(0,j) for j in range(4,8)]
    o(*[un(0,k) for k in range(4)])
    cut = [0, 2, 5, 8, 11, 14, 17, 20, 21]
    for j in range(8): o(MM(0,j), wd[8+j], *pa[cut[j]:cut[j+1]])
    o("s_waitcnt lgkmcnt(8)", "s_cbranch_scc1 L_skip2")
    o.label("L_fill2")
    o(*weave([un(1,k) for k in range(4)], pa[21:]), "s_waitcnt lgkmcnt(0)")
    for j in range(8, 16): o(MM(0,j), mu(1,2*j-16), mu(1,2*j-15))
    o(MU(1,0), bumpH(0), bumpH(1))

    o.c("---- tile loop: rows 16-31 of tile i, then rows 0-15 of tile i+1 ----")
    o(".p2align 3")
    o.label("L_alpha")
    o(MU(1,1), rc(0), cv(1,0))
    o(MU(1,2), rc(1), cv(1,1))
    o(MU(1,3), rc(2), fm(SB,0))
    ga = [[f"s_sub_u32 {s(sN)}, {s(sN)}, 1", rc(3)], [fm(SB,1), fm(SB,2)], [fm(SB,3), cv(1,2)], [cv(1,3), swap],
          [cv(1,4), sadd], [sumw(256)], [cv(1,5), cv(1,6)], [cv(1,7), ex(0,0)],
          [ex(0,1)], ["s_waitcnt lgkmcnt(0)", "s_barrier"], [rdH(0,0), rdH(0,1)], [ex(0,2)],
          [ex(0,3)], [ex(0,4)], [ex(0,5)], ["s_cbranch_scc1 L_drain", ex(0,6)]]
    for j in range(16): o(MM(1,j), *ga[j])
    bump = f"v_lshl_add_u64 {p(CENT)}, {p(CENT)}, 0, {s(sINC,2)}"
    o(MG(0,0), ex(0,7), ex(0,8), MG(0,1), ex(0,9), MG(0,2), ex(0,10), ex(0,11), MG(0,3), "s_waitcnt lgkmcnt(0)", ex(0,12))
    o(un(0,0), bump, un(0,1), ex(0,13), un(0,2), un(0,3), ex(0,14), ex(0,15))
    o.even("L_alpha")
    o(*tree(0), *pmul(0))
    o(MU(0,0), cv(0,0), cv(0,1), cv(0,2))
    o(MU(0,1), rc(0), cv(0,3))
    o(MU(0,2), rc(1), cv(0,4))
    o(MU(0,3), rc(2), cv(0,5))
    gb = [[rdE, cv(0,6)], [rc(3)], [cv(0,7), fm(SA,0)], [fm(SA,1), fm(SA,2)],
          [ex(1,0)], ["s_waitcnt lgkmcnt(0)", dec(0), dec(1)], [rdOH(1), rdOH(0)], [ex(1,1)],
          [ex(1,2)], ["s_barrier", rdH(1,0)], [rdH(1,1), ex(1,3)], [ex(1,4)],
          [ex(1,5)], [ex(1,6)], [ex(1,7)], ["s_waitcnt lgkmcnt(2)", ex(1,8)]]
    for j in range(16): o(MM(0,j), *gb[j])
    o(MG(1,0), ex(1,9), fm(SA,3), MG(1,1), ex(1,10), bumpH(0), MG(1,2), ex(1,11), bumpH(1), MG(1,3), "s_waitcnt lgkmcnt(0)", ex(1,12))
    o(un(1,0), un(1,1), ex(1,13), un(1,2), un(1,3), ex(1,14), ex(1,15))
    o.even("L_alpha")
    o(*tree(1), *pmul(1))
    o(MU(1,0), "s_branch L_alpha")
    o.c("---- pipeline drain: last tile ----")
    o(".p2align 3")
    o.label("L_drain")
    pc = lambda d: [f"v_pk_mul_f32 {p(d)}, {p(N)}, {p(N+2)}", f"v_pk_fma_f32 {p(d)}, {p(N+4)}, {p(N+6)}, {p(d)}",
                    f"v_add_f32_e64 {v(d)}, {v(d)}, {v(d+1)}"]
    o(*[ex(0,i) for i in range(6, 16)], *tree(0))
    o("s_barrier", rc(0), rc(1), rc(2), rc(3), *[ex(1, i) for i in range(16)])
    o.even("L_drain")
    o(*pc(SA), *tree(1), rc(0), rc(1), rc(2), rc(3), *pc(SB))
    o("s_nop 1", swap, sadd, sumw(128), "s_waitcnt lgkmcnt(0)", "s_barrier")
    o.label("L_cexit")
    stamp(5)
    o("s_branch L_fin" if stamps else "s_endpgm")
    o.c("---- a group with fewer than six tiles sits out the leading steps ----")
    o.label("L_skip")
    o("s_barrier",
      f"s_sub_u32 {s(sV)}, {s(sV)}, 1",
      f"s_cmp_eq_u32 {s(sV)}, 1",
      "s_cbranch_scc0 L_skip")
    o(*hr[:2], "s_waitcnt lgkmcnt(0)", "s_branch L_fill")
    o.label("L_skip2")
    o("s_barrier", *hr[2:], "s_waitcnt lgkmcnt(0)")
    o.label("L_last")
    o("s_branch L_fill2")
    if mv: more()
    o.label("L_fin")
    if dg >= 0:
        stamp(6)
        from diag import diag_tail
        diag_tail(o, sST, sW, da, dg, K, dw, rel=rel)
    elif stamps:
        stamp(6)
        o("s_waitcnt vmcnt(0)", "s_mov_b64 exec, -1")
        stamp(11)
        o("s_sleep 40", "s_load_dwordx2 s[54:55], s[0:1], 72", "s_waitcnt lgkmcnt(0)")
        for i in range(15): o(f"v_mov_b32 {v(i)}, {s(sST+2*i)}")
        o(f"v_mov_b32 v15, {s(sN)}",
          f"s_xor_b32 {s(sW)}, {s(sW)}, 4",
          f"s_lshl3_add_u32 {s(sT0)}, s2, {s(sW)}",
          f"s_lshl_b32 {s(sT0)}, {s(sT0)}, 6",
          f"v_mov_b32 v16, {s(sT0)}",
          "s_mov_b64 exec, 1")
        for i in range(4): o(f"global_store_dwordx4 v16, v[{4*i}:{4*i+3}], s[54:55] offset:{16*i}")
    o.label("L_end")
    o("s_endpgm")

    if abl:
        i0 = o.l.index("L_lloop:"); i1 = o.l.index("L_c1:")
        def dropL(x):
            if abl & 1 and ("ds_" in x or x.strip().startswith("v_") or "buffer_" in x): return True
            if abl & 2 and "mfma" in x: return True
            return False
        o.l = o.l[:i0] + [x for x in o.l[i0:i1] if not dropL(x)] + o.l[i1:]
    if cyc: o.l = [x.replace("s_memrealtime", "s_memtime") for x in o.l]
    head = open(f"cdna_kernels/{NAME}.s.ref").read().split("; Override launch")[0]
    return (head + DOC + f"; @launch grid=(256,1,1) block=(512,1,1) lds={LDS_BYTES}\n"
        + '.amdgcn_target "amdgcn-amd-amdhsa--gfx950"\n.text\n'
        + f".globl {NAME}_kernel\n.p2align 8\n.type {NAME}_kernel,@function\n{NAME}_kernel:\n"
        + o.text()
        + f'.section .rodata,"a"\n.p2align 6\n.amdhsa_kernel {NAME}_kernel\n'
        + f"  .amdhsa_next_free_vgpr {NV+64}\n  .amdhsa_next_free_sgpr 100\n  .amdhsa_accum_offset {NV}\n"
        + "  .amdhsa_group_segment_fixed_size 0\n  .amdhsa_kernarg_size 80\n  .amdhsa_user_sgpr_count 2\n"
        + "  .amdhsa_user_sgpr_kernarg_segment_ptr 1\n  .amdhsa_system_sgpr_workgroup_id_x 1\n.end_amdhsa_kernel\n")

if __name__ == "__main__":
    kw = dict(x.split("=") for x in sys.argv[2:])
    kw = {k: int(val) for k, val in kw.items()}
    open(sys.argv[1], "w").write(gen(**kw))
```

```python
import sys, struct, re, math

NAME = "standalone__sequential_behavior_din__recsys"

HIST = 0
SBUF = 65536
WST  = 69632
LIST = 95232
SUMS = 100352
MISC = 110848
OHT  = 111616
MASK = 112128
LDS_BYTES = MASK + 2560
DS = SUMS - LIST
SH = 30
FA, FB = 0xbfd4, 0x3f5f
def f2u(x): return struct.unpack("<I", struct.pack("<f", x))[0]
NLOG2E = f2u(-math.log2(math.e))
NLOG2E_B = f2u(-math.log2(math.e) / 0.87109375)

DOC = """;
"""

class Asm:
    def __init__(self): self.l = []
    def __call__(self, *ss):
        for x in ss: self.l.append("    " + x)
    def label(self, s): self.l.append(s + ":")
    def c(self, s): self.l.append("    ; " + s)
    def text(self): return "\n".join(self.l) + "\n"
    def even(self, start):
        short = re.compile(r"\s*(v_exp_f32|v_rcp_f32|v_fmac_f32|v_mul_f32|v_add_f32|v_and_b32|v_permlane16_swap_b32) ")
        n4 = [i for i in range(self.l.index(start + ":") + 1, len(self.l))
              if short.match(self.l[i]) or re.match(r"\s*s_(?!mem)", self.l[i])]
        if len(n4) % 2:
            i = [j for j in n4 if short.match(self.l[j]) and "perm" not in self.l[j]][-1]
            self.l[i] = re.sub(r"(v_\w+) ", r"\1_e64 ", self.l[i], 1)

def v(b, n=1): return f"v{b}" if n == 1 else f"v[{b}:{b+n-1}]"
def a(b, n=1): return f"a{b}" if n == 1 else f"a[{b}:{b+n-1}]"
def s(b, n=1): return f"s{b}" if n == 1 else f"s[{b}:{b+n-1}]"
def m4(d, aa, b, c=0): return f"v_mfma_f32_4x4x4_16b_bf16 {v(d,4)}, {v(aa,2)}, {v(b,2)}, {c}"
def m16(d, aa, b, c): return f"v_mfma_f32_16x16x32_bf16 {v(d,4)}, {v(aa,4)}, {v(b,4)}, {c}"
def k16(d, aa, b, c=0): return f"v_mfma_f32_16x16x16_bf16 {v(d,4)}, {v(aa,2)}, {v(b,2)}, {c}"
def weave(main, fill, k=1):
    out, j = [], 0
    for x in main:
        out.append(x); out += fill[j:j+k]; j += k
    return out + fill[j:]

def gen(nt=1, stamps=0, dg=-1, da=0, K=20, dw=0, rel=0, bench=0, pfd=1, pro=1133, sched="3456789abcde",
        abl=0, bars=0, cyc=0, es=1, lp=1, mv=1):
    vmin = 6
    pro = [int(x) for x in f"{pro:04d}"]; sched = [int(x, 16) for x in sched]
    assert len(sched) == 12 and sched == sorted(sched) and sched[4] >= 5 and sched[8] >= 9
    stamps = stamps or dg >= 0
    o = Asm()
    NT = " nt" if nt else ""
    ST = " sc1"
    sV = 3
    sW, sG, sGG, sN = 20, 21, 22, 23
    sM = 24
    sB = 34
    s78, sM0, sK, sSL = 40, 41, 42, 43
    sNL, sC0, sNB = 44, 46, 24
    sSRD = 48
    sT0, sT1 = 52, 53
    sINC = 54
    sST = 56
    sPC = 88
    sE, sX = 34, 36
    def stamp(i):
        if bench:
            if i in (4, 5):
                o(f"s_memtime {s(sST+2*i,2)}", f"s_memrealtime {s(sST+2*i-4,2)}")
        elif stamps and not (bars and 7 <= i <= 13) and (stamps == 1 or i in (0, 5, 6, 11)):
            o(f"s_memrealtime {s(sST+2*i,2)}")
    LANE = 1
    NV = 192
    X0, X1, X2, X3, X4, X5 = 22, 23, 24, 25, 26, 27
    VO = 28
    M, INFO, E, POS = 2, 7, 12, 17
    LF = 2
    CE, CO, ALD, AENT, ATR, F0 = 54, 55, 56, 57, 60, 64
    GL, GE, GT = 58, 59, 72
    ACC, TR, LE, SOP, SUM = 116, 132, 148, 164, 168
    ASR, CSW, MSK, ENT, B2, AOUT, ACNT, N8 = range(170, 178)
    WV = 179
    ASW, OB = 180, 184
    D, T, HF, H = (0, 16), (32, 48), (64, 80), (96, 104)
    W2, TT, UT, N, OH = 112, 128, 136, 144, (152, 154)
    AH, CENT, CSUM, ID, SA, SB, CEN, COH = 156, 158, 159, 160, 162, 164, 166, 165
    AWR, AWW, AC2, AB1, OHV, SEL = 188, 2, 3, 4, 144, 146
    CW, SHQ = 172, 168
    RW, TB, RW2, AW2, RB1, PID, NID = 32, 56, 6, 7, 8, 12, 14
    UF, UD, TD = 64, 96, 16

    stamp(0)
    o("s_load_dwordx4 s[8:11], s[0:1], 16")
    if pfd:
        o.c("each wave pulls one 128-byte line of this code into L2")
        o(f"s_getpc_b64 {s(sPC,2)}")
        o.label("L_pc")
        o(f"s_and_b32 {s(sT0)}, s2, 0x38",
          f"s_lshl_b32 {s(sT0)}, {s(sT0)}, 7",
          "v_and_b32 v20, 0x1e0, v0",
          f"v_lshl_add_u32 v20, v20, 1, {s(sT0)}",
          "v_min_u32 v20, L_last-L_pc-320, v20",
          f"global_load_dword v21, v20, {s(sPC,2)} offset:320")
    o("v_lshrrev_b32 v2, 6, v0",
      "s_cmp_ge_u32 s2, 0x100",
      f"v_readfirstlane_b32 {s(sW)}, v2",
      "s_cbranch_scc1 L_end",
      f"v_and_b32 {v(LANE)}, 63, v0")
    kargs = ["s_load_dwordx4 s[4:7], s[0:1], 0", "s_load_dwordx8 s[12:19], s[0:1], 32"]
    o(f"s_and_b32 {s(sG)}, {s(sW)}, 3",
      f"s_lshl2_add_u32 {s(sGG)}, s2, {s(sG)}",
      f"s_cmp_lt_u32 {s(sW)}, 4",
      "s_cbranch_scc1 L_l0")
    o.c("==== waves 4-7, first loads ====")
    o.c("a wave stages 16 rows of w1; slot p of row d holds chunk p ^ 2*d1 ^ 4*d4")
    sR = sG
    o(f"s_and_b32 {s(sT1)}, {s(sR)}, 1",
      f"s_lshl_b32 {s(sT0)}, {s(sR)}, 11",
      f"s_lshl_b32 {s(sT1)}, {s(sT1)}, 6",
      f"s_or_b32 {s(sT1)}, {s(sT1)}, {s(sT0)}",
      f"v_and_b32 {v(X4)}, 16, {v(LANE)}",
      f"v_lshlrev_b32 {v(X2)}, 4, {v(LANE)}",
      f"v_lshlrev_b32 {v(X0)}, 1, {v(X4)}",
      f"v_xor_b32 {v(X0)}, {v(X0)}, {v(X2)}",
      f"v_xor_b32 {v(VO)}, {s(sT1)}, {v(X0)}")
    for f in range(1, 4): o(f"v_add_u32 {v(VO+f)}, {8192*f}, {v(VO)}")
    o(f"s_add_u32 {s(sT0)}, {s(sT0)}, {WST}",
      f"s_add_u32 m0, {s(sT0)}, 8192",
      f"v_lshrrev_b32 {v(X3)}, 4, {v(LANE)}",
      f"v_and_b32 {v(X5)}, 15, {v(LANE)}",
      f"s_lshl_b32 {s(sT1)}, {s(sGG)}, 11",
      f"v_lshl_add_u32 {v(X1)}, {v(X5)}, 7, {s(sT1)}",
      f"v_lshl_add_u32 {v(X1)}, {v(X3)}, 5, {v(X1)}",
      "s_waitcnt lgkmcnt(0)")
    stamp(1)
    o("s_load_dwordx2 s[4:5], s[0:1], 0")
    for n, f in ((0, 2), (2, 1), (1, 0)):
        for e in range(2):
            o(f"global_load_dwordx4 {v(RW+12*e+4*n,4)}, {v(VO+f)}, s[10:11] offset:{1024*e}")
    tl = ["s_waitcnt lgkmcnt(0)",
          f"global_load_dwordx4 {v(TB,4)}, {v(X1)}, s[4:5]",
          f"global_load_dwordx4 {v(TB+4,4)}, {v(X1)}, s[4:5] offset:16"]
    dw_ = [f"global_load_lds_dwordx4 {v(VO+3)}, s[10:11]",
           f"global_load_lds_dwordx4 {v(VO+3)}, s[10:11] offset:1024"]
    o(*tl, *dw_, "s_branch L_c1")

    o.c("==== waves 0-3: row compaction, gathers, scores, weighted sum ====")
    o.label("L_l0")
    o("s_setprio 3" if lp < 3 else "s_setprio 0",
      f"s_mul_i32 {s(sT0)}, {s(sGG)}, 640",
      f"v_lshlrev_b32 {v(VO+1)}, 4, {v(LANE)}",
      f"v_add_u32 {v(VO)}, {s(sT0)}, {v(VO+1)}",
      f"s_mul_i32 {s(sT1)}, {s(sG)}, 640",
      f"s_add_u32 {s(sT1)}, {s(sT1)}, {MASK}",
      f"s_mov_b32 m0, {s(sT1)}",
      f"v_lshl_add_u32 {v(VO+2)}, {v(LANE)}, 1, {s(sT1)}",
      "s_movk_i32 exec_hi, 0xff",
      "s_waitcnt lgkmcnt(0)")
    stamp(1)
    o(f"global_load_lds_dwordx4 {v(VO)}, s[8:9]", *kargs,
      f"s_mov_b32 m0, {MISC}",
      "s_mov_b64 exec, 0xff",
      f"s_mul_i32 {s(sT0)}, {s(sGG)}, 40960",
      "s_waitcnt lgkmcnt(0)",
      f"global_load_lds_dwordx4 {v(VO+1)}, s[12:13]",
      "s_mov_b64 exec, -1",
      f"v_lshlrev_b32 {v(VO+1)}, 1, {v(LANE)}",
      f"global_load_ushort {v(WV)}, {v(VO+1)}, s[14:15]")
    o(f"s_mov_b32 {s(sSRD+2)}, 40960",
      f"s_mov_b32 {s(sSRD+3)}, 0x20000",
      f"s_mul_i32 {s(sB)}, {s(sG)}, 1280",
      f"s_add_u32 {s(sB)}, {s(sB)}, {LIST}",
      f"s_mov_b32 {s(sK)}, 0xff80",
      f"s_lshl_b32 {s(sM0)}, {s(sG)}, 12")
    o.c("pad entries, then (row*128 | sample*8) in the high half")
    for i in range(4): o(f"v_mov_b32 {v(F0+i)}, {s(sK)}")
    o(f"v_lshl_add_u32 {v(F0+4)}, {v(LANE)}, 4, {s(sB)}",
      f"v_lshl_add_u32 {v(F0+5)}, {v(LANE)}, 2, {s(sB)}",
      f"ds_write_b128 {v(F0+4)}, {v(F0,4)}",
      f"ds_write_b32 {v(F0+5)}, {v(F0)} offset:1024",
      f"v_mul_u32_u24 {v(INFO)}, 8414824, {v(LANE)}")
    for j in range(1, 5): o(f"v_add_u32 {v(INFO+j)}, {hex(8414824*64*j)}, {v(INFO)}")
    o(f"v_lshrrev_b32 {v(X1)}, 3, {v(LANE)}",
      f"v_and_b32 {v(X2)}, 7, {v(LANE)}",
      f"v_lshl_add_u32 {v(ALD)}, {v(X1)}, 4, {s(sB)}",
      f"v_and_b32 {v(CE)}, 6, {v(X1)}",
      f"v_xor_b32 {v(CE)}, {v(CE)}, {v(X2)}",
      f"v_lshlrev_b32 {v(CE)}, 4, {v(CE)}",
      f"v_xor_b32 {v(CO)}, 16, {v(CE)}",
      f"v_and_b32 {v(X1)}, 3, {v(X1)}",
      f"v_lshl_add_u32 {v(AENT)}, {v(X2)}, 2, {v(X1)}",
      f"v_lshl_add_u32 {v(AENT)}, {v(AENT)}, 2, {s(sB)}",
      f"s_sub_u32 {s(sV)}, {s(sB)}, 124",
      f"s_lshl2_add_u32 {s(sT1)}, {s(sG)}, {MISC+256}",
      f"v_mov_b32 {v(ACNT)}, {s(sT1)}")
    o(f"v_and_b32 {v(VO)}, 3, {v(LANE)}",
      f"v_mov_b32 {v(MSK)}, 0",
      f"s_add_u32 {s(sSRD)}, s6, {s(sT0)}",
      f"s_addc_u32 {s(sSRD+1)}, s7, 0")
    dma = lambda r: f"buffer_load_dwordx4 {v(r)}, {s(sSRD,4)}, 0 offen{NT} lds"
    adr = lambda r, i: f"v_and_or_b32 {v(r+i)}, {v(r+i)}, {s(sK)}, {v(CO if i & 1 else CE)}"
    def dma_unit(u):
        for i in (2*u, 2*u+1):
            o(adr(LE, i), dma(LE+i))
            if i % 4 < 3: o("s_add_u32 m0, m0, 0x400")
            else: o("s_add_u32 m0, m0, 0xb400", "s_and_b32 m0, m0, 0xffff")
    issued = [2]
    def dma_point(pt):
        for u in range(2, 6):
            if pro[u-2] == pt:
                assert issued[0] == u
                dma_unit(u); issued[0] += 1
    if lp == 2: o("s_setprio 0")
    stamp(7)
    o("s_waitcnt vmcnt(2)")
    stamp(2)
    for j in range(5): o(f"ds_read_u16 {v(M+j)}, {v(VO+2)} offset:{128*j}")
    o("s_waitcnt lgkmcnt(0)")
    for j in range(5): o(f"v_cmp_ne_u32_e64 {s(sM+2*j,2)}, 0, {v(M+j)}")
    for j in range(5):
        o(f"s_mov_b64 exec, {s(sM+2*j,2)}",
          f"v_mbcnt_lo_u32_b32 {v(POS+j)}, {s(sM+2*j)}, 0",
          f"v_mbcnt_hi_u32_b32 {v(POS+j)}, {s(sM+2*j+1)}, {v(POS+j)}",
          f"v_alignbit_b32 {v(E+j)}, {v(M+j)}, {v(INFO+j)}, 16",
          f"v_lshl_add_u32 {v(POS+j)}, {v(POS+j)}, 2, {s(sB+j)}",
          f"ds_write_b32 {v(POS+j)}, {v(E+j)}",
          f"s_bcnt1_i32_b64 {s(sT0)}, {s(sM+2*j,2)}",
          f"s_lshl2_add_u32 {s(sB+j+1 if j < 4 else sT0)}, {s(sT0)}, {s(sB+j)}")
    o.c("list tiles are taken last to first, tile c in slot c&3; V = max(tiles, 6) steps, the leading ones empty")
    o(f"s_sub_u32 {s(sT0)}, {s(sT0)}, {s(sV)}",
      f"s_lshr_b32 {s(sN)}, {s(sT0)}, 7")
    if bench: o(f"s_mov_b32 {s(sN)}, {bench}")
    o(f"s_max_u32 {s(sV)}, {s(sN)}, 6",
      f"s_sub_u32 {s(sV)}, {s(sV)}, 6",
      f"s_lshl_b32 {s(sT1)}, {s(sV)}, 7",
      "s_mov_b64 exec, -1",
      f"v_add_u32 {v(GL)}, {s(sT1)}, {v(ALD)}")
    for i in range(3): o(f"ds_read_b128 {v(LE+4*i,4)}, {v(GL)} offset:{640-128*i}")
    o(f"global_load_ushort {v(B2)}, {v(MSK)}, s[16:17]",
      f"s_add_u32 {s(sT0)}, {s(sV)}, 1",
      f"s_and_b32 {s(sT0)}, {s(sT0)}, 3",
      f"s_lshl_b32 {s(sSL)}, {s(sT0)}, 14",
      f"s_add_u32 m0, {s(sSL)}, {s(sM0)}",
      f"v_mov_b32 {v(SUM)}, {s(sN)}",
      f"v_add_u32 {v(GE)}, {s(sT1)}, {v(AENT)}",
      "s_waitcnt lgkmcnt(2)")
    dma_unit(0); dma_unit(1)
    stamp(8)
    o(f"ds_write_b32 {v(ACNT)}, {v(SUM)}")
    for i in range(3): o(f"ds_read_b128 {v(LF+4*i,4)}, {v(ALD)} offset:{256-128*i}")
    o(f"ds_read_b32 {v(ENT)}, {v(AENT)} offset:640")
    o("s_waitcnt lgkmcnt(5)")
    dma_point(0)
    o.c("M = power of two at the largest |w2|; table of M/w2 with |w2| held above M*2^-29")
    if lp == 1: o("s_setprio 0")
    o(f"s_waitcnt vmcnt({1 + 2*issued[0]})",
      f"v_lshlrev_b32 {v(WV)}, 16, {v(WV)}",
      f"v_and_b32 {v(X1)}, 0x7fffffff, {v(WV)}",
      f"v_and_b32 {v(X2)}, 0x7f800000, {v(WV)}",
      f"v_lshlrev_b32 {v(VO+1)}, 2, {v(LANE)}",
      f"v_add_u32 {v(VO+1)}, {MISC}, {v(VO+1)}")
    for r in (1, 2, 4, 8):
        o(f"v_max_u32_dpp {v(X2)}, {v(X2)}, {v(X2)} row_ror:{r} row_mask:0xf bank_mask:0xf", "s_nop 1")
    o(*[f"v_readlane_b32 {s(sM+i)}, {v(X2)}, {16*i}" for i in range(4)],
      f"s_max_u32 {s(sM)}, {s(sM)}, {s(sM+1)}",
      f"s_max_u32 {s(sM+2)}, {s(sM+2)}, {s(sM+3)}",
      f"s_max_u32 {s(sM)}, {s(sM)}, {s(sM+2)}",
      f"s_max_u32 {s(sM)}, {s(sM)}, {hex((SH+1) << 23)}",
      f"s_min_u32 {s(sM)}, {s(sM)}, 0x7e800000",
      f"s_sub_u32 {s(sC0)}, {s(sM)}, {hex(SH << 23)}",
      f"s_sub_u32 {s(sM+1)}, {s(sM)}, {hex(29 << 23)}",
      f"s_sub_u32 {s(sM)}, 0x7f000000, {s(sM)}",
      f"v_max_u32 {v(X1)}, {s(sM+1)}, {v(X1)}",
      f"v_mul_f32 {v(X1)}, {s(sM)}, {v(X1)}",
      f"v_rcp_f32 {v(X1)}, {v(X1)}",
      f"v_and_b32 {v(WV)}, 0x80000000, {v(WV)}",
      f"v_or_b32 {v(X1)}, {v(X1)}, {v(WV)}",
      f"ds_write_b32 {v(VO+1)}, {v(X1)} offset:384",
      *(["s_setprio 0"] if lp == 0 else []), "s_waitcnt lgkmcnt(0)")
    stamp(3)
    o("s_barrier")
    stamp(14)
    dma_point(1)
    stamp(9)
    o(*[adr(LF, i) for i in range(12)])
    dma_point(6)
    o.c("transposed fragments (row' = lane>>2), output offset, score matrix [kk][q][sample][4]")
    o(f"v_lshrrev_b32 {v(X4)}, 5, {v(LANE)}",
      f"v_lshrrev_b32 {v(X1)}, 2, {v(LANE)}",
      f"v_and_or_b32 {v(X2)}, {v(X1)}, 6, {v(X4)}",
      f"v_lshlrev_b32 {v(X2)}, 4, {v(X2)}",
      f"v_lshlrev_b32 {v(VO+3)}, 3, {v(VO)}",
      f"v_xor_b32 {v(X2)}, {v(X2)}, {v(VO+3)}",
      f"v_lshl_add_u32 {v(ATR)}, {v(X1)}, 7, {v(X2)}",
      f"v_add_u32 {v(ATR)}, {s(sM0)}, {v(ATR)}")
    for k in range(1, 4): o(f"v_xor_b32 {v(ATR+k)}, {32*k}, {v(ATR)}")
    for i in range(0, 16, 2): o(f"v_mov_b64 {v(ACC+i,2)}, 0")
    o(f"s_lshl_b32 {s(sT1)}, {s(sGG)}, 11",
      f"v_and_b32 {v(X0)}, 15, {v(LANE)}",
      f"v_lshl_add_u32 {v(AOUT)}, {v(X0)}, 7, {s(sT1)}",
      f"v_lshl_add_u32 {v(AOUT)}, {v(X4)}, 4, {v(AOUT)}",
      f"v_and_b32 {v(X2)}, 16, {v(LANE)}",
      f"v_lshl_add_u32 {v(AOUT)}, {v(X2)}, 1, {v(AOUT)}",
      f"s_lshl_b32 {s(sT0)}, {s(sG)}, 10",
      f"s_add_u32 {s(sT0)}, {s(sT0)}, {SBUF}",
      f"v_lshl_add_u32 {v(ASR)}, {v(LANE)}, 3, {s(sT0)}",
      f"v_and_b32 {v(CSW)}, 7, {v(X1)}",
      f"v_lshl_add_u32 {v(CSW)}, {v(CSW)}, 7, {s(sT0)}",
      f"v_lshl_add_u32 {v(CSW)}, {v(VO)}, 1, {v(CSW)}",
      f"ds_write2st64_b64 {v(ASR)}, {v(ACC,2)}, {v(ACC,2)} offset1:1",
      f"s_movk_i32 {s(s78)}, 0x78",
      f"v_lshlrev_b32 {v(N8)}, 3, {v(X0)}",
      f"v_and_or_b32 {v(ASW)}, {v(ENT)}, {s(s78)}, {v(CSW)}",
      f"v_and_b32 {v(MSK)}, 0xffff0000, {v(ENT)}",
      f"s_mov_b64 {s(sX,2)}, -1")
    dma_point(7)
    stamp(10)
    o(f"s_waitcnt vmcnt({2*(issued[0]-2)})",
      f"v_lshlrev_b32 {v(B2)}, 16, {v(B2)}")
    dma_point(2)
    stamp(12)
    o("s_barrier")
    stamp(13)
    dma_point(3)
    if bench: o("s_waitcnt vmcnt(0)", "s_barrier")
    stamp(4)
    o(f"s_cmp_eq_u32 {s(sN)}, 0",
      "s_cbranch_scc1 L_store",
      f"s_waitcnt vmcnt({2*(issued[0]-3)})")
    dma_point(4)
    assert issued[0] == 6
    def store(first):
        for h_ in range(2):
            o(*[f"v_cvt_pk_bf16_f32 {v(OB+4*h_+i)}, {v(ACC+8*h_+2*i)}, {v(ACC+8*h_+2*i+1)}" for i in (0, 2, 1, 3)])
            o(first if h_ == 0 else "s_nop 0",
              f"v_permlane16_swap_b32 {v(OB+4*h_)}, {v(OB+4*h_+2)}",
              f"v_permlane16_swap_b32 {v(OB+4*h_+1)}, {v(OB+4*h_+3)}",
              f"global_store_dwordx4 {v(AOUT)}, {v(OB+4*h_,4)}, s[18:19] offset:{64*h_}{ST}")
    def score(ae, c, last=False, mid=None):
        o(f"ds_read_b32 {v(SUM)}, {v(ae)} offset:{DS+128*(c+1)}",
          f"ds_read_b32 {v(SUM+1)}, {v(ae)} offset:{DS+5120+128*(c+1)}")
        if not last: o(f"ds_read_b32 {v(ENT)}, {v(ae)} offset:{128*c}")
        if mid: mid()
        if not last: o("s_setprio 3")
        o(f"s_waitcnt lgkmcnt({0 if last else 1})",
          f"v_add_f32 {v(SUM)}, {v(SUM)}, {v(SUM+1)}",
          f"v_fma_f32 {v(SUM)}, {v(SUM)}, {s(sC0)}, {v(B2)}",
          f"v_mul_legacy_f32 {v(SUM)}, {v(SUM)}, {v(MSK)}",
          f"v_cvt_pk_bf16_f32 {v(SUM)}, {v(SUM)}, {v(SUM)}",
          f"ds_write_b16 {v(ASW)}, {v(SUM)}",
          f"ds_read2st64_b64 {v(SOP,4)}, {v(ASR)} offset1:1")
        if not last:
            o(f"ds_write_b16 {v(ASW)}, {v(MSK)}",
              f"ds_read_u16_d16_hi {v(MSK)}, {v(ae)} offset:{128*c+2}",
              "s_waitcnt lgkmcnt(4)",
              f"v_and_or_b32 {v(ASW)}, {v(ENT)}, {s(s78)}, {v(CSW)}",
              "s_setprio 0")
    fin = [m16(ACC+4*jj, TR+4*jj, SOP, v(ACC+4*jj,4)) for jj in range(4)]
    def trreads(at, off):
        for jj in range(4):
            for kk in range(2): o(f"ds_read_b64_tr_b16 {v(TR+4*jj+2*kk,2)}, {v(at+jj)} offset:{off+2048*kk}")
    def bar(j):
        if bars == 2 and j % 2 == 0: o(f"s_memrealtime {s(sST+2*(7+j//2),2)}")
        o("s_barrier")
        if bars == 1 and j % 2 == 0: o(f"s_memrealtime {s(sST+2*(7+j//2),2)}")
    def gather(slot):
        for i in range(12):
            if sched[i] == slot:
                o(f"s_add_u32 m0, {s(sM0)}, {16384*((2 - i//4) & 3) + 1024*(i & 3)}", "s_nop 0", dma(LF+i))
    def landed(j):
        have = 12 + sum(x <= 2*j+1 for x in sched)
        if j + 3 > 11: return []
        assert have >= 2*j + 8
        return [f"vmcnt({have - 2*j - 8})"]
    o(f"s_cmp_eq_u32 {s(sV)}, 0",
      "s_cbranch_scc0 L_more")
    o.c("---- the last six steps ----")
    o.label("L_lloop")
    for k in range(6):
        c = 5 - k
        bar(2*k)
        if k == 0:
            gather(0); gather(1)
            o("s_waitcnt " + landed(0)[0])
            bar(1)
            o.label("L_join")
        else:
            score(AENT, c, mid=lambda: gather(4*k))
            gather(4*k+1)
            o("s_waitcnt " + " ".join(landed(2*k) + ["lgkmcnt(0)"]), "s_setprio 3")
            bar(2*k+1)
            o(*fin, "s_setprio 0")
        gather(4*k+2)
        trreads(ATR, 16384*(c & 3))
        gather(4*k+3)
        w = landed(2*k+1)
        if w: o("s_waitcnt " + w[0])
    if es:
        o.c("samples above the highest one in the last tile are final: store them now")
        o(f"s_cmp_gt_u32 {s(sN)}, 1", "s_cbranch_scc0 L_ne", "s_setprio 3",
          f"v_readlane_b32 {s(sT0)}, {v(ENT)}, 31",
          *[f"v_cvt_pk_bf16_f32 {v(OB+i)}, {v(ACC+2*i)}, {v(ACC+2*i+1)}" for i in range(8)],
          f"s_and_b32 {s(sT0)}, {s(sT0)}, 0x78",
          f"v_cmp_ge_u32_e64 {s(sX,2)}, {s(sT0)}, {v(N8)}",
          *[f"v_permlane16_swap_b32 {v(OB+i)}, {v(OB+i+2)}" for i in (0, 1, 4, 5)],
          "s_setprio 0", f"s_not_b64 exec, {s(sX,2)}",
          *[f"global_store_dwordx4 {v(AOUT)}, {v(OB+4*h_,4)}, s[18:19] offset:{64*h_}{ST}" for h_ in range(2)],
          "s_mov_b64 exec, -1")
        o.label("L_ne")
    bar(12)
    score(AENT, -1, True)
    o("s_waitcnt lgkmcnt(0)", *fin, "s_nop 0")
    o.label("L_store")
    stamp(5)
    o("s_nop 3")
    store(f"s_mov_b64 exec, {s(sX,2)}")
    o("s_branch L_fin" if stamps else "s_endpgm")
    def more():
        o.c("---- steps while more than six tiles remain: tile c = V + 5, gather tile c - 3 ----")
        o.label("L_more")
        o(*[f"v_mov_b64 {v(TR+i,2)}, 0" for i in range(0, 16, 2)], f"v_mov_b32 {v(MSK)}, 0")
        o.label("L_more2")
        o("s_barrier")
        score(GE, 5)
        o(f"ds_read_b128 {v(LE,4)}, {v(GL)} offset:256",
          *[f"v_add_u32 {v(GT+i)}, {s(sSL)}, {v(ATR+i)}" for i in range(4)],
          f"s_add_u32 {s(sT0)}, {s(sSL)}, 0x4000",
          f"s_and_b32 {s(sT0)}, {s(sT0)}, 0xffff",
          f"s_add_u32 m0, {s(sT0)}, {s(sM0)}",
          f"s_add_u32 {s(sSL)}, {s(sSL)}, 0xc000",
          f"s_and_b32 {s(sSL)}, {s(sSL)}, 0xffff",
          f"v_subrev_u32 {v(GL)}, 0x80, {v(GL)}",
          f"v_subrev_u32 {v(GE)}, 0x80, {v(GE)}",
          "s_waitcnt vmcnt(4) lgkmcnt(0)", "s_setprio 3",
          "s_barrier", *fin)
        trreads(GT, 0)
        dma_unit(0); dma_unit(1)
        o("s_setprio 0",
          f"s_sub_u32 {s(sV)}, {s(sV)}, 1",
          f"s_cmp_eq_u32 {s(sV)}, 0",
          "s_waitcnt vmcnt(6)",
          "s_cbranch_scc0 L_more2",
          "s_barrier")
        score(AENT, 5)
        gather(0); gather(1)
        o("s_waitcnt " + " ".join(landed(0) + ["lgkmcnt(0)"]), "s_setprio 3", "s_barrier", *fin, "s_setprio 0", "s_branch L_join")

    if not mv: more()
    o.c("==== waves 4-7: weight staging, per-sample terms, then the activation unit ====")
    o.label("L_c1")
    o(f"v_add_u32 {v(AWW)}, {s(sT0)}, {v(X2)}",
      f"v_and_b32 {v(X0)}, 3, {v(LANE)}",
      f"v_lshlrev_b32 {v(X1)}, 4, {v(X0)}")
    o.c("4x4 identity, its negative, the selection operands and the two factors of -log2(e)")
    o(f"v_mov_b32 {v(ID)}, 1",
      f"v_mov_b32 {v(ID+1)}, 0",
      f"v_lshlrev_b64 {v(ID,2)}, {v(X1)}, {v(ID,2)}",
      f"v_mul_u32_u24 {v(PID)}, 0x3f80, {v(ID)}",
      f"v_mul_u32_u24 {v(PID+1)}, 0x3f80, {v(ID+1)}",
      f"v_mul_u32_u24 {v(NID)}, 0xbf80, {v(ID)}",
      f"v_mul_u32_u24 {v(NID+1)}, 0xbf80, {v(ID+1)}",
      *[f"v_mov_b64 {v(OHV+2*i,2)}, 0" for i in range(4)],
      f"s_mov_b32 {s(sT1)}, {OHT}",
      f"v_lshl_add_u32 {v(X1)}, {v(LANE)}, 3, {s(sT1)}",
      f"v_lshl_add_u32 {v(COH)}, {v(X3)}, 7, {s(sT1)}",
      "s_mov_b32 exec_lo, 0x00f0000f",
      "s_mov_b32 exec_hi, 0xf0000f00",
      f"v_mov_b64 {v(SEL+2,2)}, {v(PID,2)}",
      f"v_mul_u32_u24 {v(OHV)}, {hex(FB)}, {v(ID)}",
      f"v_mul_u32_u24 {v(OHV+1)}, {hex(FB)}, {v(ID+1)}",
      "s_mov_b64 exec, -1",
      f"ds_write_b64 {v(X1)}, {v(OHV,2)}",
      f"v_mul_u32_u24 {v(ID)}, {hex(FA)}, {v(ID)}",
      f"v_mul_u32_u24 {v(ID+1)}, {hex(FA)}, {v(ID+1)}",
      f"s_mov_b32 {s(sNL)}, {hex(NLOG2E)}",
      f"s_mov_b32 {s(sNL+1)}, {hex(NLOG2E)}",
      f"s_mov_b32 {s(sNB)}, {hex(NLOG2E_B)}",
      f"s_mov_b32 {s(sNB+1)}, {hex(NLOG2E_B)}",
      f"s_mov_b32 {s(sC0)}, {hex(f2u(2.0**-SH))}",
      f"s_mov_b32 {s(sC0+1)}, {hex(f2u(2.0**-SH))}",
      f"s_movk_i32 {s(s78)}, 0x78")
    o.c("staging read address (16q + r)*128 + (q&1)*64 + (r>>1)*32 + c*8")
    o(f"v_bfe_u32 {v(X1)}, {v(LANE)}, 2, 2",
      f"v_lshl_add_u32 {v(X1)}, {v(X3)}, 4, {v(X1)}",
      f"v_and_b32 {v(X2)}, 24, {v(LANE)}",
      f"v_lshl_add_u32 {v(X2)}, {v(X0)}, 1, {v(X2)}",
      f"v_lshlrev_b32 {v(X2)}, 2, {v(X2)}",
      f"v_lshl_add_u32 {v(AWR)}, {v(X1)}, 7, {v(X2)}",
      f"v_add_u32 {v(AWR)}, {WST}, {v(AWR)}",
      *[f"v_xor_b32 {v(AWR+k)}, {32*k}, {v(AWR)}" for k in range(1, 4)],
      f"s_mov_b32 {s(sT1)}, {MISC}",
      f"v_lshl_add_u32 {v(AB1)}, {v(X5)}, 1, {s(sT1)}",
      f"v_lshl_add_u32 {v(AC2)}, {v(X3)}, 4, {s(sT1)}",
      *[f"v_mov_b32 {v(SHQ+i)}, {hex(f2u(-float(SH)))}" for i in range(4)],
      f"s_lshl2_add_u32 {s(sT1)}, {s(sG)}, {s(sT1)}",
      f"v_mov_b32 {v(VO+2)}, {s(sT1)}",
      f"v_mov_b64 {v(RB1,2)}, 0",
      f"v_mov_b64 {v(RB1+2,2)}, 0")
    o.c("entry, row-sum and fragment addresses")
    o(f"s_mul_i32 {s(sT0)}, {s(sG)}, 1280",
      f"s_add_u32 {s(sT0)}, {s(sT0)}, {LIST-256}",
      f"v_bfe_u32 {v(X1)}, {v(LANE)}, 3, 1",
      f"v_and_b32 {v(X2)}, 7, {v(LANE)}",
      f"v_lshl_add_u32 {v(X2)}, {v(X2)}, 2, {v(X1)}",
      f"v_lshl_add_u32 {v(CENT)}, {v(X2)}, 2, {s(sT0)}",
      f"v_lshrrev_b32 {v(X2)}, 5, {v(LANE)}",
      f"v_mul_u32_u24 {v(CSUM)}, 5120, {v(X2)}",
      f"v_lshrrev_b32 {v(X2)}, 1, {v(X4)}",
      f"v_add_u32 {v(CSUM)}, {v(X2)}, {v(CSUM)}",
      f"s_movk_i32 {s(sINC)}, 0xff80",
      f"s_movk_i32 {s(sINC+1)}, 0xff7f",
      f"v_and_or_b32 {v(X1)}, {v(LANE)}, 6, {v(X1)}",
      f"v_lshlrev_b32 {v(X2)}, 1, {v(X3)}",
      f"v_xor_b32 {v(X1)}, {v(X1)}, {v(X2)}",
      f"s_lshl_b32 {s(sT0)}, {s(sG)}, 12",
      f"v_lshl_add_u32 {v(X2)}, {v(X5)}, 7, {s(sT0)}",
      f"v_lshl_add_u32 {v(AH)}, {v(X1)}, 4, {v(X2)}",
      f"v_xor_b32 {v(AH+1)}, 16, {v(AH)}")
    if lp: o("s_setprio 2")
    stamp(7)
    o("s_waitcnt vmcnt(8)")
    stamp(2)
    fr = lambda mat, e: UF+16*mat+8*e
    ini = lambda mat: [m4(fr(mat,e)+4*i, NID if mat else PID, RW+12*e+2*i) for e in range(2) for i in range(2)]
    acc = lambda mat: [m4(fr(mat,e)+4*i, PID, RW+12*e+4+4*mat+2*i, v(fr(mat,e)+4*i,4)) for e in range(2) for i in range(2)]
    def pack(mat, e):
        f = fr(mat, e)
        return ([f"v_pk_mul_f32 {v(f+2*i,2)}, {v(f+2*i,2)}, {s(sNB if mat else sNL,2)}" for i in range(4)]
                + [f"v_cvt_pk_bf16_f32 {v(f+i)}, {v(f+2*i)}, {v(f+2*i+1)}" for i in range(4)]
                + [f"ds_write_b128 {v(AWW)}, {v(f,4)} offset:{16384*mat+1024*e}"])
    o(*ini(1), *ini(0), "s_waitcnt vmcnt(6)", *acc(1), "s_waitcnt vmcnt(4)", *acc(0))
    o(*pack(1, 0), *pack(1, 1), *pack(0, 0), *pack(0, 1))
    o(*([] if lp else ["s_setprio 2"]), "s_waitcnt lgkmcnt(0)")
    stamp(3)
    o("s_barrier")
    stamp(14)
    wfrag = lambda mat, t, ks: 16*t + 8*mat + 4*ks
    def wreads(mat):
        return [f"ds_read_b64_tr_b16 {a(wfrag(mat,t,ks)+2*kk,2)}, {v(AWR+t)} offset:{8192*mat+1024*ks+512*kk}"
                for t in range(4) for ks in range(2) for kk in range(2)]
    rdH = lambda u, k: f"ds_read_b128 {v(H[u]+4*k,4)}, {v(AH+k)} offset:{2048*u}"
    rdOH = lambda u: f"ds_read_b64 {v(OH[u],2)}, {v(CEN+u)}"
    rdE = f"ds_read2_b32 {v(CEN,2)}, {v(CENT)} offset1:34"
    bumpH = lambda k: f"v_add_u16 {v(AH+k)}, 0xc000, {v(AH+k)}"
    dec = lambda u: f"v_and_or_b32 {v(CEN+u)}, {v(CEN+u)}, {s(s78)}, {v(COH)}"
    MU = lambda u, t: k16(D[u]+4*t, UT+2*t, OH[u], v(SHQ,4))
    MG = lambda u, t: k16(T[u]+4*t, TT+2*t, OH[u])
    o.c("per-sample bias u = t @ (Wb - Wc) + b1 and t itself as [feature][sample] operands")
    ur = [f"ds_read_b64_tr_b16 {v(UF+8*t+4*ks+2*kk,2)}, {v(AWR+t)} offset:{16384+1024*ks+512*kk}"
          for t in range(4) for ks in range(2) for kk in range(2)]
    wa, wd = wreads(0), wreads(1)
    o(f"ds_read_b32 {v(X2)}, {v(VO+2)} offset:256", *ur[:8])
    for t in range(4): o(f"ds_read_u16_d16_hi {v(RB1+t)}, {v(AB1)} offset:{32*t}")
    o("s_waitcnt lgkmcnt(12)",
      f"v_lshl_add_u32 {v(CENT)}, {v(X2)}, 7, {v(CENT)}",
      f"v_readfirstlane_b32 {s(sN)}, {v(X2)}",
      f"ds_read2_b32 {v(CEN,2)}, {v(CENT)} offset0:32 offset1:34",
      f"ds_read_b32 {v(SA)}, {v(CENT)}")
    for t in range(4): o(f"ds_read_b128 {v(W2+4*t,4)}, {v(AC2)} offset:{384+64*t}")
    o(*ur[8:])
    o(f"v_add_u32 {v(CSUM)}, {v(CSUM)}, {v(CENT)}",
      f"s_max_u32 {s(sV)}, {s(sN)}, {vmin}",
      f"s_sub_u32 {s(sV)}, {s(sV)}, {s(sN)}",
      f"s_lshl_b32 {s(sV)}, {s(sV)}, 1",
      f"s_add_u32 {s(sT0)}, {s(sN)}, 3",
      f"s_lshl_b32 {s(sT0)}, {s(sT0)}, 14",
      "s_waitcnt lgkmcnt(8)",
      dec(0), dec(1), rdOH(0), rdOH(1), *wa[:5])
    o(*[f"v_pk_mul_f32 {v(UD+2*i,2)}, {v(RB1+(i//2 & 2),2)}, {s(sNB,2)} op_sel:[{i//2 & 1},0] op_sel_hi:[{i//2 & 1},1]" for i in range(8)])
    o(*[f"v_pk_mul_f32 {v(CW+2*i,2)}, {v(W2+2*i,2)}, {s(sC0,2)}" for i in range(8)])
    o(*wa[5:])
    o(f"v_and_or_b32 {v(CEN)}, {v(SA)}, {s(s78)}, {v(COH)}",
      *[f"v_add_u16 {v(AH+i)}, {s(sT0)}, {v(AH+i)}" for i in range(2)])
    o("s_waitcnt vmcnt(2) lgkmcnt(15)")
    stamp(9)
    um = lambda t, ks: m16(UD+4*t, TB+4*ks, UF+8*t+4*ks, v(UD+4*t,4))
    cvp = lambda dst, src, t: [f"v_cvt_pk_bf16_f32 {v(dst+2*t+i)}, {v(src+4*t+2*i)}, {v(src+4*t+2*i+1)}" for i in range(2)]
    o(*[m16(TD+4*t, TB+4*(t>>1), SEL+2-2*(t&1), 0) for t in range(4)])
    o(um(0,0), um(0,1), um(1,0), um(1,1), um(2,0), *cvp(TT,TD,0), um(2,1), *cvp(TT,TD,1))
    o(um(3,0), *cvp(TT,TD,2), um(3,1), *cvp(TT,TD,3))
    o(MG(0,0), *cvp(UT,UD,0), MG(0,1), *cvp(UT,UD,1), MG(0,2), *cvp(UT,UD,2), MG(0,3), *cvp(UT,UD,3))
    o(*[MU(0,t) for t in range(4)], f"s_sub_u32 {s(sN)}, {s(sN)}, 1", "s_waitcnt vmcnt(0)", "s_cbranch_scc1 L_cexit")
    stamp(12)
    if bench: o("s_barrier")
    o(f"s_cmp_lg_u32 {s(sV)}, 0", "s_barrier")
    stamp(13)
    stamp(4)

    def MM(u, j):
        mat, t, ks = j >> 3, (j >> 1) & 3, j & 1
        b = (HF if mat else H)[u] + 4*ks
        return f"v_mfma_f32_16x16x32_bf16 {v(D[u]+4*t,4)}, {a(wfrag(mat,t,ks),4)}, {v(b,4)}, {v(D[u]+4*t,4)}"
    ex = lambda u, i: f"v_exp_f32_e64 {v(D[u]+i)}, {v(D[u]+i)} clamp"
    un = lambda u, k: m4(HF[u]+4*k, ID, H[u]+2*k)
    p = lambda b: v(b, 2)
    def tree(u):
        r = D[u]
        out = [f"v_pk_fma_f32 {p(r+2*i)}, {p(r+2*i)}, {p(W2+2*i)}, {p(CW+2*i)}" for i in range(8)]
        for g in range(4):
            x, y = r+4*g, r+4*g+2
            out += [f"v_pk_add_f32 {p(N+2*g)}, {p(x)}, {p(y)}",
                    f"v_pk_mul_f32 {p(x)}, {p(x)}, {p(y)}"]
        for g in range(2):
            x, y = r+8*g, r+8*g+4
            out += [f"v_pk_mul_f32 {p(N+4*g)}, {p(N+4*g)}, {p(y)}",
                    f"v_pk_fma_f32 {p(N+4*g)}, {p(N+4*g+2)}, {p(x)}, {p(N+4*g)}",
                    f"v_pk_mul_f32 {p(N+4*g+2)}, {p(x)}, {p(y)}"]
        return out
    pmul = lambda u: [f"v_pk_mul_f32 {p(HF[u]+2*i)}, {p(HF[u]+2*i)}, {p(T[u]+2*i)}" for i in range(8)]
    rc = lambda i: f"v_rcp_f32 {v(N+4*(i//2)+2+i%2)}, {v(N+4*(i//2)+2+i%2)}"
    fm = lambda d, i: f"v_{'fmac' if i else 'mul'}_f32 {v(d)}, {v(N+4*(i//2)+i%2)}, {v(N+4*(i//2)+2+i%2)}"
    cv = lambda u, j: f"v_cvt_pk_bf16_f32 {v(HF[u]+j)}, {v(HF[u]+2*j)}, {v(HF[u]+2*j+1)}"
    swap = f"v_permlane16_swap_b32 {v(SA)}, {v(SB)}"
    sadd = f"v_add_f32 {v(SA)}, {v(SA)}, {v(SB)}"
    sumw = lambda off: f"ds_write_b32 {v(CSUM)}, {v(SA)} offset:{DS+off}"

    o.c("---- pipeline fill: rows 0-15 of the first tile ----")
    hr = [rdH(0,0), rdH(0,1), rdH(1,0), rdH(1,1)]
    o(*hr, *wd[:8], rdOH(0), *[MG(1,t) for t in range(4)], "s_cbranch_scc1 L_skip")
    o("s_waitcnt lgkmcnt(11)")
    o.label("L_fill")
    mu = lambda u, i: f"v_mul_f32 {v(HF[u]+i)}, {v(HF[u]+i)}, {v(T[u]+i)}"
    pa = [mu(0,i) for i in range(8)] + [cv(0,j) for j in range(4)] + [mu(0,i) for i in range(8,16)] + [cv(0,j) for j in range(4,8)]
    o(*[un(0,k) for k in range(4)])
    cut = [0, 2, 5, 8, 11, 14, 17, 20, 21]
    for j in range(8): o(MM(0,j), wd[8+j], *pa[cut[j]:cut[j+1]])
    o("s_waitcnt lgkmcnt(8)", "s_cbranch_scc1 L_skip2")
    o.label("L_fill2")
    o(*weave([un(1,k) for k in range(4)], pa[21:]), "s_waitcnt lgkmcnt(0)")
    for j in range(8, 16): o(MM(0,j), mu(1,2*j-16), mu(1,2*j-15))
    o(MU(1,0), bumpH(0), bumpH(1))

    o.c("---- tile loop: rows 16-31 of tile i, then rows 0-15 of tile i+1 ----")
    o(".p2align 3")
    o.label("L_alpha")
    o(MU(1,1), rc(0), cv(1,0))
    o(MU(1,2), rc(1), cv(1,1))
    o(MU(1,3), rc(2), fm(SB,0))
    ga = [[f"s_sub_u32 {s(sN)}, {s(sN)}, 1", rc(3)], [fm(SB,1), fm(SB,2)], [fm(SB,3), cv(1,2)], [cv(1,3), swap],
          [cv(1,4), sadd], [sumw(256)], [cv(1,5), cv(1,6)], [cv(1,7), ex(0,0)],
          [ex(0,1)], ["s_waitcnt lgkmcnt(0)", "s_barrier"], [rdH(0,0), rdH(0,1)], [ex(0,2)],
          [ex(0,3)], [ex(0,4)], [ex(0,5)], ["s_cbranch_scc1 L_drain", ex(0,6)]]
    for j in range(16): o(MM(1,j), *ga[j])
    bump = f"v_lshl_add_u64 {p(CENT)}, {p(CENT)}, 0, {s(sINC,2)}"
    o(MG(0,0), ex(0,7), ex(0,8), MG(0,1), ex(0,9), MG(0,2), ex(0,10), ex(0,11), MG(0,3), "s_waitcnt lgkmcnt(0)", ex(0,12))
    o(un(0,0), bump, un(0,1), ex(0,13), un(0,2), un(0,3), ex(0,14), ex(0,15))
    o.even("L_alpha")
    o(*tree(0), *pmul(0))
    o(MU(0,0), cv(0,0), cv(0,1), cv(0,2))
    o(MU(0,1), rc(0), cv(0,3))
    o(MU(0,2), rc(1), cv(0,4))
    o(MU(0,3), rc(2), cv(0,5))
    gb = [[rdE, cv(0,6)], [rc(3)], [cv(0,7), fm(SA,0)], [fm(SA,1), fm(SA,2)],
          [ex(1,0)], ["s_waitcnt lgkmcnt(0)", dec(0), dec(1)], [rdOH(1), rdOH(0)], [ex(1,1)],
          [ex(1,2)], ["s_barrier", rdH(1,0)], [rdH(1,1), ex(1,3)], [ex(1,4)],
          [ex(1,5)], [ex(1,6)], [ex(1,7)], ["s_waitcnt lgkmcnt(2)", ex(1,8)]]
    for j in range(16): o(MM(0,j), *gb[j])
    o(MG(1,0), ex(1,9), fm(SA,3), MG(1,1), ex(1,10), bumpH(0), MG(1,2), ex(1,11), bumpH(1), MG(1,3), "s_waitcnt lgkmcnt(0)", ex(1,12))
    o(un(1,0), un(1,1), ex(1,13), un(1,2), un(1,3), ex(1,14), ex(1,15))
    o.even("L_alpha")
    o(*tree(1), *pmul(1))
    o(MU(1,0), "s_branch L_alpha")
    o.c("---- pipeline drain: last tile ----")
    o(".p2align 3")
    o.label("L_drain")
    pc = lambda d: [f"v_pk_mul_f32 {p(d)}, {p(N)}, {p(N+2)}", f"v_pk_fma_f32 {p(d)}, {p(N+4)}, {p(N+6)}, {p(d)}",
                    f"v_add_f32_e64 {v(d)}, {v(d)}, {v(d+1)}"]
    o(*[ex(0,i) for i in range(6, 16)], *tree(0))
    o("s_barrier", rc(0), rc(1), rc(2), rc(3), *[ex(1, i) for i in range(16)])
    o.even("L_drain")
    o(*pc(SA), *tree(1), rc(0), rc(1), rc(2), rc(3), *pc(SB))
    o("s_nop 1", swap, sadd, sumw(128), "s_waitcnt lgkmcnt(0)", "s_barrier")
    o.label("L_cexit")
    stamp(5)
    o("s_branch L_fin" if stamps else "s_endpgm")
    o.c("---- a group with fewer than six tiles sits out the leading steps ----")
    o.label("L_skip")
    o("s_barrier",
      f"s_sub_u32 {s(sV)}, {s(sV)}, 1",
      f"s_cmp_eq_u32 {s(sV)}, 1",
      "s_cbranch_scc0 L_skip")
    o(*hr[:2], "s_waitcnt lgkmcnt(0)", "s_branch L_fill")
    o.label("L_skip2")
    o("s_barrier", *hr[2:], "s_waitcnt lgkmcnt(0)")
    o.label("L_last")
    o("s_branch L_fill2")
    if mv: more()
    o.label("L_fin")
    if dg >= 0:
        stamp(6)
        from diag import diag_tail
        diag_tail(o, sST, sW, da, dg, K, dw, rel=rel)
    elif stamps:
        stamp(6)
        o("s_waitcnt vmcnt(0)", "s_mov_b64 exec, -1")
        stamp(11)
        o("s_sleep 40", "s_load_dwordx2 s[54:55], s[0:1], 72", "s_waitcnt lgkmcnt(0)")
        for i in range(15): o(f"v_mov_b32 {v(i)}, {s(sST+2*i)}")
        o(f"v_mov_b32 v15, {s(sN)}",
          f"s_xor_b32 {s(sW)}, {s(sW)}, 4",
          f"s_lshl3_add_u32 {s(sT0)}, s2, {s(sW)}",
          f"s_lshl_b32 {s(sT0)}, {s(sT0)}, 6",
          f"v_mov_b32 v16, {s(sT0)}",
          "s_mov_b64 exec, 1")
        for i in range(4): o(f"global_store_dwordx4 v16, v[{4*i}:{4*i+3}], s[54:55] offset:{16*i}")
    o.label("L_end")
    o("s_endpgm")

    if abl:
        i0 = o.l.index("L_lloop:"); i1 = o.l.index("L_c1:")
        def dropL(x):
            if abl & 1 and ("ds_" in x or x.strip().startswith("v_") or "buffer_" in x): return True
            if abl & 2 and "mfma" in x: return True
            return False
        o.l = o.l[:i0] + [x for x in o.l[i0:i1] if not dropL(x)] + o.l[i1:]
    if cyc: o.l = [x.replace("s_memrealtime", "s_memtime") for x in o.l]
    head = open(f"cdna_kernels/{NAME}.s.ref").read().split("; Override launch")[0]
    return (head + DOC + f"; @launch grid=(256,1,1) block=(512,1,1) lds={LDS_BYTES}\n"
        + '.amdgcn_target "amdgcn-amd-amdhsa--gfx950"\n.text\n'
        + f".globl {NAME}_kernel\n.p2align 8\n.type {NAME}_kernel,@function\n{NAME}_kernel:\n"
        + o.text()
        + f'.section .rodata,"a"\n.p2align 6\n.amdhsa_kernel {NAME}_kernel\n'
        + f"  .amdhsa_next_free_vgpr {NV+64}\n  .amdhsa_next_free_sgpr 100\n  .amdhsa_accum_offset {NV}\n"
        + "  .amdhsa_group_segment_fixed_size 0\n  .amdhsa_kernarg_size 80\n  .amdhsa_user_sgpr_count 2\n"
        + "  .amdhsa_user_sgpr_kernarg_segment_ptr 1\n  .amdhsa_system_sgpr_workgroup_id_x 1\n.end_amdhsa_kernel\n")

if __name__ == "__main__":
    kw = dict(x.split("=") for x in sys.argv[2:])
    kw = {k: val if k == "sched" else int(val) for k, val in kw.items()}
    open(sys.argv[1], "w").write(gen(**kw))
```

```python
import sys, struct, re, math

NAME = "standalone__sequential_behavior_din__recsys"

HIST = 0
SBUF = 65536
WST  = 69632
LIST = 95232
SUMS = 100352
MISC = 110848
OHT  = 111616
MASK = 112128
LDS_BYTES = MASK + 2560
DS = SUMS - LIST
SH = 30
FA, FB = 0xbfd4, 0x3f5f
def f2u(x): return struct.unpack("<I", struct.pack("<f", x))[0]
NLOG2E = f2u(-math.log2(math.e))
NLOG2E_B = f2u(-math.log2(math.e) / 0.87109375)

DOC = """;
"""

class Asm:
    def __init__(self): self.l = []
    def __call__(self, *ss):
        for x in ss: self.l.append("    " + x)
    def label(self, s): self.l.append(s + ":")
    def c(self, s): self.l.append("    ; " + s)
    def text(self): return "\n".join(self.l) + "\n"
    def even(self, start):
        short = re.compile(r"\s*(v_exp_f32|v_rcp_f32|v_fmac_f32|v_mul_f32|v_add_f32|v_and_b32|v_permlane16_swap_b32) ")
        n4 = [i for i in range(self.l.index(start + ":") + 1, len(self.l))
              if short.match(self.l[i]) or re.match(r"\s*s_(?!mem)", self.l[i])]
        if len(n4) % 2:
            i = [j for j in n4 if short.match(self.l[j]) and "perm" not in self.l[j]][-1]
            self.l[i] = re.sub(r"(v_\w+) ", r"\1_e64 ", self.l[i], 1)

def v(b, n=1): return f"v{b}" if n == 1 else f"v[{b}:{b+n-1}]"
def a(b, n=1): return f"a{b}" if n == 1 else f"a[{b}:{b+n-1}]"
def s(b, n=1): return f"s{b}" if n == 1 else f"s[{b}:{b+n-1}]"
def m4(d, aa, b, c=0): return f"v_mfma_f32_4x4x4_16b_bf16 {v(d,4)}, {v(aa,2)}, {v(b,2)}, {c}"
def m16(d, aa, b, c): return f"v_mfma_f32_16x16x32_bf16 {v(d,4)}, {v(aa,4)}, {v(b,4)}, {c}"
def k16(d, aa, b, c=0): return f"v_mfma_f32_16x16x16_bf16 {v(d,4)}, {v(aa,2)}, {v(b,2)}, {c}"
def weave(main, fill, k=1):
    out, j = [], 0
    for x in main:
        out.append(x); out += fill[j:j+k]; j += k
    return out + fill[j:]

def gen(nt=1, stamps=0, dg=-1, da=0, K=20, dw=0, rel=0, bench=0, pfd=1, pro=1133, sched="2244789abcde",
        abl=0, bars=0, cyc=0, es=1, lp=1, mv=1):
    vmin = 6
    pro = [int(x) for x in f"{pro:04d}"]; sched = [int(x, 16) for x in sched]
    assert len(sched) == 12 and sched == sorted(sched) and sched[4] >= 5 and sched[8] >= 9
    stamps = stamps or dg >= 0
    o = Asm()
    NT = " nt" if nt else ""
    ST = " sc1"
    sV = 3
    sW, sG, sGG, sN = 20, 21, 22, 23
    sM = 24
    sB = 34
    s78, sM0, sK, sSL = 40, 41, 42, 43
    sNL, sC0, sNB = 44, 46, 24
    sSRD = 48
    sT0, sT1 = 52, 53
    sINC = 54
    sST = 56
    sPC = 88
    sE, sX = 34, 36
    def stamp(i):
        if bench:
            if i in (4, 5):
                o(f"s_memtime {s(sST+2*i,2)}", f"s_memrealtime {s(sST+2*i-4,2)}")
        elif stamps and not (bars and 7 <= i <= 13) and (stamps == 1 or i in (0, 5, 6, 11)):
            o(f"s_memrealtime {s(sST+2*i,2)}")
    LANE = 1
    NV = 192
    X0, X1, X2, X3, X4, X5 = 22, 23, 24, 25, 26, 27
    VO = 28
    M, INFO, E, POS = 2, 7, 12, 17
    LF = 2
    CE, CO, ALD, AENT, ATR, F0 = 54, 55, 56, 57, 60, 64
    GL, GE, GT = 58, 59, 72
    ACC, TR, LE, SOP, SUM = 116, 132, 148, 164, 168
    ASR, CSW, MSK, ENT, B2, AOUT, ACNT, N8 = range(170, 178)
    WV = 179
    ASW, OB = 180, 184
    D, T, HF, H = (0, 16), (32, 48), (64, 80), (96, 104)
    W2, TT, UT, N, OH = 112, 128, 136, 144, (152, 154)
    AH, CENT, CSUM, ID, SA, SB, CEN, COH = 156, 158, 159, 160, 162, 164, 166, 165
    AWR, AWW, AC2, AB1, OHV, SEL = 188, 2, 3, 4, 144, 146
    CW, SHQ = 172, 168
    RW, TB, RW2, AW2, RB1, PID, NID = 32, 56, 6, 7, 8, 12, 14
    UF, UD, TD = 64, 96, 16

    stamp(0)
    o("s_load_dwordx4 s[8:11], s[0:1], 16")
    if pfd:
        o.c("each wave pulls one 128-byte line of this code into L2")
        o(f"s_getpc_b64 {s(sPC,2)}")
        o.label("L_pc")
        o(f"s_and_b32 {s(sT0)}, s2, 0x78",
          f"s_lshl_b32 {s(sT0)}, {s(sT0)}, 7",
          "v_and_b32 v20, 0x1e0, v0",
          f"v_lshl_add_u32 v20, v20, 1, {s(sT0)}",
          "v_min_u32 v20, L_end-L_pc-320, v20",
          f"global_load_dword v21, v20, {s(sPC,2)} offset:320")
    o("v_lshrrev_b32 v2, 6, v0",
      "s_cmp_ge_u32 s2, 0x100",
      f"v_readfirstlane_b32 {s(sW)}, v2",
      "s_cbranch_scc1 L_end",
      f"v_and_b32 {v(LANE)}, 63, v0")
    kargs = ["s_load_dwordx4 s[4:7], s[0:1], 0", "s_load_dwordx8 s[12:19], s[0:1], 32"]
    o(f"s_and_b32 {s(sG)}, {s(sW)}, 3",
      f"s_lshl2_add_u32 {s(sGG)}, s2, {s(sG)}",
      f"s_cmp_lt_u32 {s(sW)}, 4",
      "s_cbranch_scc1 L_l0")
    o.c("==== waves 4-7, first loads ====")
    o.c("a wave stages 16 rows of w1; slot p of row d holds chunk p ^ 2*d1 ^ 4*d4")
    sR = sG
    o(f"s_and_b32 {s(sT1)}, {s(sR)}, 1",
      f"s_lshl_b32 {s(sT0)}, {s(sR)}, 11",
      f"s_lshl_b32 {s(sT1)}, {s(sT1)}, 6",
      f"s_or_b32 {s(sT1)}, {s(sT1)}, {s(sT0)}",
      f"v_and_b32 {v(X4)}, 16, {v(LANE)}",
      f"v_lshlrev_b32 {v(X2)}, 4, {v(LANE)}",
      f"v_lshlrev_b32 {v(X0)}, 1, {v(X4)}",
      f"v_xor_b32 {v(X0)}, {v(X0)}, {v(X2)}",
      f"v_xor_b32 {v(VO)}, {s(sT1)}, {v(X0)}")
    for f in range(1, 4): o(f"v_add_u32 {v(VO+f)}, {8192*f}, {v(VO)}")
    o(f"s_add_u32 {s(sT0)}, {s(sT0)}, {WST}",
      f"s_add_u32 m0, {s(sT0)}, 8192",
      f"v_lshrrev_b32 {v(X3)}, 4, {v(LANE)}",
      f"v_and_b32 {v(X5)}, 15, {v(LANE)}",
      f"s_lshl_b32 {s(sT1)}, {s(sGG)}, 11",
      f"v_lshl_add_u32 {v(X1)}, {v(X5)}, 7, {s(sT1)}",
      f"v_lshl_add_u32 {v(X1)}, {v(X3)}, 5, {v(X1)}",
      "s_waitcnt lgkmcnt(0)")
    stamp(1)
    o("s_load_dwordx2 s[4:5], s[0:1], 0")
    for n, f in ((0, 2), (2, 1), (1, 0)):
        for e in range(2):
            o(f"global_load_dwordx4 {v(RW+12*e+4*n,4)}, {v(VO+f)}, s[10:11] offset:{1024*e}")
    tl = ["s_waitcnt lgkmcnt(0)",
          f"global_load_dwordx4 {v(TB,4)}, {v(X1)}, s[4:5]",
          f"global_load_dwordx4 {v(TB+4,4)}, {v(X1)}, s[4:5] offset:16"]
    dw_ = [f"global_load_lds_dwordx4 {v(VO+3)}, s[10:11]",
           f"global_load_lds_dwordx4 {v(VO+3)}, s[10:11] offset:1024"]
    o(*tl, *dw_, "s_branch L_c1")

    o.c("==== waves 0-3: row compaction, gathers, scores, weighted sum ====")
    o.label("L_l0")
    o("s_setprio 3" if lp < 3 else "s_setprio 0",
      f"s_mul_i32 {s(sT0)}, {s(sGG)}, 640",
      f"v_lshlrev_b32 {v(VO+1)}, 4, {v(LANE)}",
      f"v_add_u32 {v(VO)}, {s(sT0)}, {v(VO+1)}",
      f"s_mul_i32 {s(sT1)}, {s(sG)}, 640",
      f"s_add_u32 {s(sT1)}, {s(sT1)}, {MASK}",
      f"s_mov_b32 m0, {s(sT1)}",
      f"v_lshl_add_u32 {v(VO+2)}, {v(LANE)}, 1, {s(sT1)}",
      "s_movk_i32 exec_hi, 0xff",
      "s_waitcnt lgkmcnt(0)")
    stamp(1)
    o(f"global_load_lds_dwordx4 {v(VO)}, s[8:9]", *kargs,
      f"s_mov_b32 m0, {MISC}",
      "s_mov_b64 exec, 0xff",
      f"s_mul_i32 {s(sT0)}, {s(sGG)}, 40960",
      "s_waitcnt lgkmcnt(0)",
      f"global_load_lds_dwordx4 {v(VO+1)}, s[12:13]",
      "s_mov_b64 exec, -1",
      f"v_lshlrev_b32 {v(VO+1)}, 1, {v(LANE)}",
      f"global_load_ushort {v(WV)}, {v(VO+1)}, s[14:15]")
    o(f"s_mov_b32 {s(sSRD+2)}, 40960",
      f"s_mov_b32 {s(sSRD+3)}, 0x20000",
      f"s_mul_i32 {s(sB)}, {s(sG)}, 1280",
      f"s_add_u32 {s(sB)}, {s(sB)}, {LIST}",
      f"s_mov_b32 {s(sK)}, 0xff80",
      f"s_lshl_b32 {s(sM0)}, {s(sG)}, 12")
    o.c("pad entries, then (row*128 | sample*8) in the high half")
    for i in range(4): o(f"v_mov_b32 {v(F0+i)}, {s(sK)}")
    o(f"v_lshl_add_u32 {v(F0+4)}, {v(LANE)}, 4, {s(sB)}",
      f"v_lshl_add_u32 {v(F0+5)}, {v(LANE)}, 2, {s(sB)}",
      f"ds_write_b128 {v(F0+4)}, {v(F0,4)}",
      f"ds_write_b32 {v(F0+5)}, {v(F0)} offset:1024",
      f"v_mul_u32_u24 {v(INFO)}, 8414824, {v(LANE)}")
    for j in range(1, 5): o(f"v_add_u32 {v(INFO+j)}, {hex(8414824*64*j)}, {v(INFO)}")
    o(f"v_lshrrev_b32 {v(X1)}, 3, {v(LANE)}",
      f"v_and_b32 {v(X2)}, 7, {v(LANE)}",
      f"v_lshl_add_u32 {v(ALD)}, {v(X1)}, 4, {s(sB)}",
      f"v_and_b32 {v(CE)}, 6, {v(X1)}",
      f"v_xor_b32 {v(CE)}, {v(CE)}, {v(X2)}",
      f"v_lshlrev_b32 {v(CE)}, 4, {v(CE)}",
      f"v_xor_b32 {v(CO)}, 16, {v(CE)}",
      f"v_and_b32 {v(X1)}, 3, {v(X1)}",
      f"v_lshl_add_u32 {v(AENT)}, {v(X2)}, 2, {v(X1)}",
      f"v_lshl_add_u32 {v(AENT)}, {v(AENT)}, 2, {s(sB)}",
      f"s_sub_u32 {s(sV)}, {s(sB)}, 124",
      f"s_lshl2_add_u32 {s(sT1)}, {s(sG)}, {MISC+256}",
      f"v_mov_b32 {v(ACNT)}, {s(sT1)}")
    o(f"v_and_b32 {v(VO)}, 3, {v(LANE)}",
      f"v_mov_b32 {v(MSK)}, 0",
      f"s_add_u32 {s(sSRD)}, s6, {s(sT0)}",
      f"s_addc_u32 {s(sSRD+1)}, s7, 0")
    dma = lambda r: f"buffer_load_dwordx4 {v(r)}, {s(sSRD,4)}, 0 offen{NT} lds"
    adr = lambda r, i: f"v_and_or_b32 {v(r+i)}, {v(r+i)}, {s(sK)}, {v(CO if i & 1 else CE)}"
    def dma_unit(u):
        for i in (2*u, 2*u+1):
            o(adr(LE, i), dma(LE+i))
            if i % 4 < 3: o("s_add_u32 m0, m0, 0x400")
            else: o("s_add_u32 m0, m0, 0xb400", "s_and_b32 m0, m0, 0xffff")
    issued = [2]
    def dma_point(pt):
        for u in range(2, 6):
            if pro[u-2] == pt:
                assert issued[0] == u
                dma_unit(u); issued[0] += 1
    if lp == 2: o("s_setprio 0")
    stamp(7)
    o("s_waitcnt vmcnt(2)")
    stamp(2)
    for j in range(5): o(f"ds_read_u16 {v(M+j)}, {v(VO+2)} offset:{128*j}")
    o("s_waitcnt lgkmcnt(0)")
    for j in range(5): o(f"v_cmp_ne_u32_e64 {s(sM+2*j,2)}, 0, {v(M+j)}")
    for j in range(5):
        o(f"s_mov_b64 exec, {s(sM+2*j,2)}",
          f"v_mbcnt_lo_u32_b32 {v(POS+j)}, {s(sM+2*j)}, 0",
          f"v_mbcnt_hi_u32_b32 {v(POS+j)}, {s(sM+2*j+1)}, {v(POS+j)}",
          f"v_alignbit_b32 {v(E+j)}, {v(M+j)}, {v(INFO+j)}, 16",
          f"v_lshl_add_u32 {v(POS+j)}, {v(POS+j)}, 2, {s(sB+j)}",
          f"ds_write_b32 {v(POS+j)}, {v(E+j)}",
          f"s_bcnt1_i32_b64 {s(sT0)}, {s(sM+2*j,2)}",
          f"s_lshl2_add_u32 {s(sB+j+1 if j < 4 else sT0)}, {s(sT0)}, {s(sB+j)}")
    o.c("list tiles are taken last to first, tile c in slot c&3; V = max(tiles, 6) steps, the leading ones empty")
    o(f"s_sub_u32 {s(sT0)}, {s(sT0)}, {s(sV)}",
      f"s_lshr_b32 {s(sN)}, {s(sT0)}, 7")
    if bench: o(f"s_mov_b32 {s(sN)}, {bench}")
    o(f"s_max_u32 {s(sV)}, {s(sN)}, 6",
      f"s_sub_u32 {s(sV)}, {s(sV)}, 6",
      f"s_lshl_b32 {s(sT1)}, {s(sV)}, 7",
      "s_mov_b64 exec, -1",
      f"v_add_u32 {v(GL)}, {s(sT1)}, {v(ALD)}")
    for i in range(3): o(f"ds_read_b128 {v(LE+4*i,4)}, {v(GL)} offset:{640-128*i}")
    o(f"global_load_ushort {v(B2)}, {v(MSK)}, s[16:17]",
      f"s_add_u32 {s(sT0)}, {s(sV)}, 1",
      f"s_and_b32 {s(sT0)}, {s(sT0)}, 3",
      f"s_lshl_b32 {s(sSL)}, {s(sT0)}, 14",
      f"s_add_u32 m0, {s(sSL)}, {s(sM0)}",
      f"v_mov_b32 {v(SUM)}, {s(sN)}",
      f"v_add_u32 {v(GE)}, {s(sT1)}, {v(AENT)}",
      "s_waitcnt lgkmcnt(2)")
    dma_unit(0); dma_unit(1)
    stamp(8)
    o(f"ds_write_b32 {v(ACNT)}, {v(SUM)}")
    for i in range(3): o(f"ds_read_b128 {v(LF+4*i,4)}, {v(ALD)} offset:{256-128*i}")
    o(f"ds_read_b32 {v(ENT)}, {v(AENT)} offset:640")
    o("s_waitcnt lgkmcnt(5)")
    dma_point(0)
    o.c("M = power of two at the largest |w2|; table of M/w2 with |w2| held above M*2^-29")
    if lp == 1: o("s_setprio 0")
    o(f"s_waitcnt vmcnt({1 + 2*issued[0]})",
      f"v_lshlrev_b32 {v(WV)}, 16, {v(WV)}",
      f"v_and_b32 {v(X1)}, 0x7fffffff, {v(WV)}",
      f"v_and_b32 {v(X2)}, 0x7f800000, {v(WV)}",
      f"v_lshlrev_b32 {v(VO+1)}, 2, {v(LANE)}",
      f"v_add_u32 {v(VO+1)}, {MISC}, {v(VO+1)}")
    for r in (1, 2, 4, 8):
        o(f"v_max_u32_dpp {v(X2)}, {v(X2)}, {v(X2)} row_ror:{r} row_mask:0xf bank_mask:0xf", "s_nop 1")
    o(*[f"v_readlane_b32 {s(sM+i)}, {v(X2)}, {16*i}" for i in range(4)],
      f"s_max_u32 {s(sM)}, {s(sM)}, {s(sM+1)}",
      f"s_max_u32 {s(sM+2)}, {s(sM+2)}, {s(sM+3)}",
      f"s_max_u32 {s(sM)}, {s(sM)}, {s(sM+2)}",
      f"s_max_u32 {s(sM)}, {s(sM)}, {hex((SH+1) << 23)}",
      f"s_min_u32 {s(sM)}, {s(sM)}, 0x7e800000",
      f"s_sub_u32 {s(sC0)}, {s(sM)}, {hex(SH << 23)}",
      f"s_sub_u32 {s(sM+1)}, {s(sM)}, {hex(29 << 23)}",
      f"s_sub_u32 {s(sM)}, 0x7f000000, {s(sM)}",
      f"v_max_u32 {v(X1)}, {s(sM+1)}, {v(X1)}",
      f"v_mul_f32 {v(X1)}, {s(sM)}, {v(X1)}",
      f"v_rcp_f32 {v(X1)}, {v(X1)}",
      f"v_and_b32 {v(WV)}, 0x80000000, {v(WV)}",
      f"v_or_b32 {v(X1)}, {v(X1)}, {v(WV)}",
      f"ds_write_b32 {v(VO+1)}, {v(X1)} offset:384",
      *(["s_setprio 0"] if lp == 0 else []), "s_waitcnt lgkmcnt(0)")
    stamp(3)
    o("s_barrier")
    stamp(14)
    dma_point(1)
    stamp(9)
    o(*[adr(LF, i) for i in range(12)])
    dma_point(6)
    o.c("transposed fragments (row' = lane>>2), output offset, score matrix [kk][q][sample][4]")
    o(f"v_lshrrev_b32 {v(X4)}, 5, {v(LANE)}",
      f"v_lshrrev_b32 {v(X1)}, 2, {v(LANE)}",
      f"v_and_or_b32 {v(X2)}, {v(X1)}, 6, {v(X4)}",
      f"v_lshlrev_b32 {v(X2)}, 4, {v(X2)}",
      f"v_lshlrev_b32 {v(VO+3)}, 3, {v(VO)}",
      f"v_xor_b32 {v(X2)}, {v(X2)}, {v(VO+3)}",
      f"v_lshl_add_u32 {v(ATR)}, {v(X1)}, 7, {v(X2)}",
      f"v_add_u32 {v(ATR)}, {s(sM0)}, {v(ATR)}")
    for k in range(1, 4): o(f"v_xor_b32 {v(ATR+k)}, {32*k}, {v(ATR)}")
    for i in range(0, 16, 2): o(f"v_mov_b64 {v(ACC+i,2)}, 0")
    o(f"s_lshl_b32 {s(sT1)}, {s(sGG)}, 11",
      f"v_and_b32 {v(X0)}, 15, {v(LANE)}",
      f"v_lshl_add_u32 {v(AOUT)}, {v(X0)}, 7, {s(sT1)}",
      f"v_lshl_add_u32 {v(AOUT)}, {v(X4)}, 4, {v(AOUT)}",
      f"v_and_b32 {v(X2)}, 16, {v(LANE)}",
      f"v_lshl_add_u32 {v(AOUT)}, {v(X2)}, 1, {v(AOUT)}",
      f"s_lshl_b32 {s(sT0)}, {s(sG)}, 10",
      f"s_add_u32 {s(sT0)}, {s(sT0)}, {SBUF}",
      f"v_lshl_add_u32 {v(ASR)}, {v(LANE)}, 3, {s(sT0)}",
      f"v_and_b32 {v(CSW)}, 7, {v(X1)}",
      f"v_lshl_add_u32 {v(CSW)}, {v(CSW)}, 7, {s(sT0)}",
      f"v_lshl_add_u32 {v(CSW)}, {v(VO)}, 1, {v(CSW)}",
      f"ds_write2st64_b64 {v(ASR)}, {v(ACC,2)}, {v(ACC,2)} offset1:1",
      f"s_movk_i32 {s(s78)}, 0x78",
      f"v_lshlrev_b32 {v(N8)}, 3, {v(X0)}",
      f"v_and_or_b32 {v(ASW)}, {v(ENT)}, {s(s78)}, {v(CSW)}",
      f"v_and_b32 {v(MSK)}, 0xffff0000, {v(ENT)}",
      f"s_mov_b64 {s(sX,2)}, -1")
    dma_point(7)
    stamp(10)
    o(f"s_waitcnt vmcnt({2*(issued[0]-2)})",
      f"v_lshlrev_b32 {v(B2)}, 16, {v(B2)}")
    dma_point(2)
    stamp(12)
    o("s_barrier")
    stamp(13)
    dma_point(3)
    if bench: o("s_waitcnt vmcnt(0)", "s_barrier")
    stamp(4)
    o(f"s_cmp_eq_u32 {s(sN)}, 0",
      "s_cbranch_scc1 L_store",
      f"s_waitcnt vmcnt({2*(issued[0]-3)})")
    dma_point(4)
    assert issued[0] == 6
    def store(first):
        for h_ in range(2):
            o(*[f"v_cvt_pk_bf16_f32 {v(OB+4*h_+i)}, {v(ACC+8*h_+2*i)}, {v(ACC+8*h_+2*i+1)}" for i in (0, 2, 1, 3)])
            o(first if h_ == 0 else "s_nop 0",
              f"v_permlane16_swap_b32 {v(OB+4*h_)}, {v(OB+4*h_+2)}",
              f"v_permlane16_swap_b32 {v(OB+4*h_+1)}, {v(OB+4*h_+3)}",
              f"global_store_dwordx4 {v(AOUT)}, {v(OB+4*h_,4)}, s[18:19] offset:{64*h_}{ST}")
    def score(ae, c, last=False, mid=None):
        o(f"ds_read_b32 {v(SUM)}, {v(ae)} offset:{DS+128*(c+1)}",
          f"ds_read_b32 {v(SUM+1)}, {v(ae)} offset:{DS+5120+128*(c+1)}")
        if not last: o(f"ds_read_b32 {v(ENT)}, {v(ae)} offset:{128*c}")
        if mid: mid()
        if not last: o("s_setprio 3")
        o(f"s_waitcnt lgkmcnt({0 if last else 1})",
          f"v_add_f32 {v(SUM)}, {v(SUM)}, {v(SUM+1)}",
          f"v_fma_f32 {v(SUM)}, {v(SUM)}, {s(sC0)}, {v(B2)}",
          f"v_mul_legacy_f32 {v(SUM)}, {v(SUM)}, {v(MSK)}",
          f"v_cvt_pk_bf16_f32 {v(SUM)}, {v(SUM)}, {v(SUM)}",
          f"ds_write_b16 {v(ASW)}, {v(SUM)}",
          f"ds_read2st64_b64 {v(SOP,4)}, {v(ASR)} offset1:1")
        if not last:
            o(f"ds_write_b16 {v(ASW)}, {v(MSK)}",
              f"ds_read_u16_d16_hi {v(MSK)}, {v(ae)} offset:{128*c+2}",
              "s_waitcnt lgkmcnt(4)",
              f"v_and_or_b32 {v(ASW)}, {v(ENT)}, {s(s78)}, {v(CSW)}",
              "s_setprio 0")
    fin = [m16(ACC+4*jj, TR+4*jj, SOP, v(ACC+4*jj,4)) for jj in range(4)]
    def trreads(at, off):
        for jj in range(4):
            for kk in range(2): o(f"ds_read_b64_tr_b16 {v(TR+4*jj+2*kk,2)}, {v(at+jj)} offset:{off+2048*kk}")
    def bar(j):
        if bars == 2 and j % 2 == 0: o(f"s_memrealtime {s(sST+2*(7+j//2),2)}")
        o("s_barrier")
        if bars == 1 and j % 2 == 0: o(f"s_memrealtime {s(sST+2*(7+j//2),2)}")
    def gather(slot):
        for i in range(12):
            if sched[i] == slot:
                o(f"s_add_u32 m0, {s(sM0)}, {16384*((2 - i//4) & 3) + 1024*(i & 3)}", "s_nop 0", dma(LF+i))
    def landed(j):
        have = 12 + sum(x <= 2*j+1 for x in sched)
        if j + 3 > 11: return []
        assert have >= 2*j + 8
        return [f"vmcnt({have - 2*j - 8})"]
    o(f"s_cmp_eq_u32 {s(sV)}, 0",
      "s_cbranch_scc0 L_more")
    o.c("---- the last six steps ----")
    o.label("L_lloop")
    for k in range(6):
        c = 5 - k
        bar(2*k)
        if k == 0:
            gather(0); gather(1)
            o("s_waitcnt " + landed(0)[0])
            bar(1)
            o.label("L_join")
        else:
            score(AENT, c, mid=lambda: gather(4*k))
            gather(4*k+1)
            o("s_waitcnt " + " ".join(landed(2*k) + ["lgkmcnt(0)"]), "s_setprio 3")
            bar(2*k+1)
            o(*fin, "s_setprio 0")
        gather(4*k+2)
        trreads(ATR, 16384*(c & 3))
        gather(4*k+3)
        w = landed(2*k+1)
        if w: o("s_waitcnt " + w[0])
    if es:
        o.c("samples above the highest one in the last tile are final: store them now")
        o(f"s_cmp_gt_u32 {s(sN)}, 1", "s_cbranch_scc0 L_ne", "s_setprio 3",
          f"v_readlane_b32 {s(sT0)}, {v(ENT)}, 31",
          *[f"v_cvt_pk_bf16_f32 {v(OB+i)}, {v(ACC+2*i)}, {v(ACC+2*i+1)}" for i in range(8)],
          f"s_and_b32 {s(sT0)}, {s(sT0)}, 0x78",
          f"v_cmp_ge_u32_e64 {s(sX,2)}, {s(sT0)}, {v(N8)}",
          *[f"v_permlane16_swap_b32 {v(OB+i)}, {v(OB+i+2)}" for i in (0, 1, 4, 5)],
          "s_setprio 0", f"s_not_b64 exec, {s(sX,2)}",
          *[f"global_store_dwordx4 {v(AOUT)}, {v(OB+4*h_,4)}, s[18:19] offset:{64*h_}{ST}" for h_ in range(2)],
          "s_mov_b64 exec, -1")
        o.label("L_ne")
    bar(12)
    score(AENT, -1, True)
    o("s_waitcnt lgkmcnt(0)", *fin, "s_nop 0")
    o.label("L_store")
    stamp(5)
    o("s_nop 3")
    store(f"s_mov_b64 exec, {s(sX,2)}")
    o("s_branch L_fin" if stamps else "s_endpgm")
    def more():
        o.c("---- steps while more than six tiles remain: tile c = V + 5, gather tile c - 3 ----")
        o.label("L_more")
        o("s_setprio 3")
        o(*[f"v_mov_b64 {v(TR+i,2)}, 0" for i in range(0, 16, 2)], f"v_mov_b32 {v(MSK)}, 0")
        o.label("L_more2")
        o("s_barrier")
        score(GE, 5)
        o.l.pop()
        o(f"ds_read_b128 {v(LE,4)}, {v(GL)} offset:256",
          *[f"v_add_u32 {v(GT+i)}, {s(sSL)}, {v(ATR+i)}" for i in range(4)],
          f"s_add_u32 {s(sT0)}, {s(sSL)}, 0x4000",
          f"s_and_b32 {s(sT0)}, {s(sT0)}, 0xffff",
          f"s_add_u32 m0, {s(sT0)}, {s(sM0)}",
          f"s_add_u32 {s(sSL)}, {s(sSL)}, 0xc000",
          f"s_and_b32 {s(sSL)}, {s(sSL)}, 0xffff",
          f"v_subrev_u32 {v(GL)}, 0x80, {v(GL)}",
          f"v_subrev_u32 {v(GE)}, 0x80, {v(GE)}",
          "s_setprio 0",
          "s_waitcnt vmcnt(4) lgkmcnt(0)", "s_setprio 3",
          "s_barrier", *fin)
        trreads(GT, 0)
        dma_unit(0); dma_unit(1)
        o("s_setprio 0",
          f"s_sub_u32 {s(sV)}, {s(sV)}, 1",
          f"s_cmp_eq_u32 {s(sV)}, 0",
          "s_waitcnt vmcnt(6)",
          "s_cbranch_scc0 L_more2",
          "s_barrier")
        score(AENT, 5)
        gather(0); gather(1)
        o("s_waitcnt " + " ".join(landed(0) + ["lgkmcnt(0)"]), "s_setprio 3", "s_barrier", *fin, "s_setprio 0", "s_branch L_join")

    if not mv: more()
    o.c("==== waves 4-7: weight staging, per-sample terms, then the activation unit ====")
    o.label("L_c1")
    o(f"v_add_u32 {v(AWW)}, {s(sT0)}, {v(X2)}",
      f"v_and_b32 {v(X0)}, 3, {v(LANE)}",
      f"v_lshlrev_b32 {v(X1)}, 4, {v(X0)}")
    o.c("4x4 identity, its negative, the selection operands and the two factors of -log2(e)")
    o(f"v_mov_b32 {v(ID)}, 1",
      f"v_mov_b32 {v(ID+1)}, 0",
      f"v_lshlrev_b64 {v(ID,2)}, {v(X1)}, {v(ID,2)}",
      f"v_mul_u32_u24 {v(PID)}, 0x3f80, {v(ID)}",
      f"v_mul_u32_u24 {v(PID+1)}, 0x3f80, {v(ID+1)}",
      f"v_mul_u32_u24 {v(NID)}, 0xbf80, {v(ID)}",
      f"v_mul_u32_u24 {v(NID+1)}, 0xbf80, {v(ID+1)}",
      *[f"v_mov_b64 {v(OHV+2*i,2)}, 0" for i in range(4)],
      f"s_mov_b32 {s(sT1)}, {OHT}",
      f"v_lshl_add_u32 {v(X1)}, {v(LANE)}, 3, {s(sT1)}",
      f"v_lshl_add_u32 {v(COH)}, {v(X3)}, 7, {s(sT1)}",
      "s_mov_b32 exec_lo, 0x00f0000f",
      "s_mov_b32 exec_hi, 0xf0000f00",
      f"v_mov_b64 {v(SEL+2,2)}, {v(PID,2)}",
      f"v_mul_u32_u24 {v(OHV)}, {hex(FB)}, {v(ID)}",
      f"v_mul_u32_u24 {v(OHV+1)}, {hex(FB)}, {v(ID+1)}",
      "s_mov_b64 exec, -1",
      f"ds_write_b64 {v(X1)}, {v(OHV,2)}",
      f"v_mul_u32_u24 {v(ID)}, {hex(FA)}, {v(ID)}",
      f"v_mul_u32_u24 {v(ID+1)}, {hex(FA)}, {v(ID+1)}",
      f"s_mov_b32 {s(sNL)}, {hex(NLOG2E)}",
      f"s_mov_b32 {s(sNL+1)}, {hex(NLOG2E)}",
      f"s_mov_b32 {s(sNB)}, {hex(NLOG2E_B)}",
      f"s_mov_b32 {s(sNB+1)}, {hex(NLOG2E_B)}",
      f"s_mov_b32 {s(sC0)}, {hex(f2u(2.0**-SH))}",
      f"s_mov_b32 {s(sC0+1)}, {hex(f2u(2.0**-SH))}",
      f"s_movk_i32 {s(s78)}, 0x78")
    o.c("staging read address (16q + r)*128 + (q&1)*64 + (r>>1)*32 + c*8")
    o(f"v_bfe_u32 {v(X1)}, {v(LANE)}, 2, 2",
      f"v_lshl_add_u32 {v(X1)}, {v(X3)}, 4, {v(X1)}",
      f"v_and_b32 {v(X2)}, 24, {v(LANE)}",
      f"v_lshl_add_u32 {v(X2)}, {v(X0)}, 1, {v(X2)}",
      f"v_lshlrev_b32 {v(X2)}, 2, {v(X2)}",
      f"v_lshl_add_u32 {v(AWR)}, {v(X1)}, 7, {v(X2)}",
      f"v_add_u32 {v(AWR)}, {WST}, {v(AWR)}",
      *[f"v_xor_b32 {v(AWR+k)}, {32*k}, {v(AWR)}" for k in range(1, 4)],
      f"s_mov_b32 {s(sT1)}, {MISC}",
      f"v_lshl_add_u32 {v(AB1)}, {v(X5)}, 1, {s(sT1)}",
      f"v_lshl_add_u32 {v(AC2)}, {v(X3)}, 4, {s(sT1)}",
      *[f"v_mov_b32 {v(SHQ+i)}, {hex(f2u(-float(SH)))}" for i in range(4)],
      f"s_lshl2_add_u32 {s(sT1)}, {s(sG)}, {s(sT1)}",
      f"v_mov_b32 {v(VO+2)}, {s(sT1)}",
      f"v_mov_b64 {v(RB1,2)}, 0",
      f"v_mov_b64 {v(RB1+2,2)}, 0")
    o.c("entry, row-sum and fragment addresses")
    o(f"s_mul_i32 {s(sT0)}, {s(sG)}, 1280",
      f"s_add_u32 {s(sT0)}, {s(sT0)}, {LIST-256}",
      f"v_bfe_u32 {v(X1)}, {v(LANE)}, 3, 1",
      f"v_and_b32 {v(X2)}, 7, {v(LANE)}",
      f"v_lshl_add_u32 {v(X2)}, {v(X2)}, 2, {v(X1)}",
      f"v_lshl_add_u32 {v(CENT)}, {v(X2)}, 2, {s(sT0)}",
      f"v_lshrrev_b32 {v(X2)}, 5, {v(LANE)}",
      f"v_mul_u32_u24 {v(CSUM)}, 5120, {v(X2)}",
      f"v_lshrrev_b32 {v(X2)}, 1, {v(X4)}",
      f"v_add_u32 {v(CSUM)}, {v(X2)}, {v(CSUM)}",
      f"s_movk_i32 {s(sINC)}, 0xff80",
      f"s_movk_i32 {s(sINC+1)}, 0xff7f",
      f"v_and_or_b32 {v(X1)}, {v(LANE)}, 6, {v(X1)}",
      f"v_lshlrev_b32 {v(X2)}, 1, {v(X3)}",
      f"v_xor_b32 {v(X1)}, {v(X1)}, {v(X2)}",
      f"s_lshl_b32 {s(sT0)}, {s(sG)}, 12",
      f"v_lshl_add_u32 {v(X2)}, {v(X5)}, 7, {s(sT0)}",
      f"v_lshl_add_u32 {v(AH)}, {v(X1)}, 4, {v(X2)}",
      f"v_xor_b32 {v(AH+1)}, 16, {v(AH)}")
    if lp: o("s_setprio 2")
    stamp(7)
    o("s_waitcnt vmcnt(8)")
    stamp(2)
    fr = lambda mat, e: UF+16*mat+8*e
    ini = lambda mat: [m4(fr(mat,e)+4*i, NID if mat else PID, RW+12*e+2*i) for e in range(2) for i in range(2)]
    acc = lambda mat: [m4(fr(mat,e)+4*i, PID, RW+12*e+4+4*mat+2*i, v(fr(mat,e)+4*i,4)) for e in range(2) for i in range(2)]
    def pack(mat, e):
        f = fr(mat, e)
        return ([f"v_pk_mul_f32 {v(f+2*i,2)}, {v(f+2*i,2)}, {s(sNB if mat else sNL,2)}" for i in range(4)]
                + [f"v_cvt_pk_bf16_f32 {v(f+i)}, {v(f+2*i)}, {v(f+2*i+1)}" for i in range(4)]
                + [f"ds_write_b128 {v(AWW)}, {v(f,4)} offset:{16384*mat+1024*e}"])
    o(*ini(1), *ini(0), "s_waitcnt vmcnt(6)", *acc(1), "s_waitcnt vmcnt(4)", *acc(0))
    o(*pack(1, 0), *pack(1, 1), *pack(0, 0), *pack(0, 1))
    o(*([] if lp else ["s_setprio 2"]), "s_waitcnt lgkmcnt(0)")
    stamp(3)
    o("s_barrier")
    stamp(14)
    wfrag = lambda mat, t, ks: 16*t + 8*mat + 4*ks
    def wreads(mat):
        return [f"ds_read_b64_tr_b16 {a(wfrag(mat,t,ks)+2*kk,2)}, {v(AWR+t)} offset:{8192*mat+1024*ks+512*kk}"
                for t in range(4) for ks in range(2) for kk in range(2)]
    rdH = lambda u, k: f"ds_read_b128 {v(H[u]+4*k,4)}, {v(AH+k)} offset:{2048*u}"
    rdOH = lambda u: f"ds_read_b64 {v(OH[u],2)}, {v(CEN+u)}"
    rdE = f"ds_read2_b32 {v(CEN,2)}, {v(CENT)} offset1:34"
    bumpH = lambda k: f"v_add_u16 {v(AH+k)}, 0xc000, {v(AH+k)}"
    dec = lambda u: f"v_and_or_b32 {v(CEN+u)}, {v(CEN+u)}, {s(s78)}, {v(COH)}"
    MU = lambda u, t: k16(D[u]+4*t, UT+2*t, OH[u], v(SHQ,4))
    MG = lambda u, t: k16(T[u]+4*t, TT+2*t, OH[u])
    o.c("per-sample bias u = t @ (Wb - Wc) + b1 and t itself as [feature][sample] operands")
    ur = [f"ds_read_b64_tr_b16 {v(UF+8*t+4*ks+2*kk,2)}, {v(AWR+t)} offset:{16384+1024*ks+512*kk}"
          for t in range(4) for ks in range(2) for kk in range(2)]
    wa, wd = wreads(0), wreads(1)
    o(f"ds_read_b32 {v(X2)}, {v(VO+2)} offset:256", *ur[:8])
    for t in range(4): o(f"ds_read_u16_d16_hi {v(RB1+t)}, {v(AB1)} offset:{32*t}")
    o("s_waitcnt lgkmcnt(12)",
      f"v_lshl_add_u32 {v(CENT)}, {v(X2)}, 7, {v(CENT)}",
      f"v_readfirstlane_b32 {s(sN)}, {v(X2)}",
      f"ds_read2_b32 {v(CEN,2)}, {v(CENT)} offset0:32 offset1:34",
      f"ds_read_b32 {v(SA)}, {v(CENT)}")
    for t in range(4): o(f"ds_read_b128 {v(W2+4*t,4)}, {v(AC2)} offset:{384+64*t}")
    o(*ur[8:])
    o(f"v_add_u32 {v(CSUM)}, {v(CSUM)}, {v(CENT)}",
      f"s_max_u32 {s(sV)}, {s(sN)}, {vmin}",
      f"s_sub_u32 {s(sV)}, {s(sV)}, {s(sN)}",
      f"s_lshl_b32 {s(sV)}, {s(sV)}, 1",
      f"s_add_u32 {s(sT0)}, {s(sN)}, 3",
      f"s_lshl_b32 {s(sT0)}, {s(sT0)}, 14",
      "s_waitcnt lgkmcnt(8)",
      dec(0), dec(1), rdOH(0), rdOH(1), *wa[:5])
    o(*[f"v_pk_mul_f32 {v(UD+2*i,2)}, {v(RB1+(i//2 & 2),2)}, {s(sNB,2)} op_sel:[{i//2 & 1},0] op_sel_hi:[{i//2 & 1},1]" for i in range(8)])
    o(*[f"v_pk_mul_f32 {v(CW+2*i,2)}, {v(W2+2*i,2)}, {s(sC0,2)}" for i in range(8)])
    o(*wa[5:])
    o(f"v_and_or_b32 {v(CEN)}, {v(SA)}, {s(s78)}, {v(COH)}",
      *[f"v_add_u16 {v(AH+i)}, {s(sT0)}, {v(AH+i)}" for i in range(2)])
    o("s_waitcnt vmcnt(2) lgkmcnt(15)")
    stamp(9)
    um = lambda t, ks: m16(UD+4*t, TB+4*ks, UF+8*t+4*ks, v(UD+4*t,4))
    cvp = lambda dst, src, t: [f"v_cvt_pk_bf16_f32 {v(dst+2*t+i)}, {v(src+4*t+2*i)}, {v(src+4*t+2*i+1)}" for i in range(2)]
    o(*[m16(TD+4*t, TB+4*(t>>1), SEL+2-2*(t&1), 0) for t in range(4)])
    o(um(0,0), um(0,1), um(1,0), um(1,1), um(2,0), *cvp(TT,TD,0), um(2,1), *cvp(TT,TD,1))
    o(um(3,0), *cvp(TT,TD,2), um(3,1), *cvp(TT,TD,3))
    o(MG(0,0), *cvp(UT,UD,0), MG(0,1), *cvp(UT,UD,1), MG(0,2), *cvp(UT,UD,2), MG(0,3), *cvp(UT,UD,3))
    o(*[MU(0,t) for t in range(4)], f"s_sub_u32 {s(sN)}, {s(sN)}, 1", "s_waitcnt vmcnt(0)", "s_cbranch_scc1 L_cexit")
    stamp(12)
    if bench: o("s_barrier")
    o(f"s_cmp_lg_u32 {s(sV)}, 0", "s_barrier")
    stamp(13)
    stamp(4)

    def MM(u, j):
        mat, t, ks = j >> 3, (j >> 1) & 3, j & 1
        b = (HF if mat else H)[u] + 4*ks
        return f"v_mfma_f32_16x16x32_bf16 {v(D[u]+4*t,4)}, {a(wfrag(mat,t,ks),4)}, {v(b,4)}, {v(D[u]+4*t,4)}"
    ex = lambda u, i: f"v_exp_f32_e64 {v(D[u]+i)}, {v(D[u]+i)} clamp"
    un = lambda u, k: m4(HF[u]+4*k, ID, H[u]+2*k)
    p = lambda b: v(b, 2)
    def tree(u):
        r = D[u]
        out = [f"v_pk_fma_f32 {p(r+2*i)}, {p(r+2*i)}, {p(W2+2*i)}, {p(CW+2*i)}" for i in range(8)]
        for g in range(4):
            x, y = r+4*g, r+4*g+2
            out += [f"v_pk_add_f32 {p(N+2*g)}, {p(x)}, {p(y)}",
                    f"v_pk_mul_f32 {p(x)}, {p(x)}, {p(y)}"]
        for g in range(2):
            x, y = r+8*g, r+8*g+4
            out += [f"v_pk_mul_f32 {p(N+4*g)}, {p(N+4*g)}, {p(y)}",
                    f"v_pk_fma_f32 {p(N+4*g)}, {p(N+4*g+2)}, {p(x)}, {p(N+4*g)}",
                    f"v_pk_mul_f32 {p(N+4*g+2)}, {p(x)}, {p(y)}"]
        return out
    pmul = lambda u: [f"v_pk_mul_f32 {p(HF[u]+2*i)}, {p(HF[u]+2*i)}, {p(T[u]+2*i)}" for i in range(8)]
    rc = lambda i: f"v_rcp_f32 {v(N+4*(i//2)+2+i%2)}, {v(N+4*(i//2)+2+i%2)}"
    fm = lambda d, i: f"v_{'fmac' if i else 'mul'}_f32 {v(d)}, {v(N+4*(i//2)+i%2)}, {v(N+4*(i//2)+2+i%2)}"
    cv = lambda u, j: f"v_cvt_pk_bf16_f32 {v(HF[u]+j)}, {v(HF[u]+2*j)}, {v(HF[u]+2*j+1)}"
    swap = f"v_permlane16_swap_b32 {v(SA)}, {v(SB)}"
    sadd = f"v_add_f32 {v(SA)}, {v(SA)}, {v(SB)}"
    sumw = lambda off: f"ds_write_b32 {v(CSUM)}, {v(SA)} offset:{DS+off}"

    o.c("---- pipeline fill: rows 0-15 of the first tile ----")
    hr = [rdH(0,0), rdH(0,1), rdH(1,0), rdH(1,1)]
    o(*hr, *wd[:8], rdOH(0), *[MG(1,t) for t in range(4)], "s_cbranch_scc1 L_skip")
    o("s_waitcnt lgkmcnt(11)")
    o.label("L_fill")
    mu = lambda u, i: f"v_mul_f32 {v(HF[u]+i)}, {v(HF[u]+i)}, {v(T[u]+i)}"
    pa = [mu(0,i) for i in range(8)] + [cv(0,j) for j in range(4)] + [mu(0,i) for i in range(8,16)] + [cv(0,j) for j in range(4,8)]
    o(*[un(0,k) for k in range(4)])
    cut = [0, 2, 5, 8, 11, 14, 17, 20, 21]
    for j in range(8): o(MM(0,j), wd[8+j], *pa[cut[j]:cut[j+1]])
    o("s_waitcnt lgkmcnt(8)", "s_cbranch_scc1 L_skip2")
    o.label("L_fill2")
    o(*weave([un(1,k) for k in range(4)], pa[21:]), "s_waitcnt lgkmcnt(0)")
    for j in range(8, 16): o(MM(0,j), mu(1,2*j-16), mu(1,2*j-15))
    o(MU(1,0), bumpH(0), bumpH(1))

    o.c("---- tile loop: rows 16-31 of tile i, then rows 0-15 of tile i+1 ----")
    o(".p2align 3")
    o.label("L_alpha")
    o(MU(1,1), rc(0), cv(1,0))
    o(MU(1,2), rc(1), cv(1,1))
    o(MU(1,3), rc(2), fm(SB,0))
    ga = [[f"s_sub_u32 {s(sN)}, {s(sN)}, 1", rc(3)], [fm(SB,1), fm(SB,2)], [fm(SB,3), cv(1,2)], [cv(1,3), swap],
          [cv(1,4), sadd], [sumw(256)], [cv(1,5), cv(1,6)], [cv(1,7), ex(0,0)],
          [ex(0,1)], ["s_waitcnt lgkmcnt(0)", "s_barrier"], [rdH(0,0), rdH(0,1)], [ex(0,2)],
          [ex(0,3)], [ex(0,4)], [ex(0,5)], ["s_cbranch_scc1 L_drain", ex(0,6)]]
    for j in range(16): o(MM(1,j), *ga[j])
    bump = f"v_lshl_add_u64 {p(CENT)}, {p(CENT)}, 0, {s(sINC,2)}"
    o(MG(0,0), ex(0,7), ex(0,8), MG(0,1), ex(0,9), MG(0,2), ex(0,10), ex(0,11), MG(0,3), "s_waitcnt lgkmcnt(0)", ex(0,12))
    o(un(0,0), bump, un(0,1), ex(0,13), un(0,2), un(0,3), ex(0,14), ex(0,15))
    o.even("L_alpha")
    o(*tree(0), *pmul(0))
    o(MU(0,0), cv(0,0), cv(0,1), cv(0,2))
    o(MU(0,1), rc(0), cv(0,3))
    o(MU(0,2), rc(1), cv(0,4))
    o(MU(0,3), rc(2), cv(0,5))
    gl = [[rdE, cv(0,6)], [rc(3)], [cv(0,7), fm(SA,0)], [fm(SA,1), fm(SA,2)],
          [ex(1,0)], ["s_waitcnt lgkmcnt(0)", dec(0), dec(1)], [rdOH(1), rdOH(0)], [ex(1,1)],
          [ex(1,2)], ["s_barrier", rdH(1,0)], [rdH(1,1), ex(1,3)], [ex(1,4)],
          [ex(1,5)], [ex(1,6)], [ex(1,7)], ["s_waitcnt lgkmcnt(2)", ex(1,8)]]
    for j in range(16): o(MM(0,j), *gl[j])
    o(MG(1,0), ex(1,9), fm(SA,3), MG(1,1), ex(1,10), bumpH(0), MG(1,2), ex(1,11), bumpH(1), MG(1,3), "s_waitcnt lgkmcnt(0)", ex(1,12))
    o(un(1,0), un(1,1), ex(1,13), un(1,2), un(1,3), ex(1,14), ex(1,15))
    o.even("L_alpha")
    o(*tree(1), *pmul(1))
    o(MU(1,0), "s_branch L_alpha")
    o.c("---- pipeline drain: last tile ----")
    o(".p2align 3")
    o.label("L_drain")
    pc = lambda d: [f"v_pk_mul_f32 {p(d)}, {p(N)}, {p(N+2)}", f"v_pk_fma_f32 {p(d)}, {p(N+4)}, {p(N+6)}, {p(d)}",
                    f"v_add_f32_e64 {v(d)}, {v(d)}, {v(d+1)}"]
    o(*[ex(0,i) for i in range(6, 16)], *tree(0))
    o("s_barrier", rc(0), rc(1), rc(2), rc(3), *[ex(1, i) for i in range(16)])
    o.even("L_drain")
    o(*pc(SA), *tree(1), rc(0), rc(1), rc(2), rc(3), *pc(SB))
    o("s_nop 1", swap, sadd, sumw(128), "s_waitcnt lgkmcnt(0)", "s_barrier")
    o.label("L_cexit")
    stamp(5)
    o("s_branch L_fin" if stamps else "s_endpgm")
    o.c("---- a group with fewer than six tiles sits out the leading steps ----")
    o.label("L_skip")
    o("s_barrier",
      f"s_sub_u32 {s(sV)}, {s(sV)}, 1",
      f"s_cmp_eq_u32 {s(sV)}, 1",
      "s_cbranch_scc0 L_skip")
    o(*hr[:2], "s_waitcnt lgkmcnt(0)", "s_branch L_fill")
    o.label("L_skip2")
    o("s_barrier", *hr[2:], "s_waitcnt lgkmcnt(0)")
    o("s_branch L_fill2")
    if mv: more()
    o.label("L_fin")
    if dg >= 0:
        stamp(6)
        from diag import diag_tail
        diag_tail(o, sST, sW, da, dg, K, dw, rel=rel)
    elif stamps:
        stamp(6)
        o("s_waitcnt vmcnt(0)", "s_mov_b64 exec, -1")
        stamp(11)
        o("s_sleep 40", "s_load_dwordx2 s[54:55], s[0:1], 72", "s_waitcnt lgkmcnt(0)")
        for i in range(15): o(f"v_mov_b32 {v(i)}, {s(sST+2*i)}")
        o(f"v_mov_b32 v15, {s(sN)}",
          f"s_xor_b32 {s(sW)}, {s(sW)}, 4",
          f"s_lshl3_add_u32 {s(sT0)}, s2, {s(sW)}",
          f"s_lshl_b32 {s(sT0)}, {s(sT0)}, 6",
          f"v_mov_b32 v16, {s(sT0)}",
          "s_mov_b64 exec, 1")
        for i in range(4): o(f"global_store_dwordx4 v16, v[{4*i}:{4*i+3}], s[54:55] offset:{16*i}")
    o.label("L_end")
    o("s_endpgm")

    if abl:
        i0 = o.l.index("L_lloop:"); i1 = o.l.index("L_c1:")
        def dropL(x):
            if abl & 1 and ("ds_" in x or x.strip().startswith("v_") or "buffer_" in x): return True
            if abl & 2 and "mfma" in x: return True
            return False
        o.l = o.l[:i0] + [x for x in o.l[i0:i1] if not dropL(x)] + o.l[i1:]
    if cyc: o.l = [x.replace("s_memrealtime", "s_memtime") for x in o.l]
    head = open(f"cdna_kernels/{NAME}.s.ref").read().split("; Override launch")[0]
    return (head + DOC + f"; @launch grid=(256,1,1) block=(512,1,1) lds={LDS_BYTES}\n"
        + '.amdgcn_target "amdgcn-amd-amdhsa--gfx950"\n.text\n'
        + f".globl {NAME}_kernel\n.p2align 8\n.type {NAME}_kernel,@function\n{NAME}_kernel:\n"
        + o.text()
        + f'.section .rodata,"a"\n.p2align 6\n.amdhsa_kernel {NAME}_kernel\n'
        + f"  .amdhsa_next_free_vgpr {NV+64}\n  .amdhsa_next_free_sgpr 100\n  .amdhsa_accum_offset {NV}\n"
        + "  .amdhsa_group_segment_fixed_size 0\n  .amdhsa_kernarg_size 80\n  .amdhsa_user_sgpr_count 2\n"
        + "  .amdhsa_user_sgpr_kernarg_segment_ptr 1\n  .amdhsa_system_sgpr_workgroup_id_x 1\n.end_amdhsa_kernel\n")

if __name__ == "__main__":
    kw = dict(x.split("=") for x in sys.argv[2:])
    kw = {k: val if k == "sched" else int(val) for k, val in kw.items()}
    open(sys.argv[1], "w").write(gen(**kw))
```

```python
import sys, struct, re, math

NAME = "standalone__sequential_behavior_din__recsys"

HIST = 0
SBUF = 65536
WST  = 69632
LIST = 95232
SUMS = 100352
MISC = 110848
OHT  = 111360
LDS_BYTES = OHT + 512
DS = SUMS - LIST
SH = 30
FA, FB = 0xbfd4, 0x3f5f
def f2u(x): return struct.unpack("<I", struct.pack("<f", x))[0]
NLOG2E = f2u(-math.log2(math.e))
NLOG2E_B = f2u(-math.log2(math.e) / 0.87109375)

class Asm:
    def __init__(self): self.l = []
    def __call__(self, *ss):
        for x in ss: self.l.append("    " + x)
    def label(self, s): self.l.append(s + ":")
    def c(self, s): self.l.append("    ; " + s)
    def text(self): return "\n".join(self.l) + "\n"
    def even(self, start):
        short = re.compile(r"\s*(v_exp_f32|v_rcp_f32|v_fmac_f32|v_mul_f32|v_add_f32|v_and_b32) ")
        n4 = [i for i in range(self.l.index(start + ":") + 1, len(self.l))
              if short.match(self.l[i]) or re.match(r"\s*s_(?!mem)", self.l[i])]
        if len(n4) % 2:
            i = [j for j in n4 if short.match(self.l[j])][-1]
            self.l[i] = re.sub(r"(v_\w+) ", r"\1_e64 ", self.l[i], 1)

def v(b, n=1): return f"v{b}" if n == 1 else f"v[{b}:{b+n-1}]"
def a(b, n=1): return f"a{b}" if n == 1 else f"a[{b}:{b+n-1}]"
def s(b, n=1): return f"s{b}" if n == 1 else f"s[{b}:{b+n-1}]"
def m4(d, aa, b, c=0): return f"v_mfma_f32_4x4x4_16b_bf16 {v(d,4)}, {v(aa,2)}, {v(b,2)}, {c}"
def m16(d, aa, b, c): return f"v_mfma_f32_16x16x32_bf16 {v(d,4)}, {v(aa,4)}, {v(b,4)}, {c}"
def weave(main, fill, k=1):
    out, j = [], 0
    for x in main:
        out.append(x); out += fill[j:j+k]; j += k
    return out + fill[j:]

def gen(nt=1, stamps=0, dg=-1, da=0, K=20, dw=0, rel=0, bench=0, pfd=1, p1=1, p2=3, la=3, rp=0,
        vmin=6, abl=0, st=2, bars=0, cyc=0, rot=1, es=1, eb=1, h1=0, mb=0, sv=0, stf=-1):
    stamps = stamps or dg >= 0
    o = Asm()
    NT = " nt" if nt else ""
    ST = ["", " nt", " sc1", " sc0 sc1"][st]
    sV = 3
    sW, sG, sGG, sN = 20, 21, 22, 23
    sM = 24
    sB = 34
    s78, sM0, sK = 40, 41, 42
    sNL, sC0, sNB = 44, 46, 24
    sSRD = 48
    sT0, sT1 = 52, 53
    sINC = 54
    sST = 56
    sPC = 88
    sE, sX = 34, 36
    def stamp(i):
        if bench:
            if i in (4, 5):
                o(f"s_memtime {s(sST+2*i,2)}", f"s_memrealtime {s(sST+2*i-4,2)}")
        elif stamps and not (bars and 7 <= i <= 13) and (stamps == 1 or i in (0, 5, 6, 11)):
            o(f"s_memrealtime {s(sST+2*i,2)}")
    LANE = 1
    NV = 192
    X0, X1, X2, X3, X4, X5 = 22, 23, 24, 25, 26, 27
    VO = 28
    M, INFO, E, POS = 2, 7, 12, 17
    LF = 2
    CE, CO, ALD, AENT, ATR, F0 = 54, 55, 56, 57, 60, 64
    ACC, TR, LE, SOP, SUM = 116, 132, 148, 164, 168
    ASR, CSW, MSK, ENT, B2, AOUT, ACNT, N8 = range(170, 178)
    ASW, OB = 180, 184
    D, T, HF, H, W2, TT, UT, N, OH, AH = 0, 32, 64, 96, 112, 144, 152, 160, 168, 172
    CENT, CSUM, ID, SA, CEN, COH, AOH = 176, 177, 178, 180, 182, 183, 184
    AWW, AWR, AWB, AC2, AB1, TMP = 185, 186, 188, 189, 190, 191
    RW, TB, AU, RW2, AW2, RB1, PID, NID = 32, 56, 2, 6, 7, 8, 12, 14
    UD, TD, SEL = 96, 16, 160

    stamp(0)
    o("s_load_dwordx4 s[8:11], s[0:1], 16",
      "v_lshrrev_b32 v2, 6, v0",
      "s_cmp_ge_u32 s2, 0x100",
      f"v_readfirstlane_b32 {s(sW)}, v2",
      "s_cbranch_scc1 L_end",
      f"v_and_b32 {v(LANE)}, 63, v0")
    if pfd:
        o.c("each wave pulls one 128-byte line of this code into L2")
        o(f"s_getpc_b64 {s(sPC,2)}")
        o.label("L_pc")
        o(f"s_and_b32 {s(sT0)}, s2, 0x38",
          f"s_add_u32 {s(sT0)}, {s(sT0)}, {s(sW)}",
          f"s_lshl_b32 {s(sT0)}, {s(sT0)}, 7",
          f"s_min_u32 {s(sT0)}, {s(sT0)}, L_last-L_pc-64",
          "v_and_b32 v20, 32, v0",
          f"v_lshl_add_u32 v20, v20, 1, {s(sT0)}",
          f"global_load_dword v21, v20, {s(sPC,2)}")
    kargs = ["s_load_dwordx4 s[4:7], s[0:1], 0", "s_load_dwordx8 s[12:19], s[0:1], 32"]
    o(f"s_and_b32 {s(sG)}, {s(sW)}, 3",
      f"s_lshl2_add_u32 {s(sGG)}, s2, {s(sG)}",
      f"s_cmp_lt_u32 {s(sW)}, 4",
      "s_cbranch_scc1 L_l0")
    o.c("==== waves 4-7, first loads ====")
    o.c("a wave stages 16 rows of w1; slot (lane&7) of row d holds chunk 4*half + 2*(ht ^ d1) + sub")
    if rot:
        o(f"s_lshr_b32 {s(sT0)}, s2, 3", f"s_add_u32 {s(sT0)}, {s(sT0)}, {s(sG)}",
          f"s_and_b32 {s(sT0)}, {s(sT0)}, 3", f"s_lshl_b32 {s(sT0)}, {s(sT0)}, 11")
    else:
        o(f"s_lshl_b32 {s(sT0)}, {s(sG)}, 11")
    o(f"v_lshrrev_b32 {v(X2)}, 2, {v(LANE)}",
      f"v_xor_b32 {v(X2)}, {v(X2)}, {v(LANE)}",
      f"v_and_b32 {v(X2)}, 4, {v(X2)}",
      f"v_and_b32 {v(X3)}, 2, {v(LANE)}",
      f"v_and_b32 {v(X0)}, 0x39, {v(LANE)}",
      f"v_lshl_add_u32 {v(X0)}, {v(X0)}, 4, {s(sT0)}",
      f"v_lshl_add_u32 {v(X0)}, {v(X2)}, 3, {v(X0)}",
      f"v_lshl_add_u32 {v(VO)}, {v(X3)}, 5, {v(X0)}")
    for f in range(1, 4): o(f"v_add_u32 {v(VO+f)}, {8192*f}, {v(VO)}")
    o(f"s_add_u32 {s(sT0)}, {s(sT0)}, {WST}",
      f"s_add_u32 m0, {s(sT0)}, 8192",
      f"v_lshrrev_b32 {v(X3)}, 5, {v(LANE)}",
      f"v_and_b32 {v(X4)}, 16, {v(LANE)}",
      f"v_and_b32 {v(X5)}, 15, {v(LANE)}",
      f"s_lshl_b32 {s(sT1)}, {s(sGG)}, 11",
      f"v_lshl_add_u32 {v(X1)}, {v(X5)}, 7, {s(sT1)}",
      f"v_lshl_add_u32 {v(X1)}, {v(X3)}, 6, {v(X1)}",
      f"v_add_u32 {v(X1)}, {v(X4)}, {v(X1)}",
      f"v_lshlrev_b32 {v(AW2)}, 2, {v(LANE)}",
      "s_waitcnt lgkmcnt(0)")
    stamp(1)
    o(*kargs)
    for n, f in ((0, 2), (2, 1), (1, 0)):
        for e in range(2):
            o(f"global_load_dwordx4 {v(RW+12*e+4*n,4)}, {v(VO+f)}, s[10:11] offset:{1024*e}")
    o.c("b1 (lanes 0-31), w2 (lanes 32-63), target fragments, Wd")
    o("s_mov_b32 exec_hi, 0", "s_waitcnt lgkmcnt(0)",
      f"global_load_dword {v(RW2)}, {v(AW2)}, s[12:13]",
      "s_not_b64 exec, exec",
      f"global_load_dword {v(RW2)}, {v(AW2)}, s[14:15] offset:-128",
      "s_mov_b64 exec, -1",
      f"global_load_dwordx4 {v(TB,4)}, {v(X1)}, s[4:5]",
      f"global_load_dwordx4 {v(TB+4,4)}, {v(X1)}, s[4:5] offset:32",
      f"global_load_lds_dwordx4 {v(VO+3)}, s[10:11]",
      f"global_load_lds_dwordx4 {v(VO+3)}, s[10:11] offset:1024",
      "s_branch L_c1")

    o.c("==== waves 0-3: row compaction, gathers, scores, weighted sum ====")
    o.label("L_l0")
    o("s_setprio 3",
      f"s_mul_i32 {s(sT0)}, {s(sGG)}, 640",
      f"v_lshl_add_u32 {v(VO)}, {v(LANE)}, 1, {s(sT0)}",
      f"s_mul_i32 {s(sT0)}, {s(sGG)}, 40960",
      "s_waitcnt lgkmcnt(0)")
    stamp(1)
    for j in range(5): o(f"global_load_ushort {v(M+j)}, {v(VO)}, s[8:9] offset:{128*j}")
    o(*kargs)
    o(f"s_mov_b32 {s(sSRD+2)}, 40960",
      f"s_mov_b32 {s(sSRD+3)}, 0x20000",
      f"s_mul_i32 {s(sB)}, {s(sG)}, 1280",
      f"s_add_u32 {s(sB)}, {s(sB)}, {LIST}",
      f"s_mov_b32 {s(sK)}, 0xff80",
      f"s_lshl_b32 {s(sM0)}, {s(sG)}, 12",
      f"s_mov_b32 m0, {s(sM0)}")
    o.c("pad entries, then (row*128 | sample*8) in the high half")
    for i in range(4): o(f"v_mov_b32 {v(F0+i)}, {s(sK)}")
    o(f"v_lshl_add_u32 {v(F0+4)}, {v(LANE)}, 4, {s(sB)}",
      f"v_lshl_add_u32 {v(F0+5)}, {v(LANE)}, 2, {s(sB)}",
      f"ds_write_b128 {v(F0+4)}, {v(F0,4)}",
      f"ds_write_b32 {v(F0+5)}, {v(F0)} offset:1024",
      f"v_mul_u32_u24 {v(INFO)}, 8414824, {v(LANE)}")
    for j in range(1, 5): o(f"v_add_u32 {v(INFO+j)}, {hex(8414824*64*j)}, {v(INFO)}")
    o(f"v_lshrrev_b32 {v(X1)}, 3, {v(LANE)}",
      f"v_and_b32 {v(X2)}, 7, {v(LANE)}",
      f"v_lshlrev_b32 {v(ALD)}, 4, {v(X1)}",
      f"v_subrev_u32 {v(ALD)}, 0x400, {v(ALD)}",
      f"s_add_u32 {s(sV)}, {s(sB)}, {128*vmin}",
      f"v_and_b32 {v(CE)}, 6, {v(X1)}",
      f"v_xor_b32 {v(CE)}, {v(CE)}, {v(X2)}",
      f"v_lshlrev_b32 {v(CE)}, 4, {v(CE)}",
      f"v_xor_b32 {v(CO)}, 16, {v(CE)}",
      f"v_and_b32 {v(X1)}, 3, {v(X1)}",
      f"v_lshl_add_u32 {v(AENT)}, {v(X2)}, 2, {v(X1)}",
      f"s_lshl2_add_u32 {s(sT1)}, {s(sG)}, {MISC+256}",
      f"v_mov_b32 {v(ACNT)}, {s(sT1)}")
    o.c("one-hot operand table")
    o(f"v_and_b32 {v(VO)}, 3, {v(LANE)}",
      f"v_lshlrev_b32 {v(X1)}, 4, {v(VO)}",
      f"v_mov_b32 {v(F0+6)}, {hex(FB)}",
      f"v_mov_b32 {v(F0+7)}, 0",
      f"v_lshlrev_b64 {v(F0+6,2)}, {v(X1)}, {v(F0+6,2)}",
      f"v_mov_b64 {v(F0+8,2)}, 0",
      f"v_mov_b64 {v(F0+10,2)}, 0",
      f"v_mov_b32 {v(MSK)}, 0",
      f"v_lshlrev_b32 {v(X1)}, 4, {v(LANE)}",
      f"v_add_u32 {v(X1)}, {OHT}, {v(X1)}",
      "s_mov_b32 exec_hi, 0",
      "s_mov_b32 exec_lo, 0x0f00000f",
      f"v_mov_b64 {v(F0+8,2)}, {v(F0+6,2)}",
      "s_lshl_b32 exec_lo, exec_lo, 4",
      f"v_mov_b64 {v(F0+10,2)}, {v(F0+6,2)}",
      "s_mov_b32 exec_lo, -1",
      f"ds_write_b128 {v(X1)}, {v(F0+8,4)}",
      "s_mov_b32 exec_hi, -1",
      "s_waitcnt lgkmcnt(0)",
      f"s_add_u32 {s(sSRD)}, s6, {s(sT0)}",
      f"s_addc_u32 {s(sSRD+1)}, s7, 0")
    def dma_tile(le, rng=range(4)):
        for i in rng:
            o(f"v_and_or_b32 {v(le+i)}, {v(le+i)}, {s(sK)}, {v(CO if i & 1 else CE)}",
              f"buffer_load_dwordx4 {v(le+i)}, {s(sSRD,4)}, 0 offen{NT} lds",
              f"s_add_u32 m0, m0, {hex(0x400 if i < 3 else 0x3400)}")
    issued = [1]
    def dma_point(pt):
        for k, pk in ((1, p1), (2, p2))[:la-1]:
            if pk == pt:
                assert issued[0] == k
                dma_tile(LE+4*k, range(h1 if k == 1 else 0, 4)); issued[0] += 1
    stamp(7)
    o("s_waitcnt vmcnt(0)")
    stamp(2)
    for j in range(5): o(f"v_cmp_ne_u32_e64 {s(sM+2*j,2)}, 0, {v(M+j)}")
    for j in range(5):
        o(f"s_mov_b64 exec, {s(sM+2*j,2)}",
          f"v_mbcnt_lo_u32_b32 {v(POS+j)}, {s(sM+2*j)}, 0",
          f"v_mbcnt_hi_u32_b32 {v(POS+j)}, {s(sM+2*j+1)}, {v(POS+j)}",
          f"v_alignbit_b32 {v(E+j)}, {v(M+j)}, {v(INFO+j)}, 16",
          f"v_lshl_add_u32 {v(POS+j)}, {v(POS+j)}, 2, {s(sB+j)}",
          f"ds_write_b32 {v(POS+j)}, {v(E+j)}",
          f"s_bcnt1_i32_b64 {s(sT0)}, {s(sM+2*j,2)}",
          f"s_lshl2_add_u32 {s(sB+j+1 if j < 4 else sT0)}, {s(sT0)}, {s(sB+j)}")
    o.c("tiles are taken last to first; V = max(tiles, %d) steps, the leading ones empty" % vmin)
    o(f"s_add_u32 {s(sT0)}, {s(sT0)}, 124",
      f"s_and_b32 {s(sT0)}, {s(sT0)}, 0xffffff80")
    if bench: o(f"s_add_u32 {s(sT0)}, {s(sB)}, {128*bench}")
    o(f"s_max_u32 {s(sT1)}, {s(sT0)}, {s(sV)}",
      "s_mov_b64 exec, -1",
      f"v_add_u32 {v(ALD)}, {s(sT1)}, {v(ALD)}")
    for i in range(la): o(f"ds_read_b128 {v(LE+4*i,4)}, {v(ALD)} offset:{896-128*i}")
    o(f"global_load_ushort {v(B2)}, {v(MSK)}, s[16:17]",
      f"s_sub_u32 {s(sT0)}, {s(sT0)}, {s(sB)}",
      f"s_lshr_b32 {s(sN)}, {s(sT0)}, 7",
      f"s_max_u32 {s(sV)}, {s(sN)}, {vmin}",
      f"s_sub_u32 {s(sT1)}, {s(sT1)}, 1024",
      f"v_mov_b32 {v(SUM)}, {s(sN)}",
      f"v_lshl_add_u32 {v(AENT)}, {v(AENT)}, 2, {s(sT1)}",
      f"s_waitcnt lgkmcnt({la-1})")
    dma_tile(LE)
    stamp(8)
    def refill_read():
        for i in range(4): o(f"ds_read_b128 {v(LF+4*i,4)}, {v(ALD)} offset:{896-128*la-128*i}")
    def refill_calc():
        for i in range(16): o(f"v_and_or_b32 {v(LF+i)}, {v(LF+i)}, {s(sK)}, {v(CO if i & 1 else CE)}")
    o(f"ds_write_b32 {v(ACNT)}, {v(SUM)}")
    refill_read()
    o(f"ds_read_b32 {v(ENT)}, {v(AENT)} offset:896",
      "s_waitcnt lgkmcnt(6)")
    dma_tile(LE+4, range(h1))
    dma_point(0)
    o("s_setprio 0", "s_waitcnt lgkmcnt(0)")
    stamp(3)
    o("s_barrier")
    stamp(14)
    dma_point(1)
    stamp(9)
    refill_calc()
    o.c("transposed fragments (row' = lane>>2), output offset, score matrix [kk][q][sample][4]")
    o(f"v_lshrrev_b32 {v(X4)}, 5, {v(LANE)}",
      f"v_lshrrev_b32 {v(X1)}, 2, {v(LANE)}",
      f"v_and_or_b32 {v(X2)}, {v(X1)}, 6, {v(X4)}",
      f"v_lshlrev_b32 {v(X2)}, 4, {v(X2)}",
      f"v_lshlrev_b32 {v(VO+3)}, 3, {v(VO)}",
      f"v_xor_b32 {v(X2)}, {v(X2)}, {v(VO+3)}",
      f"v_lshl_add_u32 {v(ATR)}, {v(X1)}, 7, {v(X2)}",
      f"v_add_u32 {v(ATR)}, {s(sM0)}, {v(ATR)}")
    for k in range(1, 4): o(f"v_xor_b32 {v(ATR+k)}, {32*k}, {v(ATR)}")
    for i in range(0, 16, 2): o(f"v_mov_b64 {v(ACC+i,2)}, 0")
    o(f"s_lshl_b32 {s(sT1)}, {s(sGG)}, 11",
      f"v_and_b32 {v(X0)}, 15, {v(LANE)}",
      f"v_lshl_add_u32 {v(AOUT)}, {v(X0)}, 7, {s(sT1)}",
      f"v_lshl_add_u32 {v(AOUT)}, {v(X4)}, 4, {v(AOUT)}",
      f"v_and_b32 {v(X2)}, 16, {v(LANE)}",
      f"v_lshl_add_u32 {v(AOUT)}, {v(X2)}, 1, {v(AOUT)}",
      f"s_lshl_b32 {s(sT0)}, {s(sG)}, 10",
      f"s_add_u32 {s(sT0)}, {s(sT0)}, {SBUF}",
      f"v_lshl_add_u32 {v(ASR)}, {v(LANE)}, 3, {s(sT0)}",
      f"v_and_b32 {v(CSW)}, 7, {v(X1)}",
      f"v_lshl_add_u32 {v(CSW)}, {v(CSW)}, 7, {s(sT0)}",
      f"v_lshl_add_u32 {v(CSW)}, {v(VO)}, 1, {v(CSW)}",
      f"ds_write2st64_b64 {v(ASR)}, {v(ACC,2)}, {v(ACC,2)} offset1:1",
      f"s_mov_b32 {s(sC0)}, {hex(f2u(2.0**-SH))}",
      f"s_movk_i32 {s(s78)}, 0x78",
      f"v_lshlrev_b32 {v(N8)}, 3, {v(X0)}",
      f"v_and_or_b32 {v(ASW)}, {v(ENT)}, {s(s78)}, {v(CSW)}",
      f"s_mov_b64 {s(sX,2)}, -1",
      f"s_cmp_gt_u32 {s(sN)}, {es}",
      f"s_cselect_b32 {s(sE)}, 2, -1")
    stamp(10)
    o(f"s_waitcnt vmcnt({4*(issued[0]-1)})",
      f"v_lshlrev_b32 {v(B2)}, 16, {v(B2)}")
    dma_point(2)
    stamp(12)
    o("s_barrier")
    stamp(13)
    dma_point(3)
    if bench: o("s_waitcnt vmcnt(0)", "s_barrier")
    stamp(4)
    o(f"s_cmp_eq_u32 {s(sN)}, 0",
      f"s_mov_b32 {s(sN)}, {s(sV)}",
      "s_cbranch_scc1 L_store",
      f"s_waitcnt vmcnt({4*(issued[0]-2)})")
    dma_point(4)
    assert issued[0] == la
    if bars == 2: o(f"s_memrealtime {s(sST+14,2)}")
    o("s_barrier")
    if bars == 1: o(f"s_memrealtime {s(sST+14,2)}")
    def refill(k, tag):
        o(f"s_add_u32 m0, {s(sM0)}, {16384*((k+la) % 4)}",
          f"s_cmp_gt_u32 {s(sN)}, {k+la}",
          f"s_cbranch_scc0 L_{tag}{k}")
        for i in range(4):
            o(f"buffer_load_dwordx4 {v(LF+4*k+i)}, {s(sSRD,4)}, 0 offen{NT} lds")
            if i < 3: o("s_add_u32 m0, m0, 0x400", "s_nop 0")
    def store(first, ST=ST):
        for h_ in range(2):
            o(*[f"v_cvt_pk_bf16_f32 {v(OB+4*h_+i)}, {v(ACC+8*h_+2*i)}, {v(ACC+8*h_+2*i+1)}" for i in (0, 2, 1, 3)])
            o(first if h_ == 0 else "s_nop 0",
              f"v_permlane16_swap_b32 {v(OB+4*h_)}, {v(OB+4*h_+2)}",
              f"v_permlane16_swap_b32 {v(OB+4*h_+1)}, {v(OB+4*h_+3)}",
              f"global_store_dwordx4 {v(AOUT)}, {v(OB+4*h_,4)}, s[18:19] offset:{64*h_}{ST}")
    if rp: refill(0, "lf")
    o("s_branch L_lf0")
    o.label("L_lloop")
    for k in range(4):
        if bars == 2: o(f"s_memrealtime {s(sST+2*(11 if k == 0 else 7+k),2)}")
        o("s_barrier")
        if bars == 1: o(f"s_memrealtime {s(sST+2*(11 if k == 0 else 7+k),2)}")
        aw = ASW + ((k+1) & 1)
        o(f"ds_read_b32 {v(SUM)}, {v(AENT)} offset:{DS+896-128*(k-1)}",
          f"ds_read_b32 {v(SUM+1)}, {v(AENT)} offset:{DS+5120+896-128*(k-1)}",
          f"ds_read_b32 {v(ENT)}, {v(AENT)} offset:{896-128*k}")
        if rp:
            refill(k, "nr"); o.label(f"L_nr{k}")
        o(f"s_cmp_eq_u32 {s(sN)}, {k}",
          "s_setprio 3",
          "s_waitcnt lgkmcnt(1)",
          f"v_add_f32 {v(SUM)}, {v(SUM)}, {v(SUM+1)}",
          f"v_fma_f32 {v(SUM)}, {v(SUM)}, {s(sC0)}, {v(B2)}",
          f"v_mul_legacy_f32 {v(SUM)}, {v(SUM)}, {v(MSK)}",
          f"v_cvt_pk_bf16_f32 {v(SUM)}, {v(SUM)}, {v(SUM)}",
          f"ds_write_b16 {v(aw)}, {v(SUM)}",
          f"ds_read2st64_b64 {v(SOP,4)}, {v(ASR)} offset1:1",
          f"ds_write_b16 {v(aw)}, {v(MSK)}",
          "s_waitcnt lgkmcnt(3)",
          f"v_and_or_b32 {v(ASW + (k & 1))}, {v(ENT)}, {s(s78)}, {v(CSW)}",
          *(["s_setprio 0"] if not mb else []),
          "s_waitcnt lgkmcnt(1)")
        o(*[m16(ACC+4*jj, TR+4*jj, SOP, v(ACC+4*jj,4)) for jj in range(4)])
        if mb: o("s_setprio 0")
        if k == 2:
            o("s_cbranch_scc0 L_lf2")
            o.label("L_store")
            stamp(5)
            o("s_nop 3")
            store(f"s_mov_b64 exec, {s(sX,2)}", ST if stf < 0 else ["", " nt", " sc1", " sc0 sc1"][stf])
            o("s_branch L_fin" if stamps else "s_endpgm")
        else:
            o("s_cbranch_scc1 L_store")
        o.label(f"L_lf{k}")
        o(f"ds_read_u16_d16_hi {v(MSK)}, {v(AENT)} offset:{896-128*k+2}")
        for jj in range(4):
            for kk in range(2): o(f"ds_read_b64_tr_b16 {v(TR+4*jj+2*kk,2)}, {v(ATR+jj)} offset:{16384*k+2048*kk}")
        if rp: o(f"s_cmp_gt_u32 {s(sN)}, {k+la}", f"s_cbranch_scc0 L_nf{k}")
        else: refill(k, "nf")
        o(f"s_waitcnt vmcnt({4*(la-2)})",
          f"s_branch L_nx{k}")
        if es and k == 2 - es:
            o.c("samples above the highest one still to come are final: store them now")
            o.label("L_early")
            if eb: o("s_setprio 3")
            o(f"v_readlane_b32 {s(sT0)}, {v(ENT)}, 31",
              "s_nop 0",
              f"s_and_b32 {s(sT0)}, {s(sT0)}, 0x78",
              f"v_cmp_ge_u32_e64 {s(sX,2)}, {s(sT0)}, {v(N8)}")
            store(f"s_not_b64 exec, {s(sX,2)}")
            o("s_setprio 0", "s_mov_b64 exec, -1", f"s_branch L_nx{k}")
        o.label(f"L_nf{k}")
        if es and k == 2 - es:
            o(f"s_cmp_eq_u32 {s(sN)}, {s(sE)}",
              "s_cbranch_scc1 L_early")
        o(f"s_cmp_le_u32 {s(sN)}, {k+2}",
          f"s_cbranch_scc1 L_nx{k}",
          "s_waitcnt vmcnt(0)")
        o.label(f"L_nx{k}")
    if bars:
        o("s_waitcnt lgkmcnt(0)", f"s_mov_b64 {s(sST+24,2)}, {s(sST+16,2)}", f"s_mov_b64 {s(sST+26,2)}, {s(sST+18,2)}")
    o(f"s_sub_u32 {s(sN)}, {s(sN)}, 4",
      f"v_subrev_u32 {v(AENT)}, 0x200, {v(AENT)}",
      f"s_cmp_gt_u32 {s(sN)}, {la}",
      "s_cbranch_scc0 L_lloop",
      f"v_subrev_u32 {v(ALD)}, 0x200, {v(ALD)}")
    refill_read()
    o("s_waitcnt lgkmcnt(0)")
    refill_calc()
    o("s_branch L_lloop")

    o.c("==== waves 4-7: weight staging, per-sample terms, then the activation unit ====")
    o.label("L_c1")
    o(f"v_lshl_add_u32 {v(AWW)}, {v(LANE)}, 4, {s(sT0)}",
      f"v_xor_b32 {v(AWB)}, 16, {v(AWW)}",
      f"v_and_b32 {v(X0)}, 3, {v(LANE)}",
      f"v_lshlrev_b32 {v(X1)}, 4, {v(X0)}")
    o.c("4x4 identity, its negative, and the history factor of -log2(e)")
    o(f"v_mov_b32 {v(ID)}, 1",
      f"v_mov_b32 {v(ID+1)}, 0",
      f"v_lshlrev_b64 {v(ID,2)}, {v(X1)}, {v(ID,2)}",
      f"v_mul_u32_u24 {v(PID)}, 0x3f80, {v(ID)}",
      f"v_mul_u32_u24 {v(PID+1)}, 0x3f80, {v(ID+1)}",
      f"v_mul_u32_u24 {v(NID)}, 0xbf80, {v(ID)}",
      f"v_mul_u32_u24 {v(NID+1)}, 0xbf80, {v(ID+1)}",
      f"v_mul_u32_u24 {v(ID)}, {hex(FA)}, {v(ID)}",
      f"v_mul_u32_u24 {v(ID+1)}, {hex(FA)}, {v(ID+1)}",
      f"s_mov_b32 {s(sNL)}, {hex(NLOG2E)}",
      f"s_mov_b32 {s(sNL+1)}, {hex(NLOG2E)}",
      f"s_mov_b32 {s(sNB)}, {hex(NLOG2E_B)}",
      f"s_mov_b32 {s(sNB+1)}, {hex(NLOG2E_B)}",
      f"s_mov_b32 {s(sC0)}, {hex(f2u(2.0**-SH))}",
      f"s_mov_b32 {s(sC0+1)}, {hex(f2u(2.0**-SH))}",
      f"s_movk_i32 {s(s78)}, 0x78")
    o.c("staging read address (32*half + r)*128 + (r>>1)*64 + (c&1)*32 + sub*16 + (c>>1)*8")
    o(f"v_bfe_u32 {v(X1)}, {v(LANE)}, 2, 2",
      f"v_lshrrev_b32 {v(X2)}, 1, {v(X1)}",
      f"v_lshl_add_u32 {v(X1)}, {v(X1)}, 1, {v(X2)}",
      f"v_lshl_add_u32 {v(X1)}, {v(X1)}, 6, {v(X4)}",
      f"v_add_u32 {v(X1)}, {WST}, {v(X1)}",
      f"v_lshl_add_u32 {v(AWR)}, {v(X3)}, 12, {v(X1)}",
      f"v_and_b32 {v(X1)}, 1, {v(LANE)}",
      f"v_lshl_add_u32 {v(AWR)}, {v(X1)}, 5, {v(AWR)}",
      f"v_and_b32 {v(X1)}, 2, {v(LANE)}",
      f"v_lshl_add_u32 {v(AWR)}, {v(X1)}, 2, {v(AWR)}",
      f"v_xor_b32 {v(AWR+1)}, 64, {v(AWR)}",
      f"v_lshl_add_u32 {v(AU)}, {v(X4)}, 6, {v(AWR)}",
      f"v_xor_b32 {v(AU+1)}, 16, {v(AU)}",
      f"v_xor_b32 {v(AU+2)}, 64, {v(AU)}",
      f"v_xor_b32 {v(AU+3)}, 0x50, {v(AU)}")
    o.c("b1 column h = 32*n2 + 4*n3 + c, w2, tile count, one-hot table")
    o(f"s_mov_b32 {s(sT1)}, {MISC}",
      f"v_lshl_add_u32 {v(AB1)}, {v(X2)}, 2, {v(X0)}",
      f"v_and_b32 {v(X1)}, 4, {v(LANE)}",
      f"v_lshl_add_u32 {v(AB1)}, {v(X1)}, 3, {v(AB1)}",
      f"v_lshl_add_u32 {v(AB1)}, {v(AB1)}, 1, {s(sT1)}",
      f"v_lshl_add_u32 {v(AC2)}, {v(X3)}, 6, {s(sT1)}",
      f"v_add_u32 {v(VO+1)}, {s(sT1)}, {v(AW2)}",
      f"v_lshl_add_u32 {v(COH)}, {v(X3)}, 8, {s(sT1)}",
      f"s_lshl2_add_u32 {s(sT1)}, {s(sG)}, {s(sT1)}",
      f"v_mov_b32 {v(VO+2)}, {s(sT1)}",
      f"v_mov_b64 {v(RB1,2)}, 0",
      f"v_mov_b64 {v(RB1+2,2)}, 0")
    o.c("selection operands that transpose the target tile")
    o(*[f"v_mov_b64 {v(SEL+2*i,2)}, 0" for i in range(4)])
    o("s_mov_b32 exec_lo, 15", "s_movk_i32 exec_hi, 0xf0")
    for i in range(4):
        o(f"v_mov_b64 {v(SEL+2*i,2)}, {v(PID,2)}", "s_lshl_b64 exec, exec, 8" if i < 3 else "s_mov_b64 exec, -1")
    o.c("entry, row-sum and fragment addresses")
    o(f"s_mul_i32 {s(sT0)}, {s(sG)}, 1280",
      f"s_add_u32 {s(sT0)}, {s(sT0)}, {LIST-256}",
      f"v_lshrrev_b32 {v(X1)}, 3, {v(LANE)}",
      f"v_and_b32 {v(X2)}, 7, {v(LANE)}",
      f"v_and_b32 {v(X0)}, 3, {v(X1)}",
      f"v_lshl_add_u32 {v(X2)}, {v(X2)}, 2, {v(X0)}",
      f"v_lshl_add_u32 {v(CENT)}, {v(X2)}, 2, {s(sT0)}",
      f"v_mul_u32_u24 {v(CSUM)}, 5120, {v(X3)}",
      f"s_movk_i32 {s(sINC)}, 0xff80",
      f"s_movk_i32 {s(sINC+1)}, 0xff7f",
      f"v_and_b32 {v(X1)}, 5, {v(X1)}",
      f"v_and_b32 {v(X2)}, 6, {v(LANE)}",
      f"v_xor_b32 {v(X1)}, {v(X1)}, {v(X2)}",
      f"v_and_b32 {v(X2)}, 31, {v(LANE)}",
      f"s_lshl_b32 {s(sT0)}, {s(sG)}, 12",
      f"v_lshl_add_u32 {v(X2)}, {v(X2)}, 7, {s(sT0)}",
      f"v_lshl_add_u32 {v(AH)}, {v(X1)}, 4, {v(X2)}")
    for k in range(1, 4): o(f"v_xor_b32 {v(AH+k)}, {16*k}, {v(AH)}")
    stamp(7)
    o("s_waitcnt vmcnt(10)")
    stamp(2)
    fr = lambda mat, e: HF+16*mat+8*e
    ini = lambda mat: [m4(fr(mat,e)+4*i, NID if mat else PID, RW+12*e+2*i) for e in range(2) for i in range(2)]
    acc = lambda mat: [m4(fr(mat,e)+4*i, PID, RW+12*e+4+4*mat+2*i, v(fr(mat,e)+4*i,4)) for e in range(2) for i in range(2)]
    def pack(mat, e):
        f = fr(mat, e)
        return ([f"v_pk_mul_f32 {v(f+2*i,2)}, {v(f+2*i,2)}, {s(sNB if mat else sNL,2)}" for i in range(4)]
                + [f"v_cvt_pk_bf16_f32 {v(f+i)}, {v(f+2*i)}, {v(f+2*i+1)}" for i in range(4)]
                + [f"ds_write_b128 {v(AWB if mat and e else AWW)}, {v(f,4)} offset:{16384*mat+1024*e}"])
    o(*ini(1), *ini(0), "s_waitcnt vmcnt(8)", *acc(1), "s_waitcnt vmcnt(6)", *acc(0))
    o(*pack(1, 0), *pack(1, 1), *pack(0, 0), *pack(0, 1))
    o("s_setprio 2", "s_waitcnt lgkmcnt(0)")
    stamp(3)
    o("s_barrier")
    stamp(14)
    def wfrag(mat, ht, ks): return 32*ht + 16*mat + 4*ks
    def wreads(mat):
        return [f"ds_read_b64_tr_b16 {a(wfrag(mat,ht,ks)+2*kk,2)}, {v(AWR+ht)} offset:{8192*mat+1024*ks+512*kk}"
                for ht in range(2) for ks in range(4) for kk in range(2)]
    rdH = lambda k: f"ds_read_b128 {v(H+4*k,4)}, {v(AH+k)}"
    rdOH = f"ds_read_b128 {v(OH,4)}, {v(AOH)} offset:{OHT-MISC}"
    bumpH = lambda k: f"v_add_u16 {v(AH+k)}, 0x4000, {v(AH+k)}"
    dec1 = f"v_and_b32 {v(CEN)}, {s(s78)}, {v(CEN)}"
    dec2 = f"v_lshl_add_u32 {v(AOH)}, {v(CEN)}, 1, {v(COH)}"
    MU = lambda ht: f"v_mfma_f32_32x32x16_bf16 {v(D+16*ht,16)}, {v(UT+4*ht,4)}, {v(OH,4)}, 0"
    MG = lambda dt: f"v_mfma_f32_32x32x16_bf16 {v(T+16*dt,16)}, {v(TT+4*dt,4)}, {v(OH,4)}, 0"
    o.c("per-sample bias u = t @ (Wb - Wc) + b1 and t itself as [feature][sample] operands")
    ur = [f"ds_read_b64_tr_b16 {v(HF+16*ks+4*t+2*kk,2)}, {v(AU+t)} offset:{16384+2048*ks+512*kk}"
          for ks in range(2) for t in range(4) for kk in range(2)]
    wa, wd = wreads(0), wreads(1)
    o(f"ds_read_b32 {v(X2)}, {v(VO+2)} offset:256", *ur[:8])
    o("s_waitcnt vmcnt(4)",
      f"ds_write_b32 {v(VO+1)}, {v(RW2)}")
    for t in range(4): o(f"ds_read_u16_d16_hi {v(RB1+t)}, {v(AB1)} offset:{16*t}")
    o("s_waitcnt lgkmcnt(13)",
      f"v_lshl_add_u32 {v(CENT)}, {v(X2)}, 7, {v(CENT)}",
      f"v_readfirstlane_b32 {s(sN)}, {v(X2)}",
      f"ds_read_b32 {v(TMP)}, {v(CENT)} offset:128",
      f"ds_read_b32 {v(CEN)}, {v(CENT)}")
    for i in range(4): o(f"ds_read_b128 {v(RW+4*i,4)}, {v(AC2)} offset:{128+16*i}")
    o(*ur[8:])
    o(f"v_add_u32 {v(CSUM)}, {v(CSUM)}, {v(CENT)}",
      f"s_max_u32 {s(sV)}, {s(sN)}, {vmin}",
      f"s_sub_u32 {s(sV)}, {s(sV)}, {s(sN)}",
      f"s_lshl_b32 {s(sT0)}, {s(sV)}, 14",
      "s_waitcnt lgkmcnt(8)",
      f"v_and_b32 {v(TMP)}, {s(s78)}, {v(TMP)}",
      f"v_lshl_add_u32 {v(AOH)}, {v(TMP)}, 1, {v(COH)}",
      rdOH)
    o(*wa[:6])
    o(*weave([m4(W2+4*i, PID, RW+2*i) for i in range(8)], [f"v_mul_f32 {v(UD+i)}, {s(sNB)}, {v(RB1+i//4)}" for i in range(16)], 2))
    o(*wa[6:])
    o(dec1, dec2, *[f"v_add_u16 {v(AH+i)}, {s(sT0)}, {v(AH+i)}" for i in range(4)])
    o("s_waitcnt vmcnt(2) lgkmcnt(15)")
    stamp(9)
    um = lambda ks, t: m16(UD+4*t, TB+4*ks, HF+16*ks+4*t, v(UD+4*t,4))
    cvp = lambda dst, src, t: [f"v_cvt_pk_bf16_f32 {v(dst+2*t+i)}, {v(src+4*t+2*i)}, {v(src+4*t+2*i+1)}" for i in range(2)]
    swp = lambda r: [f"v_permlane16_swap_b32 {v(r+i)}, {v(r+2+i)}" for i in range(2)]
    o(*[m16(TD+4*t, TB+4*(t>>1), SEL+4*(t&1), 0) for t in range(4)])
    o(um(0,0), um(0,1), um(1,0), um(1,1), um(0,2), *cvp(TT,TD,0), um(0,3), *cvp(TT,TD,1))
    o(um(1,2), *cvp(TT,TD,2), um(1,3), *cvp(TT,TD,3))
    o(*swp(TT), *cvp(UT,UD,0), MG(0), *swp(TT+4), *cvp(UT,UD,1))
    o(MG(1), *cvp(UT,UD,2), *swp(UT), *cvp(UT,UD,3), MU(0), f"s_sub_u32 {s(sN)}, {s(sN)}, 1", *swp(UT+4))
    o("s_waitcnt vmcnt(0)", "s_cbranch_scc1 L_cexit", MU(1))
    stamp(12)
    if bench: o("s_barrier")
    o.label("L_skip")
    o(f"s_sub_u32 {s(sV)}, {s(sV)}, 1",
      "s_barrier",
      "s_cbranch_scc0 L_skip")
    stamp(13)
    stamp(4)

    def MM(ht, ks):
        b = H+4*ks if ks < 4 else HF+4*(ks-4)
        return f"v_mfma_f32_32x32x16_bf16 {v(D+16*ht,16)}, {a(wfrag(ks//4,ht,ks%4),4)}, {v(b,4)}, {v(D+16*ht,16)}"
    ex = lambda ht, i: f"v_exp_f32 {v(D+16*ht+i)}, {v(D+16*ht+i)}"
    p = lambda b: v(b, 2)
    pf = lambda i: f"v_fma_f32 {v(D+i)}, {v(D+i)}, {s(sC0)}, {s(sC0)} clamp"
    def tree(ht, first=0):
        r, w = D+16*ht, W2+16*ht
        out = [f"v_pk_fma_f32 {p(r+2*i)}, {p(r+2*i)}, {s(sC0,2)}, {s(sC0,2)} clamp" for i in range(first, 8)]
        for g in range(4):
            x, y = r+4*g, r+4*g+2
            out += [f"v_pk_mul_f32 {p(N+2*g)}, {p(w+4*g)}, {p(y)}",
                    f"v_pk_fma_f32 {p(N+2*g)}, {p(w+4*g+2)}, {p(x)}, {p(N+2*g)}",
                    f"v_pk_mul_f32 {p(x)}, {p(x)}, {p(y)}"]
        for g in range(2):
            x, y = r+8*g, r+8*g+4
            out += [f"v_pk_mul_f32 {p(N+4*g)}, {p(N+4*g)}, {p(y)}",
                    f"v_pk_fma_f32 {p(N+4*g)}, {p(N+4*g+2)}, {p(x)}, {p(N+4*g)}",
                    f"v_pk_mul_f32 {p(N+4*g+2)}, {p(x)}, {p(y)}"]
        return out
    rc = lambda i: f"v_rcp_f32 {v(N+4*(i//2)+2+i%2)}, {v(N+4*(i//2)+2+i%2)}"
    fm = lambda i, op="fmac": f"v_{op}_f32 {v(SA)}, {v(N+4*(i//2)+i%2)}, {v(N+4*(i//2)+2+i%2)}"
    cv = lambda j: f"v_cvt_pk_bf16_f32 {v(HF+j)}, {v(HF+2*j)}, {v(HF+2*j+1)}"
    sumw = lambda off: f"ds_write_b32 {v(CSUM)}, {v(SA)} offset:{DS+off}"

    o.c("---- pipeline fill: first hidden half of the first tile ----")
    o(*[rdH(k) for k in range(4)], *wd[:8])
    o(*[bumpH(k) for k in range(4)])
    for k in range(4):
        o(f"s_waitcnt lgkmcnt({11-k})", m4(HF+8*k, ID, H+4*k), m4(HF+8*k+4, ID, H+4*k+2))
    prod = []
    for k in range(4):
        prod += [f"v_mul_f32 {v(HF+8*k+i)}, {v(HF+8*k+i)}, {v(T+8*k+i)}" for i in range(8)]
        prod += [cv(4*k+i) for i in range(4)]
    cut = [0, 7, 14, 21, 28, 36, 42, 48]
    for ks in range(7):
        if ks == 4: o("s_waitcnt lgkmcnt(8)")
        o(MM(0, ks), *(wd[8+2*ks:10+2*ks] if ks < 4 else []), *prod[cut[ks]:cut[ks+1]])
    o("s_waitcnt lgkmcnt(0)", "s_nop 0", MM(0, 7))

    o.c("---- tile loop: second hidden half of tile i, first half of tile i+1 ----")
    o(".p2align 3")
    o.label("L_alpha")
    o(f"v_lshl_add_u64 {p(CENT)}, {p(CENT)}, 0, {s(sINC,2)}")
    o(MM(1,0), rdOH, rc(0), rc(1), rc(2))
    o(MM(1,1), f"s_sub_u32 {s(sN)}, {s(sN)}, 1", rc(3), fm(0), fm(1), fm(2), fm(3))
    o(MM(1,2), sumw(384), ex(0,0), ex(0,1))
    o(MM(1,3), f"ds_read_b32 {v(CEN)}, {v(CENT)}", ex(0,2), ex(0,3), pf(0))
    o(MM(1,4), "s_waitcnt lgkmcnt(1)", "s_barrier", rdH(0), rdH(1), ex(0,4))
    o(MM(1,5), rdH(2), rdH(3), ex(0,5), ex(0,6))
    o(MM(1,6), ex(0,7), ex(0,8), pf(1), bumpH(0))
    un = [m4(HF+4*k, ID, H+2*k) for k in range(8)]
    P = lambda x, y: [pf(i) for i in range(x, y)]
    if sv == 0:
        o(MM(1,7), "s_cbranch_scc1 L_drain", ex(0,9), ex(0,10), ex(0,11))
        o(MG(0), ex(0,12), ex(0,13), ex(0,14))
        o(MG(1), "s_waitcnt lgkmcnt(0)", ex(0,15), bumpH(1), bumpH(2), bumpH(3), dec1)
        o(*weave(un, [dec2] + P(2, 8) + [ex(1,0), ex(1,1)])); npf = 8
    elif sv == 1:
        o(MM(1,7), "s_cbranch_scc1 L_drain", ex(0,9), ex(0,10), ex(0,11))
        o(MG(0), ex(0,12), ex(0,13), ex(0,14), *P(2, 6))
        o(MG(1), "s_waitcnt lgkmcnt(0)", ex(0,15), bumpH(1), bumpH(2), bumpH(3), dec1, *P(6, 10))
        o(*weave(un, [dec2] + P(10, 16) + [ex(1,0), ex(1,1)])); npf = 16
    elif sv == 2:
        o(MM(1,7), "s_cbranch_scc1 L_drain", ex(0,9), ex(0,10), ex(0,11))
        o(MG(0), ex(0,12), ex(0,13), ex(0,14))
        o(MG(1), "s_waitcnt lgkmcnt(0)", ex(0,15), bumpH(1), bumpH(2), bumpH(3), dec1, *P(2, 10))
        o(*weave(un, [dec2] + P(10, 16) + [ex(1,0), ex(1,1)])); npf = 16
    elif sv == 3:
        o(MM(1,7), "s_cbranch_scc1 L_drain", ex(0,9), ex(0,10), ex(0,11))
        o(MG(0), ex(0,12), ex(0,13), ex(0,14))
        o(MG(1), "s_waitcnt lgkmcnt(0)", ex(0,15), bumpH(1), bumpH(2), bumpH(3), dec1)
        o(*weave(un, [dec2] + P(2, 8) + [ex(1,0), ex(1,1)]), *P(8, 16)); npf = 16
    elif sv == 4:
        o(MM(1,7), "s_cbranch_scc1 L_drain", ex(0,9), ex(0,10), ex(0,11))
        o(MG(0), ex(0,12), ex(0,13), ex(0,14))
        o(MG(1), "s_waitcnt lgkmcnt(0)", ex(0,15), bumpH(1), bumpH(2), bumpH(3), dec1, *P(2, 6))
        o(*weave(un, [dec2] + P(6, 12) + [ex(1,0), ex(1,1)])); npf = 12
    o.even("L_alpha")
    o(*tree(0, npf//2))
    for i in range(16): o(f"v_pk_mul_f32 {p(HF+2*i)}, {p(HF+2*i)}, {p(T+2*i)}")
    o(MU(0), *[cv(j) for j in range(6)])
    o(MM(0,0), *[cv(j) for j in range(6, 12)])
    o(MM(0,1), *[cv(j) for j in range(12, 16)], rc(0))
    o(MM(0,2), rc(1), rc(2), rc(3))
    o(MM(0,3), fm(0, "mul"), fm(1), ex(1,2), ex(1,3))
    o(MM(0,4), fm(2), fm(3), ex(1,4), ex(1,5))
    o(MM(0,5), ex(1,6), ex(1,7), ex(1,8))
    o(MM(0,6), ex(1,9), ex(1,10), ex(1,11))
    o(MM(0,7), ex(1,12), ex(1,13), ex(1,14), ex(1,15))
    o.even("L_alpha")
    o(*tree(1))
    o(MU(1), "s_branch L_alpha")
    o.c("---- pipeline drain: last tile ----")
    o(".p2align 3")
    o.label("L_drain")
    pa = lambda g, first: (f"v_pk_mul_f32 {p(SA)}, {p(N+4*g)}, {p(N+4*g+2)}" if first else
                           f"v_pk_fma_f32 {p(SA)}, {p(N+4*g)}, {p(N+4*g+2)}, {p(SA)}")
    o(*[ex(0,i) for i in range(9, 16)])
    o.even("L_drain")
    o(*tree(0, 1), rc(0), rc(1), rc(2), rc(3))
    o(*[ex(1, i) for i in range(16)])
    o(pa(0, 1), pa(1, 0), *tree(1), rc(0), rc(1), rc(2), rc(3), pa(0, 0), pa(1, 0))
    o(f"v_add_f32 {v(SA)}, {v(SA)}, {v(SA+1)}", sumw(256), "s_waitcnt lgkmcnt(0)", "s_barrier")
    o.label("L_cexit")
    stamp(5)
    o.label("L_fin")
    if dg >= 0:
        stamp(6)
        from diag import diag_tail
        diag_tail(o, sST, sW, da, dg, K, dw, rel=rel)
    elif stamps:
        stamp(6)
        o("s_waitcnt vmcnt(0)", "s_mov_b64 exec, -1")
        stamp(11)
        o("s_sleep 40", "s_load_dwordx2 s[54:55], s[0:1], 72", "s_waitcnt lgkmcnt(0)")
        for i in range(15): o(f"v_mov_b32 {v(i)}, {s(sST+2*i)}")
        o(f"v_mov_b32 v15, {s(sN)}",
          f"s_xor_b32 {s(sW)}, {s(sW)}, 4",
          f"s_lshl3_add_u32 {s(sT0)}, s2, {s(sW)}",
          f"s_lshl_b32 {s(sT0)}, {s(sT0)}, 6",
          f"v_mov_b32 v16, {s(sT0)}",
          "s_mov_b64 exec, 1")
        for i in range(4): o(f"global_store_dwordx4 v16, v[{4*i}:{4*i+3}], s[54:55] offset:{16*i}")
    o.label("L_end")
    o.label("L_last")
    o("s_endpgm")

    if abl:
        i0 = o.l.index("L_lloop:"); i1 = o.l.index("L_c1:")
        def dropL(x):
            if abl & 1 and ("ds_" in x or x.strip().startswith("v_") or "buffer_" in x): return True
            if abl & 2 and "mfma" in x: return True
            return False
        o.l = o.l[:i0] + [x for x in o.l[i0:i1] if not dropL(x)] + o.l[i1:]
    if cyc: o.l = [x.replace("s_memrealtime", "s_memtime") for x in o.l]
    head = open(f"cdna_kernels/{NAME}.s.ref").read().split("; Override launch")[0]
    return (head + f"; @launch grid=(256,1,1) block=(512,1,1) lds={LDS_BYTES}\n"
        + '.amdgcn_target "amdgcn-amd-amdhsa--gfx950"\n.text\n'
        + f".globl {NAME}_kernel\n.p2align 8\n.type {NAME}_kernel,@function\n{NAME}_kernel:\n"
        + o.text()
        + f'.section .rodata,"a"\n.p2align 6\n.amdhsa_kernel {NAME}_kernel\n'
        + f"  .amdhsa_next_free_vgpr {NV+64}\n  .amdhsa_next_free_sgpr 100\n  .amdhsa_accum_offset {NV}\n"
        + "  .amdhsa_group_segment_fixed_size 0\n  .amdhsa_kernarg_size 80\n  .amdhsa_user_sgpr_count 2\n"
        + "  .amdhsa_user_sgpr_kernarg_segment_ptr 1\n  .amdhsa_system_sgpr_workgroup_id_x 1\n.end_amdhsa_kernel\n")

if __name__ == "__main__":
    kw = dict(x.split("=") for x in sys.argv[2:])
    kw = {k: int(val) for k, val in kw.items()}
    open(sys.argv[1], "w").write(gen(**kw))
```
